```python
import torch

def _softmax(x, axis=-1):
    return torch.softmax(x, dim=axis)
def _gelu(x):
    return torch.nn.functional.gelu(x, approximate="tanh")
def _silu(x):
    return torch.nn.functional.silu(x)
def _sigmoid(x):
    return torch.sigmoid(x)
def _layernorm(x, axis=-1, eps=1e-5):
    m = x.mean(dim=axis, keepdim=True)
    v = x.var(dim=axis, keepdim=True, unbiased=False)
    return (x - m) / torch.sqrt(v + eps)
def _scatter_add(tgt, idx, src, axis=0):
    return tgt.clone().index_add_(axis, idx, src)
def _segment_sum(src, seg, n):
    out = torch.zeros((n,) + src.shape[1:], dtype=src.dtype)
    return out.index_add_(0, seg, src)
def _pad(x, pw):
    flat = tuple(v for pair in reversed(pw) for v in pair)
    return torch.nn.functional.pad(x, flat)

kernel_name = 'sequential_preLN__sliding_block__dense_activation_silu__prompt'

def setup_inputs():

    _w = (lambda a: (lambda t: t.to(torch.bfloat16) if t.is_floating_point() else t)(torch.as_tensor(a)))
    def _A_setup():
        B, S, D = 1, 2048, 640
        return {
            "x": _w((lambda *s: torch.randn(*s, dtype=torch.bfloat16) * 0.05)(B, S, D)),
            "wqkv": _w((lambda *s: torch.randn(*s, dtype=torch.bfloat16) * 0.05)(D, 3 * D)),
            "wo": _w((lambda *s: torch.randn(*s, dtype=torch.bfloat16) * 0.05)(D, D)),
        }
    _A_in = _A_setup()

    def _B_setup():
        B, S, D, F = 1, 2048, 640, 1536
        return {
            "x": _w((lambda *s: torch.randn(*s, dtype=torch.bfloat16) * 0.05)(B, S, D)),
            "w1": _w((lambda *s: torch.randn(*s, dtype=torch.bfloat16) * 3.2)(D, F) * (D ** -0.5)),
            "w2": _w((lambda *s: torch.randn(*s, dtype=torch.bfloat16) * 0.4)(F, D) * (F ** -0.5)),
        }
    _B_in = _B_setup()

    return {
        "A_x": _A_in["x"],
        "A_wqkv": _A_in["wqkv"],
        "A_wo": _A_in["wo"],
        "B_x": _B_in["x"],
        "B_w1": _B_in["w1"],
        "B_w2": _B_in["w2"],
    }

def reference(A_x, A_wqkv, A_wo, B_x, B_w1, B_w2):
    def _A_ref(x, wqkv, wo):
        B, S, D = x.shape
        H = 32; Dh = D // H; W = 256
        qkv = (lambda x, *d: x.permute(*d))((x @ wqkv).reshape(B, S, 3, H, Dh), 2, 0, 3, 1, 4)
        q, k, v = qkv[0], qkv[1], qkv[2]
        scores = torch.einsum("bhqd,bhkd->bhqk", q, k) * (Dh ** -0.5)
        idx = torch.arange(S)
        mask = (idx[:, None] - idx[None, :] >= 0) & (idx[:, None] - idx[None, :] < W)
        scores = torch.where(mask[None, None], scores, -1e9)
        p = _softmax(scores, axis=-1)
        o = torch.einsum("bhqk,bhkd->bhqd", p, v)
        return (lambda x, *d: x.permute(*d))(o, 0, 2, 1, 3).reshape(B, S, D) @ wo

    def _B_ref(x, w1, w2):
        h = torch.einsum("bsd,df->bsf", x, w1)
        h = _silu(h)
        out = torch.einsum("bsf,fd->bsd", h, w2)
        return out

    x = A_x
    h = x + _A_ref(_layernorm(x, axis=-1), A_wqkv, A_wo)
    h2 = h + _B_ref(_layernorm(h, axis=-1), B_w1, B_w2)
    return h2
```

```python
import re

TRANS = ("v_exp_f32", "v_rcp_f32", "v_rsq_f32", "v_log_f32", "v_sqrt_f32", "v_sin_f32", "v_cos_f32")
NODEF_S = ("s_cmp", "s_waitcnt", "s_barrier", "s_nop", "s_branch", "s_cbranch", "s_endpgm", "s_sleep", "s_setprio", "s_bitcmp")

def split_ops(s):
    out = []; cur = ""; depth = 0
    for ch in s:
        if ch == "[": depth += 1
        if ch == "]": depth -= 1
        if ch == "," and depth == 0:
            out.append(cur.strip()); cur = ""
        else:
            cur += ch
    if cur.strip(): out.append(cur.strip())
    return out

RE_R = re.compile(r"^-?(?:abs\()?\|?([vas])(\d+)\|?\)?$")
RE_RR = re.compile(r"^-?([vas])\[(\d+):(\d+)\]$")
def regs(op):
    op = op.strip()
    m = RE_R.match(op)
    if m: return [(m.group(1), int(m.group(2)))]
    m = RE_RR.match(op)
    if m: return [(m.group(1), i) for i in range(int(m.group(2)), int(m.group(3)) + 1)]
    if op == "vcc": return [("s", "vcc")]
    if op == "exec": return [("s", "exec")]
    if op == "m0": return [("s", "m0")]
    return []

class Ins:
    __slots__ = ("text", "mn", "ops", "mods", "defs", "uses", "kind", "srcc", "srcab", "stdata")
    def __init__(self, text):
        self.text = text
        t = text.split(";")[0].strip()
        parts = t.split(None, 1)
        self.mn = parts[0]
        rest = parts[1] if len(parts) > 1 else ""
        ops = split_ops(rest)
        mods = ""
        if ops:
            last = ops[-1].split(None, 1)
            if len(last) > 1 and not last[0].startswith("op_sel"):
                ops[-1] = last[0]; mods = last[1]
        self.ops = ops; self.mods = mods
        mn = self.mn
        D = []; U = []; self.srcc = []; self.srcab = []; self.stdata = []
        R = lambda i: regs(ops[i]) if i < len(ops) else []
        allr = lambda a: [r for i in range(a, len(ops)) for r in R(i)]
        if mn.startswith("v_mfma"):
            self.kind = "mfma"; D = R(0); self.srcab = R(1) + R(2); self.srcc = R(3); U = self.srcab + self.srcc
        elif mn.startswith("v_cmp"):
            self.kind = "valu"; D = R(0); U = allr(1)
        elif mn.startswith("v_readfirstlane") or mn.startswith("v_readlane"):
            self.kind = "valu"; D = R(0); U = allr(1)
        elif mn.startswith("v_permlane"):
            self.kind = "valu"; D = R(0) + R(1); U = R(0) + R(1)
        elif mn.startswith("v_dot2c") or mn.startswith("v_fmac") or mn.startswith("v_pk_fmac"):
            self.kind = "valu"; D = R(0); U = allr(0)
        elif mn.startswith("v_cndmask"):
            self.kind = "valu"; D = R(0); U = allr(1)
            if len(ops) == 3: U += [("s", "vcc")]
        elif mn.startswith("v_add_co") or mn.startswith("v_sub_co"):
            self.kind = "valu"; D = R(0) + R(1); U = allr(2)
        elif mn.startswith("v_"):
            self.kind = "valu"; D = R(0); U = allr(1)
        elif mn.startswith("ds_read") :
            self.kind = "ds"; D = R(0); U = allr(1)
        elif mn.startswith("ds_bpermute") or mn.startswith("ds_swizzle"):
            self.kind = "ds"; D = R(0); U = allr(1)
        elif mn.startswith("ds_write"):
            self.kind = "ds"; U = allr(0)
        elif mn.startswith("buffer_load") or mn.startswith("global_load"):
            self.kind = "vmem"
            if " lds" in (" " + mods):
                U = allr(0) + [("s", "m0")]
            else:
                D = R(0); U = allr(1)
        elif mn.startswith("buffer_store") or mn.startswith("global_store"):
            self.kind = "vmem"; U = allr(0)
            if "x4" in mn or "x3" in mn:
                self.stdata = R(0) if mn.startswith("buffer") else R(1)
        elif mn.startswith("buffer_atomic") or mn.startswith("global_atomic"):
            self.kind = "vmem"; U = allr(0)
            if "sc0" in mods: D = R(0)
        elif mn.startswith("buffer_inv") or mn.startswith("buffer_wbl2"):
            self.kind = "vmem"
        elif mn.startswith("s_load") or mn.startswith("s_memtime") or mn.startswith("s_memrealtime"):
            self.kind = "smem"; D = R(0); U = allr(1)
        elif mn.startswith("s_"):
            self.kind = "salu"
            if mn.startswith(NODEF_S):
                U = allr(0)
            else:
                D = R(0); U = allr(1)
                if "saveexec" in mn: D += [("s", "exec")]
        else:
            raise ValueError("unknown instr: " + text)
        self.defs = set(D); self.uses = set(U)

def vg(rs):
    return {r for r in rs if r[0] in "va"}
def sg(rs):
    return {r for r in rs if r[0] == "s"}

def required_ws(J, I):
    ws = 0
    if J.kind == "valu":
        jd = vg(J.defs)
        if I.kind == "mfma" and jd & I.uses: ws = max(ws, 2)
        if I.kind == "valu":
            if I.mn.startswith("v_permlane") and jd & I.uses: ws = max(ws, 2)
            if "dpp" in I.mn or "row_" in I.mods or "quad_perm" in I.mods:
                if jd & I.uses: ws = max(ws, 2)
            if (I.mn.startswith("v_readfirstlane") or I.mn.startswith("v_readlane")) and jd & I.uses: ws = max(ws, 1)
        if J.mn.startswith(TRANS) and (jd & I.uses) and not I.mn.startswith(TRANS): ws = max(ws, 1)
        if J.mn.startswith("v_dot2"):
            if jd & (I.uses | I.defs):
                same = I.mn == J.mn and jd == vg(I.defs) and not (jd & (set(regs(I.ops[1])) | set(regs(I.ops[2]))))
                if not same: ws = max(ws, 3)
        js = sg(J.defs)
        if js:
            if I.kind == "valu" and js & I.uses: ws = max(ws, 4 if I.mn.startswith("v_readlane") or I.mn.startswith("v_writelane") else 2)
            if I.kind == "vmem" and js & I.uses: ws = max(ws, 5)
            if I.kind in ("salu", "smem") and js & I.uses: ws = max(ws, 2)
    if J.kind == "mfma":
        jd = J.defs
        if I.kind == "mfma":
            if jd & set(I.srcab): ws = max(ws, 8)
            if jd & set(I.srcc):
                if set(I.srcc) != jd: ws = max(ws, 6)
            elif jd & I.defs: ws = max(ws, 8)
        elif I.kind in ("valu", "ds", "vmem"):
            if jd & (I.uses | I.defs): ws = max(ws, 8)
        if I.kind == "valu" and set(J.srcc) & I.defs: ws = max(ws, 3)
    if J.kind == "salu" and ("s", "m0") in J.defs and I.kind == "vmem" and ("s", "m0") in I.uses: ws = max(ws, 1)
    if J.kind == "vmem" and J.stdata:
        if set(J.stdata) & I.defs: ws = max(ws, 2 if I.kind == "valu" else 1)
    return ws

def nop_states(I):
    if I.mn == "s_nop": return int(I.ops[0], 0) + 1
    return 1

class Asm:
    def __init__(self):
        self.L = []
    def e(self, s):
        for ln in s.strip().split("\n"):
            ln = ln.strip()
            if ln: self.L.append(ln)
    def c(self, s):
        self.L.append("; " + s)
    def label(self, n):
        self.L.append(n + ":")

    def finalize(self, check=True):
        out = []; hist = []
        nops = 0
        vmq = []; lgq = []
        errs = []
        for ln in self.L:
            if ln.startswith(";") or ln.startswith("."):
                out.append(ln); continue
            if ln.endswith(":"):
                out.append(ln); continue
            I = Ins(ln)
            need = 0; d = 0
            for J in reversed(hist[-24:]):
                w = required_ws(J, I)
                if w > d: need = max(need, w - d)
                d += nop_states(J)
                if d >= 20: break
            if need > 0:
                k = need
                while k > 0:
                    n = min(k, 16)
                    N = Ins("s_nop %d" % (n - 1)); hist.append(N); out.append("    " + N.text); k -= n; nops += 1
            if check:
                touched = I.uses | I.defs
                for q, nm in ((vmq, "vm"), (lgq, "lgkm")):
                    for (dst, txt) in q:
                        if dst & touched:
                            errs.append("MISSING %s WAIT: '%s' touches dest of pending '%s'" % (nm, ln, txt))
                if I.mn == "s_waitcnt":
                    m = re.search(r"vmcnt\((\d+)\)", ln)
                    if m:
                        n = int(m.group(1))
                        while len(vmq) > n: vmq.pop(0)
                    m = re.search(r"lgkmcnt\((\d+)\)", ln)
                    if m:
                        n = int(m.group(1))
                        if any(t.startswith("s_") for _, t in lgq) and n > 0:
                            pass
                        while len(lgq) > n: lgq.pop(0)
                if I.kind == "vmem": vmq.append((vg(I.defs), ln))
                if I.kind in ("ds", "smem"): lgq.append((set(I.defs), ln))
                if I.mn == "s_endpgm": vmq = []; lgq = []
            hist.append(I); out.append("    " + ln)
        if errs and check != 2:
            for x in errs[:20]: print(x)
            raise SystemExit("waitcnt check failed (%d)" % len(errs))
        self.nops = nops
        return "\n".join(out)

def v(a, n=1):
    return "v%d" % a if n == 1 else "v[%d:%d]" % (a, a + n - 1)
def a(x, n=1):
    return "a%d" % x if n == 1 else "a[%d:%d]" % (x, x + n - 1)
def s(x, n=1):
    return "s%d" % x if n == 1 else "s[%d:%d]" % (x, x + n - 1)
```

```python
import sys, math, struct
from asmlib import Asm, v, a, s

NAME = 'sequential_preLN__sliding_block__dense_activation_silu__prompt'
M = "v_mfma_f32_16x16x32_bf16"

WS_FLAGS = 0x0
WS_STAT = 0x20000
WS_HS = 0x40000
WS_QKV = 0x100000
WS_O = 0x900000
WS_H = 0xC00000
WS_H1 = 0xF00000
WS_PW3 = 0x1500000
WS_PW4 = 0x1600000
WS_PW5 = 0x1800000
WS_ST = 0x1A00000
WS_SIZE = 0x1B00000
BIGOFF = 0x7F000000

def f2u(x):
    return struct.unpack("<I", struct.pack("<f", x))[0]

S_X, S_WQ, S_WO, S_W1, S_W2, S_OUT, S_WS, S_DBG = 4, 8, 12, 16, 20, 24, 28, 32
S_W = 36
S_M1, S_N1, S_M3, S_J3 = 37, 38, 39, 40
S_NONCE = 42
S_SOFF = 62
S_TMO = 63
S_STC = 80
S_STT = 82
S_ODD = 84

V_L, V_C, V_G = 1, 2, 3

class Gen(Asm):
    def __init__(self, opts):
        super().__init__()
        self.o = opts
        self.vmq = []
        self.nlab = 0
        self.nstamp = 0
    def vm(self, text, tag=None):
        self.e(text); self.vmq.append(tag)
    def vm_n(self, tag):
        idx = max(i for i, t in enumerate(self.vmq) if t == tag)
        n = len(self.vmq) - 1 - idx
        assert n <= 63, (tag, n)
        return n
    def vm_wait(self, tag, extra=""):
        self.e("s_waitcnt vmcnt(%d)%s" % (self.vm_n(tag), extra))
    def newlabel(self, p="L"):
        self.nlab += 1
        return "%s_%d" % (p, self.nlab)
    def stamp(self, idx=None):
        if not self.o.get("stamps"): return
        i = self.nstamp if idx is None else idx
        if idx is None: self.nstamp += 1
        assert i < 32
        e = self.e
        e("%s %s" % ("s_memtime" if self.o.get("stamps") == 2 else "s_memrealtime", s(S_STT, 2)))
        e("s_waitcnt lgkmcnt(0)")
        e("v_mov_b32 v254, %s" % s(S_STT)); e("v_mov_b32 v255, %s" % s(S_STT + 1))
        e("s_lshl_b32 %s, s2, 2" % s(S_STC)); e("s_add_u32 %s, %s, %s" % (s(S_STC), s(S_STC), s(S_W)))
        e("s_lshl_b32 %s, %s, 8" % (s(S_STC), s(S_STC)))
        e("s_add_u32 %s, %s, 0x%x" % (s(S_STC), s(S_STC), WS_ST + i * 8))
        e("v_mov_b32 v253, %s" % s(S_STC))
        e("s_mov_b64 exec, 1")
        self.vm("buffer_store_dwordx2 v[254:255], v253, %s, 0 offen" % s(S_WS, 4), "stamp")
        e("s_mov_b64 exec, -1")

    def reduce4(self, x, tmp, op="v_add_f32"):
        e = self.e
        e("v_mov_b32 %s, %s" % (v(tmp), v(x)))
        e("v_permlane16_swap_b32 %s, %s" % (v(x), v(tmp)))
        e("%s %s, %s, %s" % (op, v(x), v(x), v(tmp)))
        e("v_mov_b32 %s, %s" % (v(tmp), v(x)))
        e("v_permlane32_swap_b32 %s, %s" % (v(x), v(tmp)))
        e("%s %s, %s, %s" % (op, v(x), v(x), v(tmp)))

    def nonce_issue(self, vr):
        self.e("v_mov_b32 %s, 0" % v(vr + 2))
        self.vm("buffer_load_dwordx2 %s, %s, %s, 0 offen sc1" % (v(vr, 2), v(vr + 2), s(S_DBG, 4)), "nonce")
    def nonce_get(self, vr):
        e = self.e
        self.vm_wait("nonce")
        l0 = self.newlabel("NL"); l1 = self.newlabel("ND")
        e("v_readfirstlane_b32 %s, %s" % (s(S_NONCE), v(vr)))
        e("v_readfirstlane_b32 %s, %s" % (s(S_NONCE + 1), v(vr + 1)))
        e("s_cmp_lg_u32 %s, 0" % s(S_NONCE))
        e("s_cbranch_scc1 %s" % l1)
        e("s_mov_b32 s44, 0")
        self.label(l0)
        e("buffer_load_dwordx2 %s, %s, %s, 0 offen sc1" % (v(vr, 2), v(vr + 2), s(S_DBG, 4)))
        e("s_waitcnt vmcnt(0)")
        e("v_readfirstlane_b32 %s, %s" % (s(S_NONCE), v(vr)))
        e("v_readfirstlane_b32 %s, %s" % (s(S_NONCE + 1), v(vr + 1)))
        e("s_add_u32 s44, s44, 1")
        e("s_cmp_gt_u32 s44, 20000")
        e("s_cbranch_scc1 %s" % l1)
        e("s_cmp_eq_u32 %s, 0" % s(S_NONCE))
        e("s_cbranch_scc1 %s" % l0)
        self.label(l1)
    def flag_set(self, phase, sidx, vt):
        e = self.e
        l = self.newlabel("FS")
        e("s_cmp_lg_u32 %s, 0" % s(S_W)); e("s_cbranch_scc1 %s" % l)
        e("s_lshl_b32 s44, %s, 6" % s(sidx)); e("s_add_u32 s44, s44, 0x%x" % (WS_FLAGS + phase * 16384))
        e("v_mov_b32 %s, %s" % (v(vt), s(S_NONCE))); e("v_mov_b32 %s, %s" % (v(vt + 1), s(S_NONCE + 1)))
        e("v_mov_b32 %s, s44" % v(vt + 2))
        e("s_mov_b64 exec, 1")
        e("buffer_store_dwordx2 %s, %s, %s, 0 offen sc1" % (v(vt, 2), v(vt + 2), s(S_WS, 4)))
        e("s_mov_b64 exec, -1")
        self.label(l)
    def flag_poll(self, vaddr, vt, nloads=1, stride=0):
        e = self.e
        l0 = self.newlabel("PL"); l1 = self.newlabel("PD")
        e("s_mov_b32 s44, 0")
        self.label(l0)
        for k in range(nloads):
            e("buffer_load_dwordx2 %s, %s, %s, 0 offen offset:%d sc1" % (v(vt + 2 * k, 2), v(vaddr), s(S_WS, 4), k * stride))
        e("s_waitcnt vmcnt(0)")
        for k in range(nloads):
            e("v_cmp_eq_u32 %s, %s, %s" % (s(46 + 0, 2), s(S_NONCE), v(vt + 2 * k)))
            e("v_cmp_eq_u32 %s, %s, %s" % (s(48 + 0, 2), s(S_NONCE + 1), v(vt + 2 * k + 1)))
            e("s_and_b64 s[46:47], s[46:47], s[48:49]")
            if k == 0: e("s_mov_b64 s[50:51], s[46:47]")
            else: e("s_and_b64 s[50:51], s[50:51], s[46:47]")
        e("s_cmp_eq_u64 s[50:51], -1")
        e("s_cbranch_scc1 %s" % l1)
        e("s_add_u32 s44, s44, 1")
        e("s_cmp_gt_u32 s44, 20000")
        e("s_cbranch_scc0 %s" % l0)
        e("s_mov_b32 %s, 1" % s(S_TMO))
        self.label(l1)

    def prologue(self):
        e = self.e
        e("s_cmp_ge_u32 s2, 256")
        e("s_cbranch_scc1 L_end")
        e("s_load_dwordx16 s[44:59], s[0:1], 0")
        e("s_load_dwordx2 s[80:81], s[0:1], 64")
        e("v_and_b32 %s, 63, v0" % v(V_L))
        e("v_lshrrev_b32 v4, 6, v0")
        e("v_and_b32 %s, 15, %s" % (v(V_C), v(V_L)))
        e("v_lshrrev_b32 %s, 4, %s" % (v(V_G), v(V_L)))
        e("v_readfirstlane_b32 %s, v4" % s(S_W))
        e("s_and_b32 s3, s2, 7")
        e("s_lshr_b32 s41, s2, 3")
        e("s_lshr_b32 %s, s3, 1" % s(S_M1)); e("s_lshl_b32 %s, %s, 2" % (s(S_M1), s(S_M1)))
        e("s_lshr_b32 s62, s41, 3"); e("s_add_u32 %s, %s, s62" % (s(S_M1), s(S_M1)))
        e("s_and_b32 %s, s3, 1" % s(S_N1)); e("s_lshl_b32 %s, %s, 3" % (s(S_N1), s(S_N1)))
        e("s_and_b32 s62, s41, 7"); e("s_add_u32 %s, %s, s62" % (s(S_N1), s(S_N1)))
        e("s_lshl_b32 %s, s3, 1" % s(S_M3)); e("s_lshr_b32 s62, s41, 4"); e("s_add_u32 %s, %s, s62" % (s(S_M3), s(S_M3)))
        e("s_and_b32 %s, s41, 15" % s(S_J3))
        e("s_mov_b32 %s, 0" % s(S_TMO))
        e("v_and_b32 v4, 1, %s" % v(V_G))
        e("v_cmp_eq_u32 %s, 1, v4" % s(S_ODD, 2))
        e("s_waitcnt lgkmcnt(0)")
        def srd(d, src, size):
            e("s_mov_b32 %s, %s" % (s(d), s(src))); e("s_and_b32 %s, %s, 0xffff" % (s(d + 1), s(src + 1)))
            e("s_mov_b32 %s, 0x%x" % (s(d + 2), size)); e("s_mov_b32 %s, 0x20000" % s(d + 3))
        srd(S_X, 44, 2048 * 640 * 2)
        srd(S_WQ, 46, 640 * 1920 * 2)
        srd(S_WO, 48, 640 * 640 * 2)
        srd(S_W1, 52, 640 * 1536 * 2)
        srd(S_W2, 54, 1536 * 640 * 2)
        srd(S_OUT, 56, 2048 * 640 * 2)
        srd(S_DBG, 58, 256)
        srd(S_WS, 80, WS_SIZE)
        l = self.newlabel("NP")
        e("s_lshl_b32 s44, s2, 2"); e("s_or_b32 s44, s44, %s" % s(S_W))
        e("s_cmp_lg_u32 s44, 0"); e("s_cbranch_scc1 %s" % l)
        e("s_memrealtime s[44:45]")
        e("s_waitcnt lgkmcnt(0)")
        e("s_or_b32 s44, s44, 1")
        e("v_mov_b32 v4, s44"); e("v_mov_b32 v5, s45"); e("v_mov_b32 v6, 0")
        e("s_mov_b64 exec, 1")
        e("buffer_store_dwordx2 v[4:5], v6, %s, 0 offen sc1" % s(S_DBG, 4))
        e("s_mov_b64 exec, -1")
        self.label(l)

    def x_dma_setup(self, VX, t0, t1):
        e = self.e
        e("v_lshrrev_b32 %s, 2, %s" % (v(t0), v(V_L)))
        e("v_lshrrev_b32 %s, 2, %s" % (v(t1), v(t0)))
        e("v_sub_u32 %s, 4, %s" % (v(t1), v(t1))); e("v_and_b32 %s, 3, %s" % (v(t1), v(t1)))
        e("v_xor_b32 %s, %s, %s" % (v(t1), v(t1), v(V_L))); e("v_and_b32 %s, 3, %s" % (v(t1), v(t1)))
        e("s_lshl_b32 s44, %s, 7" % s(S_M1)); e("s_lshl_b32 s45, %s, 5" % s(S_W)); e("s_add_u32 s44, s44, s45")
        e("v_add_u32 %s, s44, %s" % (v(t0), v(t0)))
        e("v_mul_u32_u24 %s, 1280, %s" % (v(t0), v(t0)))
        e("v_lshl_add_u32 %s, %s, 4, %s" % (v(VX), v(t1), v(t0)))
        e("v_add_u32 %s, 20480, %s" % (v(VX + 1), v(VX)))
    def x_frag_addr(self, VA, t0, base_const):
        e = self.e
        e("v_lshrrev_b32 %s, 2, %s" % (v(t0), v(V_C)))
        e("v_sub_u32 %s, 4, %s" % (v(t0), v(t0))); e("v_and_b32 %s, 3, %s" % (v(t0), v(t0)))
        e("v_xor_b32 %s, %s, %s" % (v(t0), v(t0), v(V_G)))
        e("v_lshlrev_b32 %s, 4, %s" % (v(t0), v(t0)))
        e("v_lshl_add_u32 %s, %s, 6, %s" % (v(VA), v(V_C), v(t0)))
        if base_const: e("v_add_u32 %s, %s, %s" % (v(VA), base_const, v(VA)))

    def p1_helper(self):
        e = self.e
        self.c("helper workgroup: LayerNorm statistics of x for token block m1")
        save = list(self.vmq); self.vmq = []
        VX, VA, T = 12, 14, 208
        self.x_dma_setup(VX, T, T + 1)
        self.x_frag_addr(VA, T, None)
        e("s_lshl_b32 s47, %s, 15" % s(S_W))
        e("v_add_u32 %s, s47, %s" % (v(VA), v(VA)))
        def issue(st):
            for tt in range(2):
                e("s_add_u32 m0, s47, 0x%x" % ((st % 16) * 2048 + tt * 1024))
                e("s_mov_b32 %s, %d" % (s(S_SOFF), st * 64))
                self.vm("buffer_load_dwordx4 %s, %s, %s offen lds" % (v(VX + tt), s(S_X, 4), s(S_SOFF)), ("hx", st))
        for st in range(16): issue(st)
        self.nonce_issue(16)
        for i in range(4): e("v_mov_b32 %s, 0x3f803f80" % v(20 + i))
        for i in range(16): e("v_mov_b32 %s, 0" % v(32 + i))
        for st in range(20):
            self.vm_wait(("hx", st))
            b = (st % 2) * 8
            for tt in range(2):
                e("ds_read_b128 %s, %s offset:%d" % (a(b + tt * 4, 4), v(VA), (st % 16) * 2048 + tt * 1024))
            e("s_waitcnt lgkmcnt(0)")
            if st < 4: issue(st + 16)
            for tt in range(2):
                e("%s %s, %s, %s, %s" % (M, v(32 + tt * 4, 4), a(b + tt * 4, 4), a(b + tt * 4, 4), v(32 + tt * 4, 4)))
                e("%s %s, %s, %s, %s" % (M, v(40 + tt * 4, 4), v(20, 4), a(b + tt * 4, 4), v(40 + tt * 4, 4)))
        self.nonce_get(16)
        e("v_and_b32 %s, 3, %s" % (v(T), v(V_C)))
        e("v_lshrrev_b32 %s, 2, %s" % (v(T + 1), v(V_C)))
        e("v_cmp_eq_u32 s[46:47], %s, %s" % (v(T + 1), v(V_G)))
        for tt in range(2):
            d = 32 + tt * 4
            for i in range(1, 4):
                e("v_cmp_eq_u32 vcc, %d, %s" % (i, v(T)))
                e("v_cndmask_b32 %s, %s, %s, vcc" % (v(d), v(d), v(d + i)))
            e("v_cndmask_b32 %s, 0, %s, s[46:47]" % (v(d), v(d)))
            self.reduce4(d, T + 2)
            sm = 40 + tt * 4
            e("v_mul_f32 %s, 0x%x, %s" % (v(sm), f2u(1.0 / 640), v(sm)))
            e("v_mul_f32 %s, 0x%x, %s" % (v(d), f2u(1.0 / 640), v(d)))
            e("v_fma_f32 %s, -%s, %s, %s" % (v(d), v(sm), v(sm), v(d)))
            e("v_max_f32 %s, 0, %s" % (v(d), v(d)))
            e("v_add_f32 %s, 0x%x, %s" % (v(d), f2u(1e-5), v(d)))
            e("v_rsq_f32 %s, %s" % (v(d), v(d)))
            o4 = 48 + tt * 4
            e("v_mov_b32 %s, %s" % (v(o4), v(sm))); e("v_mov_b32 %s, %s" % (v(o4 + 1), v(d)))
            e("v_mov_b32 %s, %s" % (v(o4 + 2), s(S_NONCE))); e("v_mov_b32 %s, %s" % (v(o4 + 3), s(S_NONCE + 1)))
        e("s_lshl_b32 s44, %s, 7" % s(S_M1)); e("s_lshl_b32 s45, %s, 5" % s(S_W)); e("s_add_u32 s44, s44, s45")
        e("v_add_u32 %s, s44, %s" % (v(T), v(V_C)))
        e("v_lshlrev_b32 %s, 4, %s" % (v(T), v(T)))
        e("v_add_u32 %s, 0x%x, %s" % (v(T), WS_STAT, v(T)))
        e("s_mov_b64 exec, 0xffff")
        for tt in range(2):
            e("buffer_store_dwordx4 %s, %s, %s, 0 offen offset:%d sc1" % (v(48 + tt * 4, 4), v(T), s(S_WS, 4), tt * 256))
        e("s_mov_b64 exec, -1")
        e("s_waitcnt vmcnt(0)")
        self.vmq = save

    def p1(self):
        e = self.e; o = self.o
        VT = 4
        VXA = 8
        VX = 10
        VWO = 12
        VPK = 13
        VONE = 20
        VCS = 24
        ACC = 32
        VST = 96
        VN = 112
        PKF = 116
        VPA = 124
        TMP = 208
        t0, t1, t2, t3 = TMP, TMP + 1, TMP + 2, TMP + 3
        acc = lambda i, tt: ACC + (i * 4 + tt) * 4
        PK_OFF = 131072
        CS_OFF = 131072 + 24576
        lab_h = self.newlabel("HELP"); lab_j = self.newlabel("P1J")
        e("s_cmp_eq_u32 %s, 15" % s(S_N1)); e("s_cbranch_scc1 %s" % lab_h)
        self.c("P1: address setup")
        self.x_dma_setup(VX, t0, t1)
        e("s_lshr_b32 s44, %s, 1" % s(S_W)); e("s_lshl_b32 s44, s44, 3")
        e("v_and_b32 %s, 1, %s" % (v(t0), v(V_G))); e("v_and_b32 %s, 2, %s" % (v(t1), v(V_G)))
        e("v_lshl_or_b32 %s, %s, 1, %s" % (v(t0), v(t1), v(t0))); e("v_or_b32 %s, s44, %s" % (v(t0), v(t0)))
        e("v_xor_b32 %s, %s, %s" % (v(t0), v(t0), v(V_C)))
        e("s_lshl_b32 s45, %s, 2" % s(S_W)); e("v_add_u32 %s, s45, %s" % (v(t1), v(V_G)))
        e("v_mul_u32_u24 %s, 3840, %s" % (v(t1), v(t1)))
        e("v_lshl_add_u32 %s, %s, 4, %s" % (v(t1), v(t0), v(t1)))
        e("s_lshl_b32 s44, %s, 8" % s(S_N1)); e("v_add_u32 %s, s44, %s" % (v(VWO), v(t1)))
        e("s_lshl_b32 s47, %s, 10" % s(S_W))
        e("s_lshl_b32 s48, %s, 11" % s(S_W))
        def dma_ops(st):
            ops = []
            sl = (st % 8) * 16384
            for h in range(2):
                ops.append((["s_add_u32 m0, s47, 0x%x" % (sl + h * 4096), "s_mov_b32 %s, 0x%x" % (s(S_SOFF), (32 * st + 16 * h) * 3840)],
                            "buffer_load_dwordx4 %s, %s, %s offen lds" % (v(VWO), s(S_WQ, 4), s(S_SOFF))))
            for tt in range(2):
                ops.append((["s_add_u32 m0, s48, 0x%x" % (sl + 8192 + tt * 1024), "s_mov_b32 %s, %d" % (s(S_SOFF), st * 64)],
                            "buffer_load_dwordx4 %s, %s, %s offen lds" % (v(VX + tt), s(S_X, 4), s(S_SOFF))))
            return ops
        def issue_now(st):
            for su, ld in dma_ops(st):
                for x in su: e(x)
                self.vm(ld, ("st", st))
        for st in range(8): issue_now(st)
        self.stamp()
        self.c("pack set-up")
        e("s_mul_i32 s49, %s, 15" % s(S_M1)); e("s_add_u32 s49, s49, %s" % s(S_N1))
        e("s_cmp_lt_u32 s49, 80")
        e("s_cselect_b32 s64, %s, %s" % (s(S_WO), s(S_W1))); e("s_cselect_b32 s65, %s, %s" % (s(S_WO + 1), s(S_W1 + 1)))
        e("s_cselect_b32 s66, %s, %s" % (s(S_WO + 2), s(S_W1 + 2))); e("s_mov_b32 s67, 0x20000")
        e("s_mov_b32 s72, 1280"); e("s_cselect_b32 s72, s72, 3072")
        e("s_cselect_b32 s73, 20, 24")
        e("s_cselect_b32 s74, 2, 3")
        e("s_cselect_b32 s75, 0, 80")
        e("s_mov_b32 s76, 320"); e("s_cselect_b32 s76, s76, 384")
        e("s_cselect_b32 s77, 5, 6")
        e("s_cselect_b32 s78, 20, 20")
        e("s_mov_b32 s79, 0x%x" % WS_PW3); e("s_cselect_b32 s79, s79, 0x%x" % WS_PW4)
        e("s_sub_u32 s50, s49, s75")
        e("s_lshr_b32 s51, s50, s74")
        e("s_lshl_b32 s52, 1, s74"); e("s_sub_u32 s52, s52, 1"); e("s_and_b32 s52, s50, s52")
        def pack_setup(blk, sStride, sUnits, sCol, sTiles, sSteps, sDst, sK, sCb, valid_s):
            e("s_mul_i32 s53, %s, %s" % (s(sK), s(sStride))); e("s_lshl_b32 s53, s53, 5")
            e("s_mul_i32 s54, %s, %s" % (s(sCb), s(sCol))); e("s_add_u32 s53, s53, s54")
            for i3 in range(3):
                e("s_lshl_b32 s54, %s, 6" % s(S_W)); e("s_add_u32 s54, s54, %d" % (256 * i3))
                e("v_add_u32 %s, s54, %s" % (v(t0), v(V_L)))
                e("v_mul_u32_u24 %s, 2731, %s" % (v(t1), v(t0))); e("v_lshrrev_b32 %s, 16, %s" % (v(t1), v(t1)))
                e("v_mul_u32_u24 %s, 24, %s" % (v(t2), v(t1))); e("v_sub_u32 %s, %s, %s" % (v(t2), v(t0), v(t2)))
                e("s_sub_u32 s54, %s, 1" % s(sUnits)); e("v_min_u32 %s, s54, %s" % (v(t2), v(t2)))
                e("v_mul_lo_u32 %s, %s, %s" % (v(t1), v(t1), s(sStride)))
                e("v_lshl_add_u32 %s, %s, 4, %s" % (v(t1), v(t2), v(t1)))
                e("v_add_u32 %s, s53, %s" % (v(VPK + 3 * blk + i3), v(t1)))
            for i3 in range(3):
                e("s_add_u32 s54, %s, %d" % (s(S_W), 4 * i3))
                e("s_cmp_ge_u32 s54, %s" % s(sTiles)); e("s_cselect_b32 s55, 1, 0")
                e("s_mul_i32 s56, s55, %s" % s(sTiles)); e("s_sub_u32 s56, s54, s56")
                e("s_mul_i32 s57, s55, %s" % s(sTiles)); e("s_lshl_b32 s57, s57, 5")
                e("s_lshr_b32 s58, s56, 1"); e("s_lshl_b32 s58, s58, 6"); e("s_add_u32 s57, s57, s58")
                e("s_and_b32 s58, s56, 1"); e("s_lshl_b32 s58, s58, 3"); e("s_add_u32 s57, s57, s58")
                e("s_cmp_eq_u32 s56, 4"); e("s_cselect_b32 s58, 1, 0"); e("s_cmp_eq_u32 %s, 5" % s(sTiles)); e("s_cselect_b32 s58, s58, 0")
                e("s_cmp_eq_u32 s58, 1"); e("s_cselect_b32 s58, 3, 4")
                e("v_and_b32 %s, 3, %s" % (v(t0), v(V_L))); e("v_lshlrev_b32 %s, s58, %s" % (v(t0), v(t0)))
                e("v_lshrrev_b32 %s, 2, %s" % (v(t1), v(V_C))); e("v_lshl_add_u32 %s, %s, 3, %s" % (v(t1), v(V_G), v(t1)))
                e("v_mul_u32_u24 %s, 384, %s" % (v(t1), v(t1)))
                e("v_add3_u32 %s, %s, %s, s57" % (v(t0), v(t0), v(t1)))
                e("v_add_u32 %s, 0x%x, %s" % (v(VPA + 3 * blk + i3), PK_OFF + blk * 12288, v(t0)))
                e("s_lshl_b32 s57, %s, 1" % s(sCb)); e("s_add_u32 s57, s57, s55"); e("s_mul_i32 s57, s57, %s" % s(sSteps))
                e("s_add_u32 s57, s57, %s" % s(sK)); e("s_mul_i32 s57, s57, %s" % s(sTiles)); e("s_add_u32 s57, s57, s56")
                e("s_lshl_b32 s57, s57, 10"); e("s_add_u32 s57, s57, %s" % s(sDst))
                e("s_lshl_b32 s58, %s, 1" % s(sTiles)); e("s_cmp_lt_u32 s54, s58"); e("s_cselect_b32 s57, s57, 0x%x" % BIGOFF)
                if valid_s is not None:
                    e("s_cmp_lt_u32 s49, %d" % valid_s); e("s_cselect_b32 s57, s57, 0x%x" % BIGOFF)
                e("v_lshlrev_b32 %s, 4, %s" % (v(t0), v(V_L)))
                e("v_add_u32 %s, s57, %s" % (v(VPA + 6 + 3 * blk + i3), v(t0)))
        pack_setup(0, 72, 73, 76, 77, 78, 79, 51, 52, None)
        e("s_mov_b32 s72, 1280"); e("s_mov_b32 s73, 20"); e("s_mov_b32 s76, 320"); e("s_mov_b32 s77, 5"); e("s_mov_b32 s78, 48"); e("s_mov_b32 s79, 0x%x" % WS_PW5)
        e("s_lshr_b32 s51, s49, 2"); e("s_and_b32 s52, s49, 3")
        pack_setup(1, 72, 73, 76, 77, 78, 79, 51, 52, 192)
        for blk in range(2):
            for i3 in range(3):
                e("s_add_u32 m0, s47, 0x%x" % (PK_OFF + blk * 12288 + i3 * 4096))
                e("s_nop 0")
                self.vm("buffer_load_dwordx4 %s, %s, 0 offen lds" % (v(VPK + 3 * blk + i3), s(64 if blk == 0 else S_W2, 4)), "pk")
        self.c("W tile / x fragment read addresses")
        e("v_lshrrev_b32 %s, 2, %s" % (v(t0), v(V_C)))
        e("v_and_b32 %s, 3, %s" % (v(t1), v(V_L)))
        e("v_and_b32 %s, 1, %s" % (v(t2), v(t0))); e("v_and_b32 %s, 2, %s" % (v(t3), v(t0)))
        e("v_lshl_or_b32 %s, %s, 1, %s" % (v(t2), v(t3), v(t2)))
        e("v_and_b32 %s, 1, %s" % (v(t3), v(V_G))); e("v_lshl_or_b32 %s, %s, 3, %s" % (v(t2), v(t3), v(t2)))
        e("v_lshl_add_u32 %s, %s, 3, %s" % (v(t0), v(V_G), v(t0))); e("v_lshlrev_b32 %s, 8, %s" % (v(t0), v(t0)))
        for i in range(4):
            e("s_lshr_b32 s44, %s, 1" % s(S_W)); e("s_xor_b32 s44, s44, %d" % (i >> 1))
            e("s_and_b32 s45, %s, 1" % s(S_W)); e("s_lshl_b32 s45, s45, 1"); e("s_add_u32 s44, s44, s45"); e("s_lshl_b32 s44, s44, 2")
            e("v_add_u32 %s, s44, %s" % (v(t3), v(t1)))
            e("v_xor_b32 %s, %s, %s" % (v(t3), v(t3), v(t2)))
            e("v_lshl_add_u32 %s, %s, 4, %s" % (v(VT + i), v(t3), v(t0)))
            e("v_and_b32 %s, 1, %s" % (v(t3), v(t1)))
            if i & 1: e("v_xor_b32 %s, 1, %s" % (v(t3), v(t3)))
            e("v_lshl_add_u32 %s, %s, 3, %s" % (v(VT + i), v(t3), v(VT + i)))
        self.x_frag_addr(VXA, t0, None)
        e("s_lshr_b32 s44, %s, 1" % s(S_W)); e("s_lshl_b32 s44, s44, 12"); e("s_add_u32 s44, s44, 8192")
        e("v_add_u32 %s, s44, %s" % (v(VXA), v(VXA)))
        for i in range(4): e("v_mov_b32 %s, 0x3f803f80" % v(VONE + i))
        for i in range(8): e("v_mov_b32 %s, 0" % v(VCS + i))
        for i in range(64): e("v_mov_b32 %s, 0" % v(ACC + i))
        self.stamp()
        self.c("P1 main loop")
        NS = 20
        def reads(st):
            b = (st % 2) * 32; sl = (st % 4) * 16384
            pre = []
            if st % 8 == 4:
                pre = ["v_add_u32 %s, 0x10000, %s" % (v(r), v(r)) for r in (VT, VT + 1, VT + 2, VT + 3, VXA)]
            elif st % 8 == 0 and st > 0:
                pre = ["v_subrev_u32 %s, 0x10000, %s" % (v(r), v(r)) for r in (VT, VT + 1, VT + 2, VT + 3, VXA)]
            r = []
            for i in range(4):
                r.append("ds_read_b64_tr_b16 %s, %s offset:%d" % (a(b + i * 4, 2), v(VT + i), sl))
                r.append("ds_read_b64_tr_b16 %s, %s offset:%d" % (a(b + i * 4 + 2, 2), v(VT + i), sl + 1024))
            for tt in range(4):
                r.append("ds_read_b128 %s, %s offset:%d" % (a(b + 16 + tt * 4, 4), v(VXA), sl + tt * 1024))
            return pre, r
        self.vm_wait(("st", 1))
        e("s_barrier")
        pre, r = reads(0)
        for x in pre + r: e(x)
        pending_dma = []
        pk_list = [(blk, i3) for blk in range(2) for i3 in range(3)]
        for st in range(NS):
            b = (st % 2) * 32
            e("s_waitcnt lgkmcnt(0)")
            nxt = st + 1
            if nxt < NS and nxt % 2 == 0:
                self.vm_wait(("st", nxt + 1))
                e("s_barrier")
                if o.get("fine"): self.stamp()
                for s2 in (nxt + 6, nxt + 7):
                    if s2 < NS: pending_dma += [(su, ld, ("st", s2)) for su, ld in dma_ops(s2)]
            pre, r = reads(nxt) if nxt < NS else ([], [])
            extra_after = {}
            pk_rd = None; pk_st = None
            if 8 <= st < 14: pk_rd = pk_list[st - 8]
            if 9 <= st < 15: pk_st = pk_list[st - 9]
            if pk_rd:
                blk, i3 = pk_rd; f = PKF + (st % 2) * 4
                r = r + ["ds_read_b64_tr_b16 %s, %s" % (v(f, 2), v(VPA + 3 * blk + i3)),
                         "ds_read_b64_tr_b16 %s, %s offset:%d" % (v(f + 2, 2), v(VPA + 3 * blk + i3), 4 * 384)]
            mf = []
            for i in range(4):
                for tt in range(4):
                    mf.append("%s %s, %s, %s, %s" % (M, v(acc(i, tt), 4), a(b + i * 4, 4), a(b + 16 + tt * 4, 4), v(acc(i, tt), 4)))
                if i < 2: mf.append("%s %s, %s, %s, %s" % (M, v(VCS + i * 4, 4), a(b + i * 4, 4), v(VONE, 4), v(VCS + i * 4, 4)))
            for x in pre: e(x)
            dpos = (1, 5, 10, 14)
            for n, m in enumerate(mf):
                dm = None
                if n in dpos and pending_dma:
                    dm = pending_dma.pop(0)
                    for x in dm[0]: e(x)
                e(m)
                if n < len(r): e(r[n])
                if dm: self.vm(dm[1], dm[2])
                if n == 8 and pk_st:
                    blk, i3 = pk_st; f = PKF + ((st - 1) % 2) * 4
                    self.vm("buffer_store_dwordx4 %s, %s, %s, 0 offen sc1" % (v(f, 4), v(VPA + 6 + 3 * blk + i3), s(S_WS, 4)), "pkst")
                if n == 16 and st == 12: self.nonce_issue(VN)
                if n == 16 and st == 17:
                    e("s_lshl_b32 s44, %s, 7" % s(S_M1)); e("s_lshr_b32 s45, %s, 1" % s(S_W)); e("s_lshl_b32 s45, s45, 6"); e("s_add_u32 s44, s44, s45")
                    e("v_add_u32 %s, s44, %s" % (v(t0), v(V_C))); e("v_lshlrev_b32 %s, 4, %s" % (v(t0), v(t0)))
                    e("v_add_u32 %s, 0x%x, %s" % (v(19), WS_STAT, v(t0)))
                    for tt in range(4):
                        self.vm("buffer_load_dwordx4 %s, %s, %s, 0 offen offset:%d sc1" % (v(VST + tt * 4, 4), v(19), s(S_WS, 4), tt * 256), "stat")
            assert st < NS - 1 or not pending_dma
        self.stamp()
        self.c("P1 epilogue")
        e("s_lshr_b32 s44, %s, 1" % s(S_W)); e("s_and_b32 s45, %s, 1" % s(S_W)); e("s_lshl_b32 s45, s45, 1")
        e("s_add_u32 s46, s44, s45")
        e("s_xor_b32 s44, s44, 1"); e("s_add_u32 s50, s44, s45")
        e("s_lshl_b32 s51, s46, 7"); e("s_add_u32 s51, s51, 0x%x" % CS_OFF)
        e("v_lshlrev_b32 %s, 4, %s" % (v(t0), v(V_G)))
        e("v_add_u32 %s, s51, %s" % (v(t1), v(t0)))
        e("v_cmp_eq_u32 vcc, 0, %s" % v(V_C))
        e("s_and_saveexec_b64 s[52:53], vcc")
        e("ds_write_b128 %s, %s" % (v(t1), v(VCS, 4)))
        e("ds_write_b128 %s, %s offset:64" % (v(t1), v(VCS + 4, 4)))
        e("s_mov_b64 exec, s[52:53]")
        self.nonce_get(VN)
        self.vm_wait("stat")
        l0 = self.newlabel("SR"); l1 = self.newlabel("SD")
        e("s_mov_b32 s44, 0")
        self.label(l0)
        e("s_mov_b64 s[52:53], -1")
        for tt in range(4):
            e("v_cmp_eq_u32 s[54:55], %s, %s" % (s(S_NONCE), v(VST + tt * 4 + 2)))
            e("v_cmp_eq_u32 s[56:57], %s, %s" % (s(S_NONCE + 1), v(VST + tt * 4 + 3)))
            e("s_and_b64 s[52:53], s[52:53], s[54:55]"); e("s_and_b64 s[52:53], s[52:53], s[56:57]")
        e("s_cmp_eq_u64 s[52:53], -1"); e("s_cbranch_scc1 %s" % l1)
        e("s_add_u32 s44, s44, 1"); e("s_cmp_gt_u32 s44, 20000"); e("s_cbranch_scc1 %s" % l1)
        for tt in range(4):
            e("buffer_load_dwordx4 %s, %s, %s, 0 offen offset:%d sc1" % (v(VST + tt * 4, 4), v(19), s(S_WS, 4), tt * 256))
        e("s_waitcnt vmcnt(0)")
        e("s_branch %s" % l0)
        self.label(l1)
        e("s_waitcnt lgkmcnt(0)")
        e("s_barrier")
        CSV = 116
        e("s_lshl_b32 s52, s50, 7"); e("s_add_u32 s52, s52, 0x%x" % CS_OFF)
        e("v_add_u32 %s, s52, %s" % (v(t1), v(t0)))
        e("ds_read_b128 %s, %s" % (v(CSV + 8, 4), v(t1)))
        e("ds_read_b128 %s, %s offset:64" % (v(CSV + 12, 4), v(t1)))
        for i in range(8): e("v_mov_b32 %s, %s" % (v(CSV + i), v(VCS + i)))
        qs = math.log2(math.e) / math.sqrt(20.0)
        e("s_cmp_lt_u32 %s, 5" % s(S_N1)); e("s_mov_b32 s53, 0x3f800000"); e("s_cselect_b32 s53, 0x%x, s53" % f2u(qs))
        for tt in range(4):
            e("v_mul_f32 %s, s53, %s" % (v(VST + tt * 4 + 1), v(VST + tt * 4 + 1)))
            e("v_xor_b32 %s, 0x80000000, %s" % (v(VST + tt * 4), v(VST + tt * 4)))
        e("v_lshlrev_b32 %s, 11, %s" % (v(t2), v(V_G))); e("v_add_u32 %s, %s, %s" % (v(t2), v(t2), v(V_C))); e("v_lshlrev_b32 %s, 4, %s" % (v(t2), v(t2)))
        e("s_lshl_b32 s54, %s, 7" % s(S_M1)); e("s_lshr_b32 s55, %s, 1" % s(S_W)); e("s_lshl_b32 s55, s55, 6"); e("s_add_u32 s54, s54, s55")
        e("s_lshl_b32 s55, %s, 4" % s(S_N1))
        for q, sp in ((0, 46), (1, 50)):
            e("s_lshl_b32 s56, %s, 2" % s(sp)); e("s_add_u32 s56, s56, s55"); e("s_lshl_b32 s56, s56, 11"); e("s_add_u32 s56, s56, s54")
            e("s_lshl_b32 s56, s56, 4"); e("s_add_u32 %s, s56, 0x%x" % (s(58 + q), WS_QKV))
        e("s_waitcnt lgkmcnt(0)")
        OUTR = 140
        n = 0
        for q in range(2):
            for tt in range(4):
                nm = VST + tt * 4; rs = VST + tt * 4 + 1
                P = []
                for hf in range(2):
                    i = 2 * q + hf; A_ = acc(i, tt)
                    for h in range(2):
                        e("v_pk_fma_f32 %s, %s, %s, %s op_sel_hi:[1,0,1]" % (v(A_ + 2 * h, 2), v(CSV + i * 4 + 2 * h, 2), v(nm, 2), v(A_ + 2 * h, 2)))
                    for h in range(2):
                        e("v_pk_mul_f32 %s, %s, %s op_sel:[0,1] op_sel_hi:[1,1]" % (v(A_ + 2 * h, 2), v(A_ + 2 * h, 2), v(nm, 2)))
                    e("v_cvt_pk_bf16_f32 %s, %s, %s" % (v(A_), v(A_), v(A_ + 1)))
                    e("v_cvt_pk_bf16_f32 %s, %s, %s" % (v(A_ + 1), v(A_ + 2), v(A_ + 3)))
                    P.append(A_)
                O4 = OUTR + (n % 4) * 4
                e("v_cndmask_b32 %s, %s, %s, %s" % (v(O4), v(P[0]), v(P[1]), s(S_ODD, 2)))
                e("v_cndmask_b32 %s, %s, %s, %s" % (v(O4 + 1), v(P[0] + 1), v(P[1] + 1), s(S_ODD, 2)))
                e("v_cndmask_b32 %s, %s, %s, %s" % (v(O4 + 2), v(P[1]), v(P[0]), s(S_ODD, 2)))
                e("v_cndmask_b32 %s, %s, %s, %s" % (v(O4 + 3), v(P[1] + 1), v(P[0] + 1), s(S_ODD, 2)))
                self.vm("buffer_store_dwordx4 %s, %s, %s, %s offen offset:%d sc1" % (v(O4, 4), v(t2), s(S_WS, 4), s(58 + q), tt * 256), "qkvst")
                n += 1
        e("s_branch %s" % lab_j)
        self.label(lab_h)
        self.p1_helper()
        self.label(lab_j)
        self.stamp()
        e("s_waitcnt vmcnt(0)")
        e("s_barrier")
        e("s_lshl_b32 s52, %s, 4" % s(S_M1)); e("s_add_u32 s52, s52, %s" % s(S_N1))
        self.flag_set(0, 52, TMP)
        self.vmq = []
        self.stamp()

    def wait_all_p1(self, vt):
        e = self.e
        self.c("wait for all 256 phase-1 flags (wave 0 polls, barrier releases the rest)")
        l = self.newlabel("WA")
        e("s_cmp_lg_u32 %s, 0" % s(S_W)); e("s_cbranch_scc1 %s" % l)
        e("v_lshlrev_b32 %s, 8, %s" % (v(vt), v(V_L)))
        self.flag_poll(vt, vt + 2, nloads=4, stride=64)
        self.label(l)
        e("s_barrier")
    def wait_group(self, phase, vt):
        e = self.e
        l = self.newlabel("WG")
        e("s_cmp_lg_u32 %s, 0" % s(S_W)); e("s_cbranch_scc1 %s" % l)
        e("s_lshl_b32 s52, %s, 10" % s(S_M3)); e("s_add_u32 s52, s52, 0x%x" % (WS_FLAGS + phase * 16384))
        e("v_lshlrev_b32 %s, 6, %s" % (v(vt), v(V_C)))
        e("v_add_u32 %s, s52, %s" % (v(vt), v(vt)))
        self.flag_poll(vt, vt + 2)
        self.label(l)
        e("s_barrier")

    def p2(self):
        e = self.e; o = self.o
        KB, VB, BB, QB, OB = 0, 30720, 62080, 69632, 81920
        T = 200
        t0, t1, t2, t3 = T, T + 1, T + 2, T + 3
        VL16 = 4
        VKA = 5
        VVA = 8
        VMF, VML = 12, 16
        VQ = 20
        OA = 36
        SB = [56, 124]
        NEG = f2u(-1e30)
        self.c("P2 set-up")
        e("v_lshlrev_b32 %s, 4, %s" % (v(VL16), v(V_L)))
        e("s_lshl_b32 s52, %s, 7" % s(S_M3)); e("s_sub_i32 s52, 256, s52")
        e("v_mov_b32 %s, 0xf149" % v(t0 + 4))
        e("v_mov_b32 %s, 0" % v(t0 + 9)); e("v_mov_b32 %s, 0x3f80" % v(t0 + 10)); e("v_mov_b32 %s, 0" % v(t0 + 11))
        e("v_cmp_gt_i32 vcc, s52, v0")
        e("v_cndmask_b32 %s, 0, %s, vcc" % (v(t0 + 8), v(t0 + 4)))
        e("v_lshlrev_b32 %s, 4, v0" % v(t1)); e("v_add_u32 %s, %d, %s" % (v(t1), BB, v(t1)))
        e("ds_write_b128 %s, %s" % (v(t1), v(t0 + 8, 4)))
        e("v_add_u32 %s, 256, v0" % v(t2))
        e("v_cmp_gt_i32 vcc, s52, %s" % v(t2))
        e("v_cndmask_b32 %s, 0, %s, vcc" % (v(t0 + 12), v(t0 + 4)))
        e("v_mov_b32 %s, 0" % v(t0 + 13)); e("v_mov_b32 %s, 0x3f80" % v(t0 + 14)); e("v_mov_b32 %s, 0" % v(t0 + 15))
        e("v_cmp_gt_u32 vcc, 160, v0")
        e("s_and_saveexec_b64 s[54:55], vcc")
        e("ds_write_b128 %s, %s offset:4096" % (v(t1), v(t0 + 12, 4)))
        e("s_mov_b64 exec, s[54:55]")
        e("s_lshr_b32 s53, %s, 1" % s(S_W)); e("s_and_b32 s54, %s, 1" % s(S_W)); e("s_mul_i32 s54, s54, 3")
        e("s_mul_i32 s55, %s, 5" % s(S_J3))
        e("s_lshl_b32 s56, %s, 7" % s(S_M3)); e("s_sub_i32 s56, s56, 256")
        e("s_lshl_b32 s57, s54, 6"); e("s_add_i32 s56, s56, s57")
        for i3 in range(3):
            e("s_add_i32 s57, s56, %d" % (64 * i3)); e("s_cmp_lt_i32 s57, 0")
            e("s_cselect_b32 %s, 0x%x, 0" % (s(64 + i3), BIGOFF))
        e("s_lshl_b32 s56, s56, 4")
        for i in range(5):
            e("s_add_u32 s57, s53, %d" % (2 * i))
            e("s_cmp_ge_u32 s57, 5")
            e("s_cselect_b32 s58, 75, 0"); e("s_add_u32 s58, s58, s57"); e("s_add_u32 s58, s58, s55"); e("s_add_u32 s58, s58, 80")
            e("s_lshl_b32 s58, s58, 15"); e("s_add_u32 s58, s58, 0x%x" % WS_QKV); e("s_add_u32 %s, s58, s56" % s(68 + i))
            e("s_mul_i32 s58, s57, 6144"); e("s_mul_i32 s59, s57, 6272"); e("s_add_u32 s59, s59, %d" % (VB - 5 * 6272))
            e("s_cmp_ge_u32 s57, 5"); e("s_cselect_b32 s58, s59, s58")
            e("s_lshl_b32 s59, s54, 10"); e("s_add_u32 %s, s58, s59" % s(73 + i))
        self.wait_all_p1(T + 20)
        self.stamp()
        for i in range(5):
            for i3 in range(3):
                e("s_add_u32 m0, %s, %d" % (s(73 + i), i3 * 1024))
                e("s_add_u32 %s, %s, %s" % (s(S_SOFF), s(68 + i), s(64 + i3)))
                if i3: e("s_add_u32 %s, %s, %d" % (s(S_SOFF), s(S_SOFF), i3 * 1024))
                e("buffer_load_dwordx4 %s, %s, %s offen sc1 lds" % (v(VL16), s(S_WS, 4), s(S_SOFF)))
        for k in range(3):
            l = self.newlabel("QS")
            e("s_add_u32 s57, %s, %d" % (s(S_W), 4 * k))
            if k == 2: e("s_cmp_ge_u32 s57, 10"); e("s_cbranch_scc1 %s" % l)
            e("s_lshr_b32 s58, s57, 1"); e("s_and_b32 s59, s57, 1")
            e("s_lshl_b32 s60, s58, 11"); e("s_lshl_b32 s61, s59, 10"); e("s_add_u32 s60, s60, s61"); e("s_add_u32 m0, s60, %d" % QB)
            e("s_add_u32 s58, s58, s55"); e("s_lshl_b32 s58, s58, 15"); e("s_lshl_b32 s60, %s, 11" % s(S_M3)); e("s_add_u32 s58, s58, s60")
            e("s_add_u32 s58, s58, s61"); e("s_add_u32 %s, s58, 0x%x" % (s(S_SOFF), WS_QKV))
            e("buffer_load_dwordx4 %s, %s, %s offen sc1 lds" % (v(VL16), s(S_WS, 4), s(S_SOFF)))
            if k == 2: self.label(l)
        self.c("fragment addresses and masks (overlaps the DMA)")
        e("s_lshl_b32 s57, %s, 5" % s(S_W)); e("v_add_u32 %s, s57, %s" % (v(t0), v(V_C))); e("v_lshlrev_b32 %s, 4, %s" % (v(t0), v(t0)))
        e("v_cmp_eq_u32 s[58:59], 3, %s" % v(V_G)); e("v_cmp_eq_u32 s[60:61], 2, %s" % v(V_G))
        e("v_mul_u32_u24 %s, 6144, %s" % (v(t1), v(V_G)))
        e("v_mov_b32 %s, %d" % (v(t2), BB))
        e("v_cndmask_b32 %s, %s, %s, s[58:59]" % (v(VKA), v(t1), v(t2)))
        e("v_add_u32 %s, %d, %s" % (v(t3), 3 * 6144, v(t1)))
        e("v_mov_b32 %s, %d" % (v(t0 + 4), 2 * 6144))
        e("v_cndmask_b32 %s, %s, %s, s[60:61]" % (v(t3), v(t3), v(t0 + 4)))
        e("v_cndmask_b32 %s, %s, %s, s[58:59]" % (v(VKA + 1), v(t3), v(t2)))
        e("v_add_u32 %s, %s, %s" % (v(VKA), v(VKA), v(t0))); e("v_add_u32 %s, %s, %s" % (v(VKA + 1), v(VKA + 1), v(t0)))
        VQA = t0 + 6
        e("v_lshlrev_b32 %s, 11, %s" % (v(t1), v(V_G)))
        e("v_cndmask_b32 %s, %s, 0, s[58:59]" % (v(VQA), v(t1)))
        e("v_add_u32 %s, %d, %s" % (v(t3), 3 * 2048, v(t1))); e("v_mov_b32 %s, %d" % (v(t0 + 4), 2 * 2048))
        e("v_cndmask_b32 %s, %s, %s, s[60:61]" % (v(t3), v(t3), v(t0 + 4)))
        e("v_cndmask_b32 %s, %s, 0, s[58:59]" % (v(VQA + 1), v(t3)))
        e("v_add_u32 %s, %d, %s" % (v(t3), QB, v(t0)))
        for h in range(2): e("v_add_u32 %s, %s, %s" % (v(VQA + h), v(VQA + h), v(t3)))
        e("v_lshrrev_b32 %s, 2, %s" % (v(t0), v(V_C))); e("v_lshl_add_u32 %s, %s, 2, %s" % (v(t0), v(V_G), v(t0)))
        e("v_add_u32 %s, s57, %s" % (v(t0), v(t0))); e("v_lshlrev_b32 %s, 4, %s" % (v(t0), v(t0)))
        e("v_and_b32 %s, 3, %s" % (v(t1), v(V_L)))
        for h in range(2):
            e("v_add_u32 %s, %d, %s" % (v(t2), 5 * h, v(t1)))
            e("v_lshrrev_b32 %s, 1, %s" % (v(t3), v(t2))); e("v_mul_u32_u24 %s, 6272, %s" % (v(t3), v(t3)))
            e("v_and_b32 %s, 1, %s" % (v(t2), v(t2))); e("v_lshl_add_u32 %s, %s, 3, %s" % (v(t3), v(t2), v(t3)))
            e("v_add3_u32 %s, %s, %s, %s" % (v(VVA + 2 * h), v(t3), v(t0), "s60") if False else "v_add_u32 %s, %s, %s" % (v(VVA + 2 * h), v(t3), v(t0)))
            e("v_add_u32 %s, %d, %s" % (v(VVA + 2 * h), VB, v(VVA + 2 * h)))
            X = 5 * h + 4
            e("v_and_b32 %s, 1, %s" % (v(t2), v(t1))); e("v_cmp_eq_u32 vcc, 1, %s" % v(t2))
            e("v_mov_b32 %s, %d" % (v(t3), VB + (X >> 1) * 6272 + (X & 1) * 8)); e("v_mov_b32 %s, %d" % (v(t0 + 4), BB + 8))
            e("v_cndmask_b32 %s, %s, %s, vcc" % (v(t3), v(t3), v(t0 + 4)))
            e("v_add_u32 %s, %s, %s" % (v(VVA + 2 * h + 1), v(t3), v(t0)))
        e("v_lshlrev_b32 %s, 2, %s" % (v(t0), v(V_G))); e("v_mov_b32 %s, 0x%x" % (v(t1), NEG))
        for i in range(4):
            e("v_add_u32 %s, %d, %s" % (v(t2), i, v(t0)))
            e("v_cmp_gt_u32 vcc, %s, %s" % (v(t2), v(V_C)))
            e("v_cndmask_b32 %s, %s, 0, vcc" % (v(VMF + i), v(t1)))
            e("v_cndmask_b32 %s, 0, %s, vcc" % (v(VML + i), v(t1)))
        e("s_waitcnt vmcnt(0) lgkmcnt(0)")
        e("s_barrier")
        self.stamp()
        self.c("fragment loads")
        KF = [0, 72]; VF = [144, 0]
        def k_reads(h): return ["ds_read_b128 %s, %s offset:%d" % (a(KF[h] + B * 4, 4), v(VKA + h), B * 256) for B in range(18)]
        def v_reads(h):
            r = []
            for p in range(9):
                for dt in range(2):
                    d = VF[h] + (p * 2 + dt) * 4
                    r.append("ds_read_b64_tr_b16 %s, %s offset:%d" % (a(d, 2), v(VVA + 2 * h + dt), p * 512))
                    r.append("ds_read_b64_tr_b16 %s, %s offset:%d" % (a(d + 2, 2), v(VVA + 2 * h + dt), p * 512 + 256))
            return r
        for h in range(2):
            for qs in range(2):
                e("ds_read_b128 %s, %s offset:%d" % (v(VQ + (h * 2 + qs) * 4, 4), v(VQA + h), qs * 256))
        for x in k_reads(0)[:11]: e(x)
        e("s_waitcnt lgkmcnt(11)")
        e("v_mov_b32 %s, 0x3f80" % v(t1))
        for h in range(2):
            for qs in range(2):
                q = VQ + (h * 2 + qs) * 4
                z = (2, 3) if h == 0 else (0, 1)
                for i in z: e("v_cndmask_b32 %s, %s, 0, s[60:61]" % (v(q + i), v(q + i)))
                e("v_cndmask_b32 %s, %s, %s, s[58:59]" % (v(q), v(q), v(t1)))
                for i in range(1, 4): e("v_cndmask_b32 %s, %s, 0, s[58:59]" % (v(q + i), v(q + i)))
        for x in k_reads(0)[11:]: e(x)
        tasks = [(0, 0), (0, 1), (1, 0), (1, 1)]
        def A(ti):
            h, qs = tasks[ti]; S = SB[ti % 2]; r = []
            for b in range(17):
                C = v(VMF, 4) if b == 0 else (v(VML, 4) if b == 16 else "0")
                r.append("%s %s, %s, %s, %s" % (M, v(S + b * 4, 4), a(KF[h] + (qs + b) * 4, 4), v(VQ + (h * 2 + qs) * 4, 4), C))
            return r
        MX = T + 8
        def BC(ti):
            h, qs = tasks[ti]; S = SB[ti % 2]; r = []
            vals = [S + i for i in range(68)]
            r.append("v_max3_f32 %s, %s, %s, %s" % (v(MX), v(vals[0]), v(vals[1]), v(vals[2])))
            r.append("v_max3_f32 %s, %s, %s, %s" % (v(MX + 1), v(vals[3]), v(vals[4]), v(vals[5])))
            k = 6; alt = 0
            while k < 68:
                r.append("v_max3_f32 %s, %s, %s, %s" % (v(MX + alt), v(MX + alt), v(vals[k]), v(vals[k + 1]))); k += 2; alt ^= 1
            r.append("v_max_f32 %s, %s, %s" % (v(MX), v(MX), v(MX + 1)))
            r += ["v_mov_b32 %s, %s" % (v(MX + 1), v(MX)), "v_permlane16_swap_b32 %s, %s" % (v(MX), v(MX + 1)), "v_max_f32 %s, %s, %s" % (v(MX), v(MX), v(MX + 1)),
                  "v_mov_b32 %s, %s" % (v(MX + 1), v(MX)), "v_permlane32_swap_b32 %s, %s" % (v(MX), v(MX + 1)), "v_max_f32 %s, %s, %s" % (v(MX + 2), v(MX), v(MX + 1))]
            for b in range(17):
                q = S + b * 4
                for hh in range(2):
                    r.append("v_pk_add_f32 %s, %s, %s op_sel_hi:[1,0] neg_lo:[0,1] neg_hi:[0,1]" % (v(q + 2 * hh, 2), v(q + 2 * hh, 2), v(MX + 2, 2)))
                for i in range(4): r.append("v_exp_f32 %s, %s" % (v(q + i), v(q + i)))
                B = qs + b
                if B % 2 == 0:
                    r.append("v_cvt_pk_bf16_f32 %s, %s, %s" % (v(q), v(q), v(q + 1)))
                    r.append("v_cvt_pk_bf16_f32 %s, %s, %s" % (v(q + 1), v(q + 2), v(q + 3)))
                    if B == 16 and qs == 0:
                        r.append("v_mov_b32 %s, 0" % v(q + 2)); r.append("v_mov_b32 %s, 0" % v(q + 3))
                else:
                    if b == 0:
                        r.append("v_cvt_pk_bf16_f32 %s, %s, %s" % (v(q + 3), v(q + 2), v(q + 3)))
                        r.append("v_cvt_pk_bf16_f32 %s, %s, %s" % (v(q + 2), v(q), v(q + 1)))
                        r.append("v_mov_b32 %s, 0" % v(q)); r.append("v_mov_b32 %s, 0" % v(q + 1))
                    else:
                        r.append("v_cvt_pk_bf16_f32 %s, %s, %s" % (v(q - 2), v(q), v(q + 1)))
                        r.append("v_cvt_pk_bf16_f32 %s, %s, %s" % (v(q - 1), v(q + 2), v(q + 3)))
            return r
        def pfrag(ti, p):
            h, qs = tasks[ti]; S = SB[ti % 2]
            if qs == 0: return S + (2 * p) * 4
            return S + (0 if p == 0 else (2 * p - 1)) * 4
        def D(ti):
            h, qs = tasks[ti]; r = []
            for p in range(9):
                for dt in range(2):
                    d = OA + (ti % 2) * 8 + dt * 4
                    r.append("%s %s, %s, %s, %s" % (M, v(d, 4), a(VF[h] + (p * 2 + dt) * 4, 4), v(pfrag(ti, p), 4), v(d, 4) if p else "0"))
            return r
        VOW = T + 12
        def E(ti):
            h, qs = tasks[ti]; d = OA + (ti % 2) * 8; L = T + 14; r = []
            r += ["v_mov_b32 %s, %s" % (v(L), v(d + 4)), "v_mov_b32 %s, %s" % (v(L + 1), v(d + 4)),
                  "v_permlane16_swap_b32 %s, %s" % (v(L), v(L + 1)), "v_rcp_f32 %s, %s" % (v(L + 2), v(L + 1))]
            for hh in range(2):
                r.append("v_pk_mul_f32 %s, %s, %s op_sel_hi:[1,0]" % (v(d + 2 * hh, 2), v(d + 2 * hh, 2), v(L + 2, 2)))
                r.append("v_pk_mul_f32 %s, %s, %s op_sel_hi:[1,0]" % (v(d + 4 + 2 * hh, 2), v(d + 4 + 2 * hh, 2), v(L + 2, 2)))
            r += ["v_cvt_pk_bf16_f32 %s, %s, %s" % (v(d), v(d), v(d + 1)), "v_cvt_pk_bf16_f32 %s, %s, %s" % (v(d + 1), v(d + 2), v(d + 3)),
                  "v_cvt_pk_bf16_f32 %s, %s, %s" % (v(d + 4), v(d + 4), v(d + 5)), "v_cvt_pk_bf16_f32 %s, %s, %s" % (v(d + 5), v(d + 6), v(d + 7)),
                  "ds_write_b64 %s, %s offset:%d" % (v(VOW), v(d, 2), qs * 1280 + h * 40),
                  "s_mov_b64 exec, 0xffff",
                  "ds_write_b64 %s, %s offset:%d" % (v(VOW), v(d + 4, 2), qs * 1280 + h * 40 + 32),
                  "s_mov_b64 exec, -1"]
            return r
        e("s_mul_i32 s57, %s, 2560" % s(S_W)); e("s_add_u32 s57, s57, %d" % OB)
        e("v_mul_u32_u24 %s, 80, %s" % (v(VOW), v(V_C))); e("v_lshl_add_u32 %s, %s, 3, %s" % (v(VOW), v(V_G), v(VOW))); e("v_add_u32 %s, s57, %s" % (v(VOW), v(VOW)))
        def merge(main, side):
            out = []; n = len(main); m = len(side); k = 0
            for i, x in enumerate(main):
                out.append(x)
                while k < m and (k + 1) * n <= (i + 1) * (m + 0) + 0 and False: pass
                want = ((i + 1) * m) // n
                while k < want: out.append(side[k]); k += 1
            out += side[k:]
            return out
        W0 = ["s_waitcnt lgkmcnt(0)"]
        e("s_waitcnt lgkmcnt(0)")
        for x in A(0): e(x)
        for x in merge(BC(0), A(1) + v_reads(0)[:14] + W0 + v_reads(0)[14:28] + W0 + v_reads(0)[28:] + W0 + k_reads(1)[:14] + W0 + k_reads(1)[14:] + W0): e(x)
        for x in merge(BC(1), D(0) + A(2) + v_reads(1)[:14] + W0 + v_reads(1)[14:28] + W0 + v_reads(1)[28:] + W0): e(x)
        for x in E(0): e(x)
        for x in merge(BC(2), D(1) + A(3)): e(x)
        for x in E(1): e(x)
        for x in merge(BC(3), D(2)): e(x)
        for x in E(2): e(x)
        for x in D(3): e(x)
        for x in E(3): e(x)
        self.stamp()
        self.c("o: staging -> fragment-major global")
        e("v_mul_u32_u24 %s, 80, %s" % (v(t0), v(V_C))); e("v_add_u32 %s, s57, %s" % (v(t0), v(t0)))
        e("v_lshl_add_u32 %s, %s, 4, %s" % (v(t1), v(V_G), v(t0)))
        e("v_mul_u32_u24 %s, 1280, %s" % (v(t2), v(V_G))); e("v_add_u32 %s, %s, %s" % (v(t2), v(t2), v(t0)))
        e("s_waitcnt lgkmcnt(0)")
        R = 56
        e("ds_read_b128 %s, %s" % (v(R, 4), v(t1)))
        e("ds_read_b128 %s, %s offset:1280" % (v(R + 4, 4), v(t1)))
        e("v_and_b32 %s, 0x7ff, %s" % (v(t2), v(t2)) if False else "v_min_u32 %s, %d, %s" % (v(t2), OB + 4 * 2560 - 80, v(t2)))
        e("ds_read_b128 %s, %s offset:64" % (v(R + 8, 4), v(t2)))
        e("s_lshl_b32 s58, %s, 3" % s(S_M3)); e("s_lshl_b32 s59, %s, 1" % s(S_W)); e("s_add_u32 s58, s58, s59"); e("s_mul_i32 s58, s58, 20480")
        e("s_add_u32 s58, s58, 0x%x" % WS_O)
        e("v_add_u32 %s, s55, %s" % (v(t0), v(V_G)))
        e("v_lshrrev_b32 %s, 2, %s" % (v(t1), v(t0))); e("v_lshlrev_b32 %s, 10, %s" % (v(t1), v(t1)))
        e("v_and_b32 %s, 3, %s" % (v(t0), v(t0))); e("v_lshl_add_u32 %s, %s, 8, %s" % (v(t1), v(t0), v(t1)))
        e("v_lshl_add_u32 %s, %s, 4, %s" % (v(t1), v(V_C), v(t1)))
        e("s_add_u32 s59, s55, 4"); e("s_lshr_b32 s60, s59, 2"); e("s_lshl_b32 s60, s60, 10"); e("s_and_b32 s59, s59, 3"); e("s_lshl_b32 s59, s59, 8"); e("s_add_u32 s60, s60, s59")
        e("v_mul_u32_u24 %s, 20480, %s" % (v(t3), v(V_G))); e("v_lshl_add_u32 %s, %s, 4, %s" % (v(t3), v(V_C), v(t3))); e("v_add_u32 %s, s60, %s" % (v(t3), v(t3)))
        e("s_waitcnt lgkmcnt(0)")
        e("buffer_store_dwordx4 %s, %s, %s, s58 offen sc1" % (v(R, 4), v(t1), s(S_WS, 4)))
        e("s_add_u32 s59, s58, 20480")
        e("buffer_store_dwordx4 %s, %s, %s, s59 offen sc1" % (v(R + 4, 4), v(t1), s(S_WS, 4)))
        e("s_mov_b64 exec, 0xffffffff")
        e("buffer_store_dwordx4 %s, %s, %s, s58 offen sc1" % (v(R + 8, 4), v(t3), s(S_WS, 4)))
        e("s_mov_b64 exec, -1")
        e("s_barrier")
        self.vmq = ["ost"] * 3

    def wdma(self, sbase, nblocks, vl16, tag):
        e = self.e
        n = (nblocks + 2) // 3
        l0 = self.newlabel("W0"); lj = self.newlabel("WJ")
        e("s_cmp_eq_u32 %s, 0" % s(S_W)); e("s_cbranch_scc1 %s" % l0)
        e("s_sub_u32 s48, %s, 1" % s(S_W)); e("s_lshl_b32 s48, s48, 10")
        e("s_add_u32 s49, %s, s48" % s(sbase))
        for k in range(n):
            e("s_add_u32 m0, s48, 0x%x" % (k * 3072))
            e("s_add_u32 %s, s49, 0x%x" % (s(S_SOFF), k * 3072))
            self.vm("buffer_load_dwordx4 %s, %s, %s offen sc1 lds" % (v(vl16), s(S_WS, 4), s(S_SOFF)), tag)
        e("s_waitcnt vmcnt(%d)" % n)
        e("s_branch %s" % lj)
        self.label(l0)
        e("s_waitcnt vmcnt(0)")
        self.label(lj)

    def p3(self):
        e = self.e; o = self.o
        VL16 = 4; T = 200; t0, t1, t2, t3 = T, T + 1, T + 2, T + 3
        XR = 8
        ACC = 32
        HR = 240
        S_TI, S_NQ = 86, 87
        self.c("P3")
        e("s_lshl_b32 s47, %s, 10" % s(S_W))
        e("s_lshr_b32 %s, %s, 1" % (s(S_NQ), s(S_J3)))
        e("s_lshl_b32 %s, %s, 3" % (s(S_TI), s(S_M3))); e("s_and_b32 s52, %s, 1" % s(S_J3)); e("s_lshl_b32 s52, s52, 2")
        e("s_add_u32 %s, %s, s52" % (s(S_TI), s(S_TI))); e("s_add_u32 %s, %s, %s" % (s(S_TI), s(S_TI), s(S_W)))
        e("s_mul_i32 s53, %s, 102400" % s(S_NQ)); e("s_add_u32 s53, s53, 0x%x" % WS_PW3)
        e("s_lshl_b32 s54, %s, 4" % s(S_TI)); e("v_add_u32 %s, s54, %s" % (v(t0), v(V_C))); e("v_mul_u32_u24 %s, 1280, %s" % (v(t0), v(t0)))
        e("s_mul_i32 s54, %s, 160" % s(S_NQ))
        e("v_lshl_add_u32 %s, %s, 4, %s" % (v(t1), v(V_G), v(t0))); e("v_add_u32 %s, s54, %s" % (v(20), v(t1)))
        e("v_lshl_add_u32 %s, %s, 3, %s" % (v(t1), v(V_G), v(t0))); e("v_add_u32 %s, s54, %s" % (v(21), v(t1)))
        self.vm("buffer_load_dwordx4 %s, v20, %s, 0 offen" % (v(XR, 4), s(S_X, 4)), "xr")
        self.vm("buffer_load_dwordx4 %s, v20, %s, 0 offen offset:64" % (v(XR + 4, 4), s(S_X, 4)), "xr")
        self.vm("buffer_load_dwordx2 %s, v21, %s, 0 offen offset:128" % (v(XR + 8, 2), s(S_X, 4)), "xr")
        self.wdma(53, 100, VL16, "w3")
        e("s_barrier")
        e("s_lshl_b32 s52, %s, 4" % s(S_M3)); e("s_add_u32 s52, s52, %s" % s(S_J3))
        self.flag_set(1, 52, T + 8)
        self.stamp()
        self.wait_group(1, T + 8)
        self.stamp()
        e("s_mul_i32 s54, %s, 20480" % s(S_TI)); e("s_add_u32 s54, s54, 0x%x" % WS_O)
        for st in range(20):
            if st and st % 4 == 0: e("s_add_u32 s54, s54, 4096")
            self.vm("buffer_load_dwordx4 %s, %s, %s, s54 offen offset:%d sc1" % (a(st * 4, 4), v(VL16), s(S_WS, 4), (st % 4) * 1024), ("of", st))
        for i in range(20): e("v_mov_b32 %s, 0" % v(ACC + i))
        self.gemm_small(20, VL16, ACC, lambda st: st * 4, lambda st: ("of", st), wait_w="w3", RING=80, T=T)
        self.stamp()
        e("s_barrier")
        self.c("P3 epilogue")
        SUM, SQ = T + 4, T + 6
        e("v_mov_b32 %s, 0" % v(SUM)); e("v_mov_b32 %s, 0" % v(SUM + 1)); e("v_mov_b32 %s, 0" % v(SQ)); e("v_mov_b32 %s, 0" % v(SQ + 1))
        self.vm_wait("xr")
        for t in range(5):
            A_ = ACC + t * 4
            xs = (XR + (t >> 1) * 4 + (t & 1) * 2) if t < 4 else XR + 8
            for hh in range(2):
                e("v_lshlrev_b32 %s, 16, %s" % (v(t0), v(xs + hh))); e("v_and_b32 %s, 0xffff0000, %s" % (v(t1), v(xs + hh)))
                e("v_pk_add_f32 %s, %s, %s" % (v(A_ + 2 * hh, 2), v(A_ + 2 * hh, 2), v(t0, 2)))
                e("v_pk_add_f32 %s, %s, %s" % (v(SUM, 2), v(SUM, 2), v(A_ + 2 * hh, 2)))
                e("v_pk_fma_f32 %s, %s, %s, %s" % (v(SQ, 2), v(A_ + 2 * hh, 2), v(A_ + 2 * hh, 2), v(SQ, 2)))
                hd = (HR + (t >> 1) * 4 + (t & 1) * 2 + hh) if t < 4 else HR + 8 + hh
                e("v_cvt_pk_bf16_f32 %s, %s, %s" % (v(hd), v(A_ + 2 * hh), v(A_ + 2 * hh + 1)))
        e("v_add_f32 %s, %s, %s" % (v(SUM), v(SUM), v(SUM + 1))); e("v_add_f32 %s, %s, %s" % (v(SUM + 1), v(SQ), v(SQ + 1)))
        e("s_mul_i32 s54, %s, 20480" % s(S_TI)); e("s_add_u32 s54, s54, 0x%x" % WS_H)
        e("s_mul_i32 s55, %s, 10" % s(S_NQ))
        def uaddr(dst, ureg):
            e("v_lshrrev_b32 %s, 2, %s" % (v(t2), v(ureg))); e("v_lshlrev_b32 %s, 10, %s" % (v(t2), v(t2)))
            e("v_and_b32 %s, 3, %s" % (v(t3), v(ureg))); e("v_lshl_add_u32 %s, %s, 8, %s" % (v(t2), v(t3), v(t2)))
            e("v_lshl_add_u32 %s, %s, 4, %s" % (v(dst), v(V_C), v(t2)))
        for p in range(2):
            e("v_add_u32 %s, s55, %s" % (v(t0), v(V_G)))
            if p: e("v_add_u32 %s, 4, %s" % (v(t0), v(t0)))
            uaddr(22 + p, t0)
        e("v_lshrrev_b32 %s, 1, %s" % (v(t0), v(V_G))); e("v_add_u32 %s, s55, %s" % (v(t0), v(t0))); e("v_add_u32 %s, 8, %s" % (v(t0), v(t0)))
        uaddr(24, t0)
        e("v_and_b32 %s, 1, %s" % (v(t0), v(V_G))); e("v_lshl_add_u32 %s, %s, 3, %s" % (v(24), v(t0), v(24)))
        self.vm("buffer_store_dwordx4 %s, v22, %s, s54 offen sc1" % (v(HR, 4), s(S_WS, 4)), "hst")
        self.vm("buffer_store_dwordx4 %s, v23, %s, s54 offen sc1" % (v(HR + 4, 4), s(S_WS, 4)), "hst")
        self.vm("buffer_store_dwordx2 %s, v24, %s, s54 offen sc1" % (v(HR + 8, 2), s(S_WS, 4)), "hst")
        self.reduce4(SUM, t0); self.reduce4(SUM + 1, t0)
        e("s_lshl_b32 s54, %s, 4" % s(S_TI)); e("v_add_u32 %s, s54, %s" % (v(t0), v(V_C))); e("v_lshlrev_b32 %s, 6, %s" % (v(t0), v(t0)))
        e("s_lshl_b32 s54, %s, 3" % s(S_NQ)); e("s_add_u32 s54, s54, 0x%x" % WS_HS)
        e("s_mov_b64 exec, 0xffff")
        self.vm("buffer_store_dwordx2 %s, %s, %s, s54 offen sc1" % (v(SUM, 2), v(t0), s(S_WS, 4)), "hst")
        e("s_mov_b64 exec, -1")

    def gemm_small(self, NS, VL16, ACC, bfrag, btag, wait_w, RING, T, hooks=None, slot=lambda st: st):
        e = self.e
        hooks = hooks or {}
        VA = T + 16
        e("v_add_u32 %s, 0x10000, %s" % (v(VA + 1), v(VL16))); e("v_add_u32 %s, 0x20000, %s" % (v(VA + 2), v(VL16)))
        e("v_mov_b32 %s, %s" % (v(VA), v(VL16)))
        def rd(st):
            r = []
            for t in range(5):
                off = (slot(st) * 5 + t) * 1024
                r.append("ds_read_b128 %s, %s offset:%d" % (a(RING + ((st % 3) * 5 + t) * 4, 4), v(VA + off // 65536), off % 65536))
            return r
        if wait_w:
            self.vm_wait(wait_w)
            e("s_barrier")
        for x in rd(0) + rd(1): e(x)
        for st in range(NS):
            if st in hooks: hooks[st]()
            self.vm_wait(btag(st), " lgkmcnt(%d)" % (5 if st + 1 < NS else 0))
            nx = rd(st + 2) if st + 2 < NS else []
            for t in range(5):
                e("%s %s, %s, %s, %s" % (M, v(ACC + t * 4, 4), a(RING + ((st % 3) * 5 + t) * 4, 4), a(bfrag(st), 4), v(ACC + t * 4, 4)))
                if t < len(nx): e(nx[t])

    def p4(self):
        e = self.e; o = self.o
        VL16 = 4; T = 200; t0, t1, t2, t3 = T, T + 1, T + 2, T + 3
        ACC = 32
        CSA = 80
        CSV = 88
        VONE = 112
        VST = 116
        CS_OFF = 122880
        RING = 160
        self.c("P4")
        e("s_mul_i32 s53, %s, 122880" % s(S_J3)); e("s_add_u32 s53, s53, 0x%x" % WS_PW4)
        self.wdma(53, 120, VL16, "w4")
        e("s_barrier")
        e("s_lshl_b32 s52, %s, 4" % s(S_M3)); e("s_add_u32 s52, s52, %s" % s(S_J3))
        self.flag_set(2, 52, T + 8)
        self.stamp()
        for i in range(4): e("v_mov_b32 %s, 0x3f803f80" % v(VONE + i))
        for i in range(8): e("v_mov_b32 %s, 0" % v(CSA + i))
        for i in range(48): e("v_mov_b32 %s, 0" % v(ACC + i))
        e("s_add_u32 s54, %s, 4" % s(S_W)); e("s_cmp_ge_u32 s54, 6"); e("s_cselect_b32 s55, 6, 0"); e("s_sub_u32 s54, s54, s55")
        e("s_lshl_b32 s55, %s, 10" % s(S_W)); e("v_add_u32 %s, s55, %s" % (v(t0), v(VL16)))
        e("s_lshl_b32 s55, s54, 10"); e("v_add_u32 %s, s55, %s" % (v(t1), v(VL16)))
        e("v_add_u32 %s, 0x10000, %s" % (v(t2), v(t0))); e("v_add_u32 %s, 0x10000, %s" % (v(t3), v(t1)))
        self.vm_wait("w4")
        e("s_barrier")
        def csrd(st):
            off = st * 6144; r = []
            for q in range(2):
                base = (t0 + q) if off < 65536 else (t2 + q)
                oo = off % 65536
                r.append("ds_read_b128 %s, %s offset:%d" % (a(RING + ((st % 4) * 2 + q) * 4, 4), v(base), oo))
            return r
        for st in range(3):
            for x in csrd(st): e(x)
        for st in range(20):
            nx = csrd(st + 3) if st + 3 < 20 else []
            for x in nx: e(x)
            e("s_waitcnt lgkmcnt(%d)" % (2 * min(3, 19 - st)))
            for q in range(2):
                e("%s %s, %s, %s, %s" % (M, v(CSA + q * 4, 4), a(RING + ((st % 4) * 2 + q) * 4, 4), v(VONE, 4), v(CSA + q * 4, 4)))
        e("v_lshlrev_b32 %s, 4, %s" % (v(t2), v(V_G)))
        e("s_lshl_b32 s55, %s, 6" % s(S_W)); e("s_add_u32 s55, s55, %d" % CS_OFF); e("v_add_u32 %s, s55, %s" % (v(t0), v(t2)))
        e("s_lshl_b32 s55, s54, 6"); e("s_add_u32 s55, s55, %d" % CS_OFF); e("v_add_u32 %s, s55, %s" % (v(t1), v(t2)))
        e("v_cmp_eq_u32 vcc, 0, %s" % v(V_C))
        e("s_and_saveexec_b64 s[56:57], vcc")
        e("ds_write_b128 %s, %s" % (v(t0), v(CSA, 4)))
        e("ds_write_b128 %s, %s" % (v(t1), v(CSA + 4, 4)))
        e("s_mov_b64 exec, s[56:57]")
        e("s_waitcnt lgkmcnt(0)")
        self.wait_group(2, T + 8)
        self.stamp()
        e("v_add_u32 %s, %d, %s" % (v(t2), CS_OFF, v(t2)))
        for t in range(6): e("ds_read_b128 %s, %s offset:%d" % (v(CSV + t * 4, 4), v(t2), t * 64))
        e("s_lshl_b32 s54, %s, 3" % s(S_M3)); e("s_lshl_b32 s55, %s, 1" % s(S_W)); e("s_add_u32 s54, s54, s55")
        e("s_mov_b32 s88, s54")
        e("s_mul_i32 s55, s54, 20480"); e("s_add_u32 s55, s55, 0x%x" % WS_H); e("s_add_u32 s56, s55, 20480")
        for st in range(20):
            if st and st % 4 == 0: e("s_add_u32 s55, s55, 4096"); e("s_add_u32 s56, s56, 4096")
            for tt in range(2):
                self.vm("buffer_load_dwordx4 %s, %s, %s, %s offen offset:%d sc1" % (a((st * 2 + tt) * 4, 4), v(VL16), s(S_WS, 4), s(55 + tt), (st % 4) * 1024), ("hf", st))
        e("s_lshl_b32 s55, s54, 4"); e("v_add_u32 %s, s55, %s" % (v(t0), v(V_C))); e("v_lshlrev_b32 %s, 6, %s" % (v(t0), v(t0)))
        e("v_lshl_add_u32 %s, %s, 4, %s" % (v(t0), v(V_G), v(t0))); e("v_add_u32 %s, 0x%x, %s" % (v(t0), WS_HS, v(t0)))
        for tt in range(2):
            self.vm("buffer_load_dwordx4 %s, %s, %s, 0 offen offset:%d sc1" % (v(VST + tt * 4, 4), v(t0), s(S_WS, 4), tt * 1024), "hs")
        VA = T + 16
        e("v_mov_b32 %s, %s" % (v(VA), v(VL16))); e("v_add_u32 %s, 0x10000, %s" % (v(VA + 1), v(VL16)))
        def rd(st):
            r = []
            for t in range(6):
                off = (st * 6 + t) * 1024
                r.append("ds_read_b128 %s, %s offset:%d" % (a(RING + ((st % 2) * 6 + t) * 4, 4), v(VA + off // 65536), off % 65536))
            return r
        for x in rd(0): e(x)
        for st in range(20):
            self.vm_wait(("hf", st), " lgkmcnt(0)")
            nx = rd(st + 1) if st + 1 < 20 else []
            k = 0
            for t in range(6):
                for tt in range(2):
                    d = ACC + (t * 2 + tt) * 4
                    e("%s %s, %s, %s, %s" % (M, v(d, 4), a(RING + ((st % 2) * 6 + t) * 4, 4), a((st * 2 + tt) * 4, 4), v(d, 4)))
                    if tt == 0 and k < len(nx): e(nx[k]); k += 1
        self.stamp()
        e("s_barrier")
        self.c("P4 epilogue")
        self.vm_wait("hs")
        NM = [T + 4, T + 6]
        for tt in range(2):
            q = VST + tt * 4
            e("v_add_f32 %s, %s, %s" % (v(q), v(q), v(q + 2))); e("v_add_f32 %s, %s, %s" % (v(q + 1), v(q + 1), v(q + 3)))
            self.reduce4(q, t0); self.reduce4(q + 1, t0)
            e("v_mul_f32 %s, 0x%x, %s" % (v(NM[tt]), f2u(-1.0 / 640), v(q)))
            e("v_mul_f32 %s, 0x%x, %s" % (v(q + 1), f2u(1.0 / 640), v(q + 1)))
            e("v_fma_f32 %s, -%s, %s, %s" % (v(q + 1), v(NM[tt]), v(NM[tt]), v(q + 1)))
            e("v_max_f32 %s, 0, %s" % (v(q + 1), v(q + 1))); e("v_add_f32 %s, 0x%x, %s" % (v(q + 1), f2u(1e-5), v(q + 1)))
            e("v_rsq_f32 %s, %s" % (v(NM[tt] + 1), v(q + 1)))
        e("s_mul_i32 s54, s88, 49152"); e("s_mul_i32 s55, %s, 3072" % s(S_J3)); e("s_add_u32 s54, s54, s55"); e("s_add_u32 s54, s54, 0x%x" % WS_H1)
        e("s_add_u32 s55, s54, 49152")
        e("s_mov_b32 s56, 0x%x" % f2u(-math.log2(math.e))); e("s_mov_b32 s57, s56")
        E_ = T + 8
        n = 0
        for tt in range(2):
            for p in range(3):
                O4 = 124 + (n % 4) * 4
                for hf in range(2):
                    t = 2 * p + hf; A_ = ACC + (t * 2 + tt) * 4
                    for hh in range(2):
                        z = A_ + 2 * hh
                        e("v_pk_fma_f32 %s, %s, %s, %s op_sel_hi:[1,0,1]" % (v(z, 2), v(CSV + t * 4 + 2 * hh, 2), v(NM[tt], 2), v(z, 2)))
                        e("v_pk_mul_f32 %s, %s, %s op_sel:[0,1] op_sel_hi:[1,1]" % (v(z, 2), v(z, 2), v(NM[tt], 2)))
                        e("v_pk_mul_f32 %s, %s, s[56:57]" % (v(E_, 2), v(z, 2)))
                        e("v_exp_f32 %s, %s" % (v(E_), v(E_))); e("v_exp_f32 %s, %s" % (v(E_ + 1), v(E_ + 1)))
                        e("v_pk_add_f32 %s, %s, 1.0 op_sel_hi:[1,0]" % (v(E_, 2), v(E_, 2)))
                        e("v_rcp_f32 %s, %s" % (v(E_), v(E_))); e("v_rcp_f32 %s, %s" % (v(E_ + 1), v(E_ + 1)))
                        e("v_pk_mul_f32 %s, %s, %s" % (v(z, 2), v(z, 2), v(E_, 2)))
                        e("v_cvt_pk_bf16_f32 %s, %s, %s" % (v(O4 + hf * 2 + hh), v(z), v(z + 1)))
                self.vm("buffer_store_dwordx4 %s, %s, %s, %s offen offset:%d sc1" % (v(O4, 4), v(VL16), s(S_WS, 4), s(54 + tt), p * 1024), "h1st")
                n += 1

    def p5(self):
        e = self.e; o = self.o
        VL16 = 4; T = 200; t0, t1, t2, t3 = T, T + 1, T + 2, T + 3
        ACC = 32; HR = 240; S_TI, S_NQ = 86, 87
        NR = 30
        self.c("P5")
        e("s_mul_i32 s53, %s, 245760" % s(S_NQ)); e("s_add_u32 s53, s53, 0x%x" % WS_PW5)
        self.wdma(53, 150, VL16, "w5")
        e("s_barrier")
        e("s_lshl_b32 s52, %s, 4" % s(S_M3)); e("s_add_u32 s52, s52, %s" % s(S_J3))
        self.flag_set(3, 52, T + 8)
        self.stamp()
        for i in range(20): e("v_mov_b32 %s, 0" % v(ACC + i))
        self.wait_group(3, T + 8)
        self.stamp()
        e("s_lshl_b32 s47, %s, 10" % s(S_W)); e("s_add_u32 s53, s53, s47")
        e("s_mul_i32 s54, %s, 49152" % s(S_TI)); e("s_add_u32 s54, s54, 0x%x" % WS_H1)
        def frag(st):
            if st and st % 4 == 0: e("s_add_u32 s54, s54, 4096")
            self.vm("buffer_load_dwordx4 %s, %s, %s, s54 offen offset:%d sc1" % (a(st * 4, 4), v(VL16), s(S_WS, 4), (st % 4) * 1024), ("f1", st))
        for st in range(30): frag(st)
        def batch(q):
            def fn():
                e("s_barrier")
                for k in range(8):
                    lab = None
                    if k == 7:
                        lab = self.newlabel("B5"); e("s_cmp_ge_u32 %s, 2" % s(S_W)); e("s_cbranch_scc1 %s" % lab)
                    e("s_add_u32 m0, s47, 0x%x" % (q * 30720 + k * 4096))
                    e("s_add_u32 %s, s53, 0x%x" % (s(S_SOFF), (150 + 30 * q) * 1024 + k * 4096))
                    if lab:
                        e("buffer_load_dwordx4 %s, %s, %s offen sc1 lds" % (v(VL16), s(S_WS, 4), s(S_SOFF))); self.label(lab)
                    else:
                        self.vm("buffer_load_dwordx4 %s, %s, %s offen sc1 lds" % (v(VL16), s(S_WS, 4), s(S_SOFF)), ("b5", q))
                for st in range(30 + 6 * q, 36 + 6 * q): frag(st)
            return fn
        def landed(q):
            def fn():
                self.vm_wait(("f1", 30 + 6 * q))
                e("s_barrier")
            return fn
        hooks = {8: batch(0), 14: batch(1), 20: batch(2), 28: landed(0), 34: landed(1), 40: landed(2)}
        self.gemm_small(48, VL16, ACC, lambda st: st * 4, lambda st: ("f1", st), wait_w="w5", RING=192, T=T, hooks=hooks, slot=lambda st: st if st < 30 else st - 30)
        self.stamp()
        self.c("P5 epilogue")
        for t in range(5):
            A_ = ACC + t * 4
            for hh in range(2):
                hd = (HR + (t >> 1) * 4 + (t & 1) * 2 + hh) if t < 4 else HR + 8 + hh
                e("v_lshlrev_b32 %s, 16, %s" % (v(t0), v(hd))); e("v_and_b32 %s, 0xffff0000, %s" % (v(t1), v(hd)))
                e("v_pk_add_f32 %s, %s, %s" % (v(A_ + 2 * hh, 2), v(A_ + 2 * hh, 2), v(t0, 2)))
                od = (64 + (t >> 1) * 4 + (t & 1) * 2 + hh) if t < 4 else 72 + hh
                e("v_cvt_pk_bf16_f32 %s, %s, %s" % (v(od), v(A_ + 2 * hh), v(A_ + 2 * hh + 1)))
        e("buffer_store_dwordx4 v[64:67], v20, %s, 0 offen" % s(S_OUT, 4))
        e("buffer_store_dwordx4 v[68:71], v20, %s, 0 offen offset:64" % s(S_OUT, 4))
        e("buffer_store_dwordx2 v[72:73], v21, %s, 0 offen offset:128" % s(S_OUT, 4))
        self.stamp()

    def finish(self):
        self.label("L_end")
        self.e("s_endpgm")

def build(opts):
    g = Gen(opts)
    g.prologue()
    g.stamp()
    stop = opts.get("stop", 5)
    g.p1()
    if stop >= 2: g.p2()
    if stop >= 3: g.p3()
    if stop >= 4: g.p4()
    if stop >= 5: g.p5()
    g.e("s_waitcnt vmcnt(0)")
    g.finish()
    body = g.finalize(2 if opts.get('nocheck') else True)
    hdr = open("cdna_kernels/%s.s.ref" % NAME).read().split("\n")
    head = [l for l in hdr if l.startswith(";") and ("Kernarg" in l or "offset" in l)]
    txt = "\n".join(head) + "\n; @launch grid=(256,1,1) block=(256,1,1) lds=163840\n"
    txt += '.amdgcn_target "amdgcn-amd-amdhsa--gfx950"\n.text\n.globl %s_kernel\n.p2align 8\n.type %s_kernel,@function\n%s_kernel:\n' % (NAME, NAME, NAME)
    txt += body + "\n"
    txt += """.section .rodata,"a"
.p2align 6
.amdhsa_kernel %s_kernel
  .amdhsa_next_free_vgpr 512
  .amdhsa_next_free_sgpr 96
  .amdhsa_accum_offset 256
  .amdhsa_group_segment_fixed_size 0
  .amdhsa_kernarg_size 72
  .amdhsa_user_sgpr_count 2
  .amdhsa_user_sgpr_kernarg_segment_ptr 1
  .amdhsa_system_sgpr_workgroup_id_x 1
  .amdhsa_float_denorm_mode_32 3
.end_amdhsa_kernel
""" % NAME
    return txt, g

if __name__ == "__main__":
    opts = {}
    out = sys.argv[1]
    for x in sys.argv[2:]:
        if "=" in x:
            k, val = x.split("="); opts[k] = int(val)
        else: opts[x] = 1
    txt, g = build(opts)
    open(out, "w").write(txt)
    print("lines", len(txt.split("\n")), "bytes", len(txt), "nops", g.nops)
```

```python
import re

TRANS = ("v_exp_f32", "v_rcp_f32", "v_rsq_f32", "v_log_f32", "v_sqrt_f32", "v_sin_f32", "v_cos_f32")
NODEF_S = ("s_cmp", "s_waitcnt", "s_barrier", "s_nop", "s_branch", "s_cbranch", "s_endpgm", "s_sleep", "s_setprio", "s_bitcmp")

def split_ops(s):
    out = []; cur = ""; depth = 0
    for ch in s:
        if ch == "[": depth += 1
        if ch == "]": depth -= 1
        if ch == "," and depth == 0:
            out.append(cur.strip()); cur = ""
        else:
            cur += ch
    if cur.strip(): out.append(cur.strip())
    return out

RE_R = re.compile(r"^-?(?:abs\()?\|?([vas])(\d+)\|?\)?$")
RE_RR = re.compile(r"^-?([vas])\[(\d+):(\d+)\]$")
def regs(op):
    op = op.strip()
    m = RE_R.match(op)
    if m: return [(m.group(1), int(m.group(2)))]
    m = RE_RR.match(op)
    if m: return [(m.group(1), i) for i in range(int(m.group(2)), int(m.group(3)) + 1)]
    if op == "vcc": return [("s", "vcc")]
    if op == "exec": return [("s", "exec")]
    if op == "m0": return [("s", "m0")]
    return []

class Ins:
    __slots__ = ("text", "mn", "ops", "mods", "defs", "uses", "kind", "srcc", "srcab", "stdata")
    def __init__(self, text):
        self.text = text
        t = text.split(";")[0].strip()
        parts = t.split(None, 1)
        self.mn = parts[0]
        rest = parts[1] if len(parts) > 1 else ""
        ops = split_ops(rest)
        mods = ""
        if ops:
            last = ops[-1].split(None, 1)
            if len(last) > 1 and not last[0].startswith("op_sel"):
                ops[-1] = last[0]; mods = last[1]
        self.ops = ops; self.mods = mods
        mn = self.mn
        D = []; U = []; self.srcc = []; self.srcab = []; self.stdata = []
        R = lambda i: regs(ops[i]) if i < len(ops) else []
        allr = lambda a: [r for i in range(a, len(ops)) for r in R(i)]
        if mn.startswith("v_mfma"):
            self.kind = "mfma"; D = R(0); self.srcab = R(1) + R(2); self.srcc = R(3); U = self.srcab + self.srcc
        elif mn.startswith("v_cmp"):
            self.kind = "valu"; D = R(0); U = allr(1)
        elif mn.startswith("v_readfirstlane") or mn.startswith("v_readlane"):
            self.kind = "valu"; D = R(0); U = allr(1)
        elif mn.startswith("v_permlane"):
            self.kind = "valu"; D = R(0) + R(1); U = R(0) + R(1)
        elif mn.startswith("v_dot2c") or mn.startswith("v_fmac") or mn.startswith("v_pk_fmac"):
            self.kind = "valu"; D = R(0); U = allr(0)
        elif mn.startswith("v_cndmask"):
            self.kind = "valu"; D = R(0); U = allr(1)
            if len(ops) == 3: U += [("s", "vcc")]
        elif mn.startswith("v_add_co") or mn.startswith("v_sub_co"):
            self.kind = "valu"; D = R(0) + R(1); U = allr(2)
        elif mn.startswith("v_"):
            self.kind = "valu"; D = R(0); U = allr(1)
        elif mn.startswith("ds_read") :
            self.kind = "ds"; D = R(0); U = allr(1)
        elif mn.startswith("ds_bpermute") or mn.startswith("ds_swizzle"):
            self.kind = "ds"; D = R(0); U = allr(1)
        elif mn.startswith("ds_write"):
            self.kind = "ds"; U = allr(0)
        elif mn.startswith("buffer_load") or mn.startswith("global_load"):
            self.kind = "vmem"
            if " lds" in (" " + mods):
                U = allr(0) + [("s", "m0")]
            else:
                D = R(0); U = allr(1)
        elif mn.startswith("buffer_store") or mn.startswith("global_store"):
            self.kind = "vmem"; U = allr(0)
            if "x4" in mn or "x3" in mn:
                self.stdata = R(0) if mn.startswith("buffer") else R(1)
        elif mn.startswith("buffer_atomic") or mn.startswith("global_atomic"):
            self.kind = "vmem"; U = allr(0)
            if "sc0" in mods: D = R(0)
        elif mn.startswith("buffer_inv") or mn.startswith("buffer_wbl2"):
            self.kind = "vmem"
        elif mn.startswith("s_load") or mn.startswith("s_memtime") or mn.startswith("s_memrealtime"):
            self.kind = "smem"; D = R(0); U = allr(1)
        elif mn.startswith("s_"):
            self.kind = "salu"
            if mn.startswith(NODEF_S):
                U = allr(0)
            else:
                D = R(0); U = allr(1)
                if "saveexec" in mn: D += [("s", "exec")]
        else:
            raise ValueError("unknown instr: " + text)
        self.defs = set(D); self.uses = set(U)

def vg(rs):
    return {r for r in rs if r[0] in "va"}
def sg(rs):
    return {r for r in rs if r[0] == "s"}

def required_ws(J, I):
    ws = 0
    if J.kind == "valu":
        jd = vg(J.defs)
        if I.kind == "mfma" and jd & I.uses: ws = max(ws, 2)
        if I.kind == "valu":
            if I.mn.startswith("v_permlane") and jd & I.uses: ws = max(ws, 2)
            if "dpp" in I.mn or "row_" in I.mods or "quad_perm" in I.mods:
                if jd & I.uses: ws = max(ws, 2)
            if (I.mn.startswith("v_readfirstlane") or I.mn.startswith("v_readlane")) and jd & I.uses: ws = max(ws, 1)
        if J.mn.startswith(TRANS) and (jd & I.uses) and not I.mn.startswith(TRANS): ws = max(ws, 1)
        if J.mn.startswith("v_dot2"):
            if jd & (I.uses | I.defs):
                same = I.mn == J.mn and jd == vg(I.defs) and not (jd & (set(regs(I.ops[1])) | set(regs(I.ops[2]))))
                if not same: ws = max(ws, 3)
        js = sg(J.defs)
        if js:
            if I.kind == "valu" and js & I.uses: ws = max(ws, 4 if I.mn.startswith("v_readlane") or I.mn.startswith("v_writelane") else 2)
            if I.kind == "vmem" and js & I.uses: ws = max(ws, 5)
            if I.kind in ("salu", "smem") and js & I.uses: ws = max(ws, 2)
    if J.kind == "mfma":
        jd = J.defs
        if I.kind == "mfma":
            if jd & set(I.srcab): ws = max(ws, 8)
            if jd & set(I.srcc):
                if set(I.srcc) != jd: ws = max(ws, 6)
            elif jd & I.defs: ws = max(ws, 8)
        elif I.kind in ("valu", "ds", "vmem"):
            if jd & (I.uses | I.defs): ws = max(ws, 8)
        if I.kind == "valu" and set(J.srcc) & I.defs: ws = max(ws, 3)
    if J.kind == "salu" and ("s", "m0") in J.defs and I.kind == "vmem" and ("s", "m0") in I.uses: ws = max(ws, 1)
    if J.kind == "vmem" and J.stdata:
        if set(J.stdata) & I.defs: ws = max(ws, 2 if I.kind == "valu" else 1)
    return ws

def nop_states(I):
    if I.mn == "s_nop": return int(I.ops[0], 0) + 1
    return 1

class Asm:
    def __init__(self):
        self.L = []
    def e(self, s):
        for ln in s.strip().split("\n"):
            ln = ln.strip()
            if ln: self.L.append(ln)
    def c(self, s):
        self.L.append("; " + s)
    def label(self, n):
        self.L.append(n + ":")

    def finalize(self, check=True):
        out = []; hist = []
        nops = 0
        vmq = []; lgq = []
        errs = []
        last_scc = None
        for ln in self.L:
            if ln.startswith(";") or ln.startswith("."):
                out.append(ln); continue
            if ln.endswith(":"):
                out.append(ln); continue
            I = Ins(ln)
            need = 0; d = 0
            for J in reversed(hist[-24:]):
                w = required_ws(J, I)
                if w > d: need = max(need, w - d)
                d += nop_states(J)
                if d >= 20: break
            if need > 0:
                k = need
                while k > 0:
                    n = min(k, 16)
                    N = Ins("s_nop %d" % (n - 1)); hist.append(N); out.append("    " + N.text); k -= n; nops += 1
            if I.mn.startswith(("s_cselect", "s_cbranch_scc")):
                if last_scc is None or not last_scc.startswith("s_cmp"):
                    errs.append("SCC not from s_cmp: '%s' after '%s'" % (ln, last_scc))
            if I.kind == "salu" and I.mn.startswith(("s_add", "s_sub", "s_and", "s_or", "s_xor", "s_lshl", "s_lshr", "s_ashr", "s_cmp", "s_min", "s_max", "s_not", "s_bfe", "s_andn2")):
                last_scc = ln
            if check:
                touched = I.uses | I.defs
                for q, nm in ((vmq, "vm"), (lgq, "lgkm")):
                    for (dst, txt) in q:
                        if dst & touched:
                            errs.append("MISSING %s WAIT: '%s' touches dest of pending '%s'" % (nm, ln, txt))
                if I.mn == "s_waitcnt":
                    m = re.search(r"vmcnt\((\d+)\)", ln)
                    if m:
                        n = int(m.group(1))
                        while len(vmq) > n: vmq.pop(0)
                    m = re.search(r"lgkmcnt\((\d+)\)", ln)
                    if m:
                        n = int(m.group(1))
                        if any(t.startswith("s_") for _, t in lgq) and n > 0:
                            pass
                        while len(lgq) > n: lgq.pop(0)
                if I.kind == "vmem": vmq.append((vg(I.defs), ln))
                if I.kind in ("ds", "smem"):
                    lgq.append((set(I.defs), ln))
                    if len(lgq) > 15: errs.append("LGKM OVERFLOW at '%s'" % ln)
                if I.kind == "vmem" and len(vmq) > 63: errs.append("VM OVERFLOW at '%s'" % ln)
                if I.mn == "s_endpgm": vmq = []; lgq = []
            hist.append(I); out.append("    " + ln)
        if errs and check != 2:
            for x in errs[:20]: print(x)
            raise SystemExit("waitcnt check failed (%d)" % len(errs))
        self.nops = nops
        return "\n".join(out)

def v(a, n=1):
    return "v%d" % a if n == 1 else "v[%d:%d]" % (a, a + n - 1)
def a(x, n=1):
    return "a%d" % x if n == 1 else "a[%d:%d]" % (x, x + n - 1)
def s(x, n=1):
    return "s%d" % x if n == 1 else "s[%d:%d]" % (x, x + n - 1)
```

```python
import sys, math, struct
from asmlib import Asm, v, a, s

NAME = 'sequential_preLN__sliding_block__dense_activation_silu__prompt'
M = "v_mfma_f32_16x16x32_bf16"

WS_FLAGS = 0x0
WS_STAT = 0x20000
WS_HS = 0x40000
WS_QKV = 0x100000
WS_O = 0x900000
WS_H = 0xC00000
WS_H1 = 0xF00000
WS_PW3 = 0x1500000
WS_PW4 = 0x1600000
WS_PW5 = 0x1800000
WS_ST = 0x1A00000
WS_SIZE = 0x1B00000
BIGOFF = 0x7F000000

def f2u(x):
    return struct.unpack("<I", struct.pack("<f", x))[0]

S_X, S_WQ, S_WO, S_W1, S_W2, S_OUT, S_WS, S_DBG = 4, 8, 12, 16, 20, 24, 28, 32
S_W = 36
S_M1, S_N1, S_M3, S_J3 = 37, 38, 39, 40
S_NONCE = 42
S_SOFF = 62
S_TMO = 63
S_STC = 80
S_STT = 82
S_ODD = 84
S_TI, S_NQ = 86, 87
S_B3, S_B4, S_B5 = 90, 91, 92
S_W1K, S_W3 = 93, 94
S_OST = 95

V_L, V_C, V_G = 1, 2, 3

class Gen(Asm):
    def __init__(self, opts):
        super().__init__()
        self.o = opts
        self.vmq = []
        self.nlab = 0
        self.nstamp = 0
    def vm(self, text, tag=None):
        self.e(text); self.vmq.append(tag)
    def vm_n(self, tag):
        idx = max(i for i, t in enumerate(self.vmq) if t == tag)
        n = len(self.vmq) - 1 - idx
        assert n <= 63, (tag, n)
        return n
    def vm_wait(self, tag, extra=""):
        self.e("s_waitcnt vmcnt(%d)%s" % (self.vm_n(tag), extra))
    def newlabel(self, p="L"):
        self.nlab += 1
        return "%s_%d" % (p, self.nlab)
    def stamp(self, idx=None):
        if not self.o.get("stamps"): return
        i = self.nstamp if idx is None else idx
        if idx is None: self.nstamp += 1
        assert i < 32
        e = self.e
        e("%s %s" % ("s_memtime" if self.o.get("stamps") == 2 else "s_memrealtime", s(S_STT, 2)))
        e("s_waitcnt lgkmcnt(0)")
        e("v_mov_b32 v254, %s" % s(S_STT)); e("v_mov_b32 v255, %s" % s(S_STT + 1))
        e("s_lshl_b32 %s, s2, 2" % s(S_STC)); e("s_add_u32 %s, %s, %s" % (s(S_STC), s(S_STC), s(S_W)))
        e("s_lshl_b32 %s, %s, 8" % (s(S_STC), s(S_STC)))
        e("s_add_u32 %s, %s, 0x%x" % (s(S_STC), s(S_STC), WS_ST + i * 8))
        e("v_mov_b32 v253, %s" % s(S_STC))
        e("s_mov_b64 exec, 1")
        self.vm("buffer_store_dwordx2 v[254:255], v253, %s, 0 offen" % s(S_WS, 4), "stamp")
        e("s_mov_b64 exec, -1")

    def reduce4(self, x, tmp, op="v_add_f32"):
        e = self.e
        e("v_mov_b32 %s, %s" % (v(tmp), v(x)))
        e("v_permlane16_swap_b32 %s, %s" % (v(x), v(tmp)))
        e("%s %s, %s, %s" % (op, v(x), v(x), v(tmp)))
        e("v_mov_b32 %s, %s" % (v(tmp), v(x)))
        e("v_permlane32_swap_b32 %s, %s" % (v(x), v(tmp)))
        e("%s %s, %s, %s" % (op, v(x), v(x), v(tmp)))

    def nonce_issue(self, vr):
        self.e("v_mov_b32 %s, 0" % v(vr + 2))
        self.vm("buffer_load_dwordx2 %s, %s, %s, 0 offen sc1" % (v(vr, 2), v(vr + 2), s(S_DBG, 4)), "nonce")
    def nonce_get(self, vr):
        e = self.e
        self.vm_wait("nonce")
        l0 = self.newlabel("NL"); l1 = self.newlabel("ND")
        e("v_readfirstlane_b32 %s, %s" % (s(S_NONCE), v(vr)))
        e("v_readfirstlane_b32 %s, %s" % (s(S_NONCE + 1), v(vr + 1)))
        e("s_cmp_lg_u32 %s, 0" % s(S_NONCE))
        e("s_cbranch_scc1 %s" % l1)
        e("s_mov_b32 s44, 0")
        self.label(l0)
        e("buffer_load_dwordx2 %s, %s, %s, 0 offen sc1" % (v(vr, 2), v(vr + 2), s(S_DBG, 4)))
        e("s_waitcnt vmcnt(0)")
        e("v_readfirstlane_b32 %s, %s" % (s(S_NONCE), v(vr)))
        e("v_readfirstlane_b32 %s, %s" % (s(S_NONCE + 1), v(vr + 1)))
        e("s_add_u32 s44, s44, 1")
        e("s_cmp_gt_u32 s44, 20000")
        e("s_cbranch_scc1 %s" % l1)
        e("s_cmp_eq_u32 %s, 0" % s(S_NONCE))
        e("s_cbranch_scc1 %s" % l0)
        self.label(l1)
    def flag_set(self, phase, sidx, vt, checkwave=True):
        e = self.e
        l = self.newlabel("FS")
        if checkwave: e("s_cmp_lg_u32 %s, 0" % s(S_W)); e("s_cbranch_scc1 %s" % l)
        e("s_lshl_b32 s44, %s, 6" % s(sidx)); e("s_add_u32 s44, s44, 0x%x" % (WS_FLAGS + phase * 16384))
        e("v_mov_b32 %s, %s" % (v(vt), s(S_NONCE))); e("v_mov_b32 %s, %s" % (v(vt + 1), s(S_NONCE + 1)))
        e("v_mov_b32 %s, s44" % v(vt + 2))
        e("s_mov_b64 exec, 1")
        e("buffer_store_dwordx2 %s, %s, %s, 0 offen sc1" % (v(vt, 2), v(vt + 2), s(S_WS, 4)))
        e("s_mov_b64 exec, -1")
        self.label(l)
    def flag_poll(self, vaddr, vt, nloads=1, stride=0):
        e = self.e
        l0 = self.newlabel("PL"); l1 = self.newlabel("PD")
        e("s_mov_b32 s44, 0")
        self.label(l0)
        for k in range(nloads):
            e("buffer_load_dwordx2 %s, %s, %s, 0 offen offset:%d sc1" % (v(vt + 2 * k, 2), v(vaddr), s(S_WS, 4), k * stride))
        e("s_waitcnt vmcnt(0)")
        for k in range(nloads):
            e("v_cmp_eq_u32 %s, %s, %s" % (s(46 + 0, 2), s(S_NONCE), v(vt + 2 * k)))
            e("v_cmp_eq_u32 %s, %s, %s" % (s(48 + 0, 2), s(S_NONCE + 1), v(vt + 2 * k + 1)))
            e("s_and_b64 s[46:47], s[46:47], s[48:49]")
            if k == 0: e("s_mov_b64 s[50:51], s[46:47]")
            else: e("s_and_b64 s[50:51], s[50:51], s[46:47]")
        e("s_cmp_eq_u64 s[50:51], -1")
        e("s_cbranch_scc1 %s" % l1)
        e("s_add_u32 s44, s44, 1")
        e("s_cmp_gt_u32 s44, 20000")
        e("s_cbranch_scc0 %s" % l0)
        e("s_mov_b32 %s, 1" % s(S_TMO))
        self.label(l1)

    def srd(self, d, src, size):
        e = self.e
        e("s_mov_b32 %s, %s" % (s(d), s(src))); e("s_and_b32 %s, %s, 0xffff" % (s(d + 1), s(src + 1)))
        e("s_mov_b32 %s, 0x%x" % (s(d + 2), size)); e("s_mov_b32 %s, 0x20000" % s(d + 3))
    def prologue(self):
        e = self.e
        e("s_cmp_ge_u32 s2, 256")
        e("s_cbranch_scc1 L_end")
        e("s_load_dwordx16 s[64:79], s[0:1], 0")
        e("s_load_dwordx2 s[80:81], s[0:1], 64")
        e("v_and_b32 %s, 63, v0" % v(V_L))
        e("v_lshrrev_b32 v4, 6, v0")
        e("v_and_b32 %s, 15, %s" % (v(V_C), v(V_L)))
        e("v_lshrrev_b32 %s, 4, %s" % (v(V_G), v(V_L)))
        e("v_readfirstlane_b32 %s, v4" % s(S_W))
        e("s_and_b32 s3, s2, 7")
        e("s_lshr_b32 s41, s2, 3")
        e("s_lshr_b32 %s, s3, 1" % s(S_M1)); e("s_lshl_b32 %s, %s, 2" % (s(S_M1), s(S_M1)))
        e("s_lshr_b32 s62, s41, 3"); e("s_add_u32 %s, %s, s62" % (s(S_M1), s(S_M1)))
        e("s_and_b32 %s, s3, 1" % s(S_N1)); e("s_lshl_b32 %s, %s, 3" % (s(S_N1), s(S_N1)))
        e("s_and_b32 s62, s41, 7"); e("s_add_u32 %s, %s, s62" % (s(S_N1), s(S_N1)))
        e("s_lshl_b32 %s, s3, 1" % s(S_M3)); e("s_lshr_b32 s62, s41, 4"); e("s_add_u32 %s, %s, s62" % (s(S_M3), s(S_M3)))
        e("s_and_b32 %s, s41, 15" % s(S_J3))
        e("s_mov_b32 %s, 0" % s(S_TMO))
        e("v_and_b32 v4, 1, %s" % v(V_G))
        e("v_cmp_eq_u32 %s, 1, v4" % s(S_ODD, 2))
    def prologue2(self):
        e = self.e
        self.srd(S_WO, 68, 640 * 640 * 2)
        self.srd(S_W1, 72, 640 * 1536 * 2)
        self.srd(S_W2, 74, 1536 * 640 * 2)
        self.srd(S_OUT, 76, 2048 * 640 * 2)
        self.srd(S_DBG, 78, 256)
        l = self.newlabel("NP")
        e("s_lshl_b32 s44, s2, 2"); e("s_or_b32 s44, s44, %s" % s(S_W))
        e("s_cmp_lg_u32 s44, 0"); e("s_cbranch_scc1 %s" % l)
        e("s_memrealtime s[44:45]")
        e("s_waitcnt lgkmcnt(0)")
        e("s_or_b32 s44, s44, 1")
        e("v_mov_b32 v204, s44"); e("v_mov_b32 v205, s45"); e("v_mov_b32 v206, 0")
        e("s_mov_b64 exec, 1")
        e("buffer_store_dwordx2 v[204:205], v206, %s, 0 offen sc1" % s(S_DBG, 4))
        e("s_mov_b64 exec, -1")
        self.label(l)

    def x_dma_setup(self, VX, t0, t1):
        e = self.e
        e("v_lshrrev_b32 %s, 2, %s" % (v(t0), v(V_L)))
        e("v_lshrrev_b32 %s, 2, %s" % (v(t1), v(t0)))
        e("v_sub_u32 %s, 4, %s" % (v(t1), v(t1))); e("v_and_b32 %s, 3, %s" % (v(t1), v(t1)))
        e("v_xor_b32 %s, %s, %s" % (v(t1), v(t1), v(V_L))); e("v_and_b32 %s, 3, %s" % (v(t1), v(t1)))
        e("s_lshl_b32 s44, %s, 7" % s(S_M1)); e("s_lshl_b32 s45, %s, 5" % s(S_W)); e("s_add_u32 s44, s44, s45")
        e("v_add_u32 %s, s44, %s" % (v(t0), v(t0)))
        e("v_mul_u32_u24 %s, 1280, %s" % (v(t0), v(t0)))
        e("v_lshl_add_u32 %s, %s, 4, %s" % (v(VX), v(t1), v(t0)))
        e("v_add_u32 %s, 20480, %s" % (v(VX + 1), v(VX)))
    def x_frag_addr(self, VA, t0, base_const):
        e = self.e
        e("v_lshrrev_b32 %s, 2, %s" % (v(t0), v(V_C)))
        e("v_sub_u32 %s, 4, %s" % (v(t0), v(t0))); e("v_and_b32 %s, 3, %s" % (v(t0), v(t0)))
        e("v_xor_b32 %s, %s, %s" % (v(t0), v(t0), v(V_G)))
        e("v_lshlrev_b32 %s, 4, %s" % (v(t0), v(t0)))
        e("v_lshl_add_u32 %s, %s, 6, %s" % (v(VA), v(V_C), v(t0)))
        if base_const: e("v_add_u32 %s, %s, %s" % (v(VA), base_const, v(VA)))

    def p1_helper(self):
        e = self.e
        self.c("helper workgroup: LayerNorm statistics of x for token block m1")
        save = list(self.vmq); self.vmq = []
        VX, VA, T = 12, 14, 208
        self.x_dma_setup(VX, T, T + 1)
        self.x_frag_addr(VA, T, None)
        e("s_lshl_b32 s47, %s, 15" % s(S_W))
        e("v_add_u32 %s, s47, %s" % (v(VA), v(VA)))
        def issue(st):
            for tt in range(2):
                e("s_add_u32 m0, s47, 0x%x" % ((st % 16) * 2048 + tt * 1024))
                e("s_mov_b32 %s, %d" % (s(S_SOFF), st * 64))
                self.vm("buffer_load_dwordx4 %s, %s, %s offen lds" % (v(VX + tt), s(S_X, 4), s(S_SOFF)), ("hx", st))
        for st in range(16): issue(st)
        self.nonce_issue(16)
        for i in range(4): e("v_mov_b32 %s, 0x3f803f80" % v(20 + i))
        for i in range(16): e("v_mov_b32 %s, 0" % v(32 + i))
        for st in range(20):
            self.vm_wait(("hx", st))
            b = (st % 2) * 8
            for tt in range(2):
                e("ds_read_b128 %s, %s offset:%d" % (a(b + tt * 4, 4), v(VA), (st % 16) * 2048 + tt * 1024))
            e("s_waitcnt lgkmcnt(0)")
            if st < 4: issue(st + 16)
            for tt in range(2):
                e("%s %s, %s, %s, %s" % (M, v(32 + tt * 4, 4), a(b + tt * 4, 4), a(b + tt * 4, 4), v(32 + tt * 4, 4)))
                e("%s %s, %s, %s, %s" % (M, v(40 + tt * 4, 4), v(20, 4), a(b + tt * 4, 4), v(40 + tt * 4, 4)))
        self.nonce_get(16)
        e("v_and_b32 %s, 3, %s" % (v(T), v(V_C)))
        e("v_lshrrev_b32 %s, 2, %s" % (v(T + 1), v(V_C)))
        e("v_cmp_eq_u32 s[46:47], %s, %s" % (v(T + 1), v(V_G)))
        for tt in range(2):
            d = 32 + tt * 4
            for i in range(1, 4):
                e("v_cmp_eq_u32 vcc, %d, %s" % (i, v(T)))
                e("v_cndmask_b32 %s, %s, %s, vcc" % (v(d), v(d), v(d + i)))
            e("v_cndmask_b32 %s, 0, %s, s[46:47]" % (v(d), v(d)))
            self.reduce4(d, T + 2)
            sm = 40 + tt * 4
            e("v_mul_f32 %s, 0x%x, %s" % (v(sm), f2u(1.0 / 640), v(sm)))
            e("v_mul_f32 %s, 0x%x, %s" % (v(d), f2u(1.0 / 640), v(d)))
            e("v_fma_f32 %s, -%s, %s, %s" % (v(d), v(sm), v(sm), v(d)))
            e("v_max_f32 %s, 0, %s" % (v(d), v(d)))
            e("v_add_f32 %s, 0x%x, %s" % (v(d), f2u(1e-5), v(d)))
            e("v_rsq_f32 %s, %s" % (v(d), v(d)))
            o4 = 48 + tt * 4
            e("v_mov_b32 %s, %s" % (v(o4), v(sm))); e("v_mov_b32 %s, %s" % (v(o4 + 1), v(d)))
            e("v_mov_b32 %s, %s" % (v(o4 + 2), s(S_NONCE))); e("v_mov_b32 %s, %s" % (v(o4 + 3), s(S_NONCE + 1)))
        e("s_lshl_b32 s44, %s, 7" % s(S_M1)); e("s_lshl_b32 s45, %s, 5" % s(S_W)); e("s_add_u32 s44, s44, s45")
        e("v_add_u32 %s, s44, %s" % (v(T), v(V_C)))
        e("v_lshlrev_b32 %s, 4, %s" % (v(T), v(T)))
        e("v_add_u32 %s, 0x%x, %s" % (v(T), WS_STAT, v(T)))
        e("s_mov_b64 exec, 0xffff")
        for tt in range(2):
            e("buffer_store_dwordx4 %s, %s, %s, 0 offen offset:%d sc1" % (v(48 + tt * 4, 4), v(T), s(S_WS, 4), tt * 256))
        e("s_mov_b64 exec, -1")
        e("s_waitcnt vmcnt(0)")
        self.vmq = save

    def p1(self):
        e = self.e; o = self.o
        VT = 4
        VXA = 8
        VX = 10
        VWO = 12
        VPK = 13
        VONE = 20
        VCS = 24
        ACC = 32
        VST = 96
        VN = 112
        VPA = 124
        PKF = 116
        TMP = 208
        t0, t1, t2, t3 = TMP, TMP + 1, TMP + 2, TMP + 3
        acc = lambda i, tt: ACC + (i * 4 + tt) * 4
        PK_OFF = 131072
        CS_OFF = 131072 + 24576
        lab_h = self.newlabel("HELP"); lab_j = self.newlabel("P1J")
        self.c("P1: address setup (no pointers needed yet)")
        self.x_dma_setup(VX, t0, t1)
        e("s_lshr_b32 s44, %s, 1" % s(S_W)); e("s_lshl_b32 s44, s44, 3")
        e("v_and_b32 %s, 1, %s" % (v(t0), v(V_G))); e("v_and_b32 %s, 2, %s" % (v(t1), v(V_G)))
        e("v_lshl_or_b32 %s, %s, 1, %s" % (v(t0), v(t1), v(t0))); e("v_or_b32 %s, s44, %s" % (v(t0), v(t0)))
        e("v_xor_b32 %s, %s, %s" % (v(t0), v(t0), v(V_C)))
        e("s_lshl_b32 s45, %s, 2" % s(S_W)); e("v_add_u32 %s, s45, %s" % (v(t1), v(V_G)))
        e("v_mul_u32_u24 %s, 3840, %s" % (v(t1), v(t1)))
        e("v_lshl_add_u32 %s, %s, 4, %s" % (v(t1), v(t0), v(t1)))
        e("s_lshl_b32 s44, %s, 8" % s(S_N1)); e("v_add_u32 %s, s44, %s" % (v(VWO), v(t1)))
        e("s_lshl_b32 s47, %s, 10" % s(S_W))
        e("s_lshl_b32 s48, %s, 11" % s(S_W))
        e("s_waitcnt lgkmcnt(0)")
        self.srd(S_X, 64, 2048 * 640 * 2)
        self.srd(S_WQ, 66, 640 * 1920 * 2)
        self.srd(S_WS, 80, WS_SIZE)
        e("s_cmp_eq_u32 %s, 15" % s(S_N1)); e("s_cbranch_scc1 %s" % lab_h)
        def dma_ops(st):
            ops = []
            sl = (st % 8) * 16384
            for h in range(2):
                ops.append((["s_add_u32 m0, s47, 0x%x" % (sl + h * 4096), "s_mov_b32 %s, 0x%x" % (s(S_SOFF), (32 * st + 16 * h) * 3840)],
                            "buffer_load_dwordx4 %s, %s, %s offen lds" % (v(VWO), s(S_WQ, 4), s(S_SOFF))))
            for tt in range(2):
                ops.append((["s_add_u32 m0, s48, 0x%x" % (sl + 8192 + tt * 1024), "s_mov_b32 %s, %d" % (s(S_SOFF), st * 64)],
                            "buffer_load_dwordx4 %s, %s, %s offen lds" % (v(VX + tt), s(S_X, 4), s(S_SOFF))))
            return ops
        def issue_now(st):
            for su, ld in dma_ops(st):
                for x in su: e(x)
                self.vm(ld, ("st", st))
        issue_now(0)
        if o.get("pf1", 1):
            e("s_and_b32 s44, %s, 3" % s(S_M1)); e("s_mul_i32 s44, s44, %d" % (160 * 3840)); e("s_lshl_b32 s45, %s, 8" % s(S_N1)); e("s_add_u32 s44, s44, s45")
            e("s_lshl_b32 s45, %s, 6" % s(S_W)); e("v_add_u32 %s, s45, %s" % (v(t0), v(V_L)))
            e("v_lshrrev_b32 %s, 1, %s" % (v(t1), v(t0))); e("v_mul_u32_u24 %s, 3840, %s" % (v(t1), v(t1)))
            e("v_and_b32 %s, 1, %s" % (v(t2), v(t0))); e("v_lshl_add_u32 %s, %s, 7, %s" % (v(t1), v(t2), v(t1)))
            self.vm("buffer_load_dword v190, %s, %s, s44 offen" % (v(t1), s(S_WQ, 4)), "touch")
            lt = self.newlabel("TX"); lj = self.newlabel("TJ")
            e("s_cmp_lg_u32 %s, 0" % s(S_W)); e("s_cbranch_scc1 %s" % lt)
            e("v_add_u32 %s, %d, %s" % (v(t1), 128 * 3840, v(t1)))
            e("buffer_load_dword v191, %s, %s, s44 offen" % (v(t1), s(S_WQ, 4)))
            e("s_branch %s" % lj)
            self.label(lt)
            e("v_subrev_u32 %s, 64, %s" % (v(t0), v(t0))); e("v_min_u32 %s, 159, %s" % (v(t0), v(t0)))
            e("v_mul_u32_u24 %s, 6554, %s" % (v(t1), v(t0))); e("v_lshrrev_b32 %s, 16, %s" % (v(t1), v(t1)))
            e("v_mul_u32_u24 %s, 10, %s" % (v(t2), v(t1))); e("v_sub_u32 %s, %s, %s" % (v(t2), v(t0), v(t2)))
            e("s_and_b32 s44, %s, 7" % s(S_N1)); e("s_lshl_b32 s44, s44, 4"); e("s_lshl_b32 s45, %s, 7" % s(S_M1)); e("s_add_u32 s44, s44, s45")
            e("v_add_u32 %s, s44, %s" % (v(t1), v(t1))); e("v_mul_u32_u24 %s, 1280, %s" % (v(t1), v(t1)))
            e("v_lshl_add_u32 %s, %s, 7, %s" % (v(t1), v(t2), v(t1)))
            e("buffer_load_dword v187, %s, %s, 0 offen" % (v(t1), s(S_X, 4)))
            self.label(lj)
            self.vmq.append("touch")
        for st in range(1, 3): issue_now(st)
        if o.get("cpf", 1):
            e("s_getpc_b64 s[44:45]")
            self.label("L_pc")
            e("s_mov_b32 s50, L_end-L_pc")
            e("v_lshlrev_b32 %s, 7, %s" % (v(t0), v(V_L)))
            e("s_lshl_b32 s46, %s, 14" % s(S_W)); e("v_add_u32 %s, s46, %s" % (v(t0), v(t0)))
            for k in range(2):
                e("v_min_u32 %s, s50, %s" % (v(t1), v(t0)))
                self.vm("global_load_dword v%d, %s, s[44:45]" % (188 + k, v(t1)), "touch")
                if k == 0: e("v_add_u32 %s, 8192, %s" % (v(t0), v(t0)))
        self.stamp()
        self.prologue2()
        self.c("W tile / x fragment read addresses")
        e("v_lshrrev_b32 %s, 2, %s" % (v(t0), v(V_C)))
        e("v_and_b32 %s, 3, %s" % (v(t1), v(V_L)))
        e("v_and_b32 %s, 1, %s" % (v(t2), v(t0))); e("v_and_b32 %s, 2, %s" % (v(t3), v(t0)))
        e("v_lshl_or_b32 %s, %s, 1, %s" % (v(t2), v(t3), v(t2)))
        e("v_and_b32 %s, 1, %s" % (v(t3), v(V_G))); e("v_lshl_or_b32 %s, %s, 3, %s" % (v(t2), v(t3), v(t2)))
        e("v_lshl_add_u32 %s, %s, 3, %s" % (v(t0), v(V_G), v(t0))); e("v_lshlrev_b32 %s, 8, %s" % (v(t0), v(t0)))
        e("s_lshr_b32 s50, %s, 1" % s(S_W)); e("s_and_b32 s45, %s, 1" % s(S_W)); e("s_lshl_b32 s45, s45, 1")
        for i in range(4):
            if i % 2 == 0:
                e("s_xor_b32 s44, s50, %d" % (i >> 1)); e("s_add_u32 s44, s44, s45"); e("s_lshl_b32 s44, s44, 2")
                e("v_add_u32 %s, s44, %s" % (v(t3), v(t1))); e("v_xor_b32 %s, %s, %s" % (v(t3), v(t3), v(t2)))
                e("v_lshl_add_u32 %s, %s, 4, %s" % (v(t3 + 1), v(t3), v(t0)))
            e("v_and_b32 %s, 1, %s" % (v(t3), v(t1)))
            if i & 1: e("v_xor_b32 %s, 1, %s" % (v(t3), v(t3)))
            e("v_lshl_add_u32 %s, %s, 3, %s" % (v(VT + i), v(t3), v(t3 + 1)))
        self.x_frag_addr(VXA, t0, None)
        e("s_lshl_b32 s44, s50, 12"); e("s_add_u32 s44, s44, 8192")
        e("v_add_u32 %s, s44, %s" % (v(VXA), v(VXA)))
        for st in range(3, 5): issue_now(st)
        for i in range(4): e("v_mov_b32 %s, 0x3f803f80" % v(VONE + i))
        for i in range(8): e("v_mov_b32 %s, 0" % v(VCS + i))
        for i in range(64): e("v_mov_b32 %s, 0" % v(ACC + i))
        for st in range(5, 8): issue_now(st)
        self.c("pack set-up")
        PS = []
        pe = PS.append
        pe("s_mul_i32 s49, %s, 15" % s(S_M1)); pe("s_add_u32 s49, s49, %s" % s(S_N1))
        pe("s_cmp_lt_u32 s49, 80")
        pe("s_cselect_b32 s64, %s, %s" % (s(S_WO), s(S_W1))); pe("s_cselect_b32 s65, %s, %s" % (s(S_WO + 1), s(S_W1 + 1)))
        pe("s_cselect_b32 s66, %s, %s" % (s(S_WO + 2), s(S_W1 + 2))); pe("s_mov_b32 s67, 0x20000")
        pe("s_mov_b32 s72, 1280"); pe("s_cselect_b32 s72, s72, 3072")
        pe("s_cselect_b32 s73, 19, 23")
        pe("s_cselect_b32 s74, 2, 3")
        pe("s_cselect_b32 s75, 0, 80")
        pe("s_mov_b32 s76, 320"); pe("s_cselect_b32 s76, s76, 384")
        pe("s_cselect_b32 s77, 5, 6")
        pe("s_mov_b32 s78, 20")
        pe("s_mov_b32 s79, 0x%x" % WS_PW3); pe("s_cselect_b32 s79, s79, 0x%x" % WS_PW4)
        pe("s_sub_u32 s50, s49, s75"); pe("s_lshr_b32 s51, s50, s74")
        pe("s_lshl_b32 s52, 1, s74"); pe("s_sub_u32 s52, s52, 1"); pe("s_and_b32 s52, s50, s52")
        for i3 in range(3):
            pe("s_lshl_b32 s54, %s, 6" % s(S_W)); pe("s_add_u32 s54, s54, %d" % (256 * i3))
            pe("v_add_u32 %s, s54, %s" % (v(t0), v(V_L)))
            pe("v_mul_u32_u24 %s, 2731, %s" % (v(136 + i3), v(t0))); pe("v_lshrrev_b32 %s, 16, %s" % (v(136 + i3), v(136 + i3)))
            pe("v_mul_u32_u24 %s, 24, %s" % (v(t2), v(136 + i3))); pe("v_sub_u32 %s, %s, %s" % (v(139 + i3), v(t0), v(t2)))
        pe("v_lshrrev_b32 %s, 2, %s" % (v(t1), v(V_C))); pe("v_lshl_add_u32 %s, %s, 3, %s" % (v(t1), v(V_G), v(t1))); pe("v_mul_u32_u24 %s, 384, %s" % (v(t1), v(t1)))
        pe("v_and_b32 %s, 3, %s" % (v(t0), v(V_L)))
        pe("v_lshl_add_u32 v142, %s, 4, %s" % (v(t0), v(t1))); pe("v_lshl_add_u32 v143, %s, 3, %s" % (v(t0), v(t1)))
        pe("v_lshlrev_b32 v144, 4, %s" % v(V_L))
        pe("s_lshr_b32 s60, %s, 1" % s(S_W))
        pe("s_and_b32 s61, %s, 1" % s(S_W)); pe("s_mul_i32 s61, s61, 3")
        def pack_setup(blk, valid_s):
            pe("s_mul_i32 s53, s51, s72"); pe("s_lshl_b32 s53, s53, 5"); pe("s_mul_i32 s54, s52, s76"); pe("s_add_u32 s53, s53, s54")
            for i3 in range(3):
                pe("v_min_u32 %s, s73, %s" % (v(t2), v(139 + i3)))
                pe("v_mul_lo_u32 %s, %s, s72" % (v(t1), v(136 + i3)))
                pe("v_lshl_add_u32 %s, %s, 4, %s" % (v(t1), v(t2), v(t1)))
                pe("v_add_u32 %s, s53, %s" % (v(VPK + 3 * blk + i3), v(t1)))
            pe("s_lshl_b32 s57, s52, 1"); pe("s_add_u32 s57, s57, s60"); pe("s_mul_i32 s57, s57, s78"); pe("s_add_u32 s57, s57, s51")
            pe("s_mul_i32 s57, s57, s77"); pe("s_lshl_b32 s57, s57, 10"); pe("s_add_u32 s57, s57, s79")
            if valid_s is not None:
                pe("s_cmp_lt_u32 s49, %d" % valid_s); pe("s_cselect_b32 s57, s57, 0x%x" % BIGOFF)
            pe("s_mul_i32 s58, s60, s77"); pe("s_lshl_b32 s58, s58, 5"); pe("s_add_u32 s58, s58, %d" % (PK_OFF + blk * 12288))
            for i3 in range(3):
                pe("s_add_u32 s56, s61, %d" % i3)
                pe("s_lshr_b32 s54, s56, 1"); pe("s_lshl_b32 s54, s54, 6"); pe("s_and_b32 s55, s56, 1"); pe("s_lshl_b32 s55, s55, 3")
                pe("s_add_u32 s54, s54, s55"); pe("s_add_u32 s54, s54, s58")
                pe("s_lshl_b32 s55, s77, 3"); pe("s_add_u32 s55, s55, s56"); pe("s_cmp_eq_u32 s55, 44")
                pe("s_cselect_b64 s[68:69], -1, 0")
                pe("v_cndmask_b32 %s, v142, v143, s[68:69]" % v(t0))
                pe("v_add_u32 %s, s54, %s" % (v(VPA + 3 * blk + i3), v(t0)))
                pe("s_lshl_b32 s54, s56, 10"); pe("s_add_u32 s54, s54, s57"); pe("s_cmp_lt_u32 s56, s77"); pe("s_cselect_b32 s54, s54, 0x%x" % BIGOFF)
                pe("v_add_u32 %s, s54, v144" % v(VPA + 6 + 3 * blk + i3))
        pack_setup(0, None)
        for x in ("s_mov_b32 s72, 1280", "s_mov_b32 s73, 19", "s_mov_b32 s76, 320", "s_mov_b32 s77, 5", "s_mov_b32 s78, 48", "s_mov_b32 s79, 0x%x" % WS_PW5,
                  "s_lshr_b32 s51, s49, 2", "s_and_b32 s52, s49, 3"): pe(x)
        pack_setup(1, 192)
        for x in PS: e(x)
        self.stamp()
        self.c("P1 main loop")
        NS = 20
        def reads(st):
            b = (st % 2) * 32; sl = (st % 4) * 16384
            pre = []
            if st % 8 == 4:
                pre = ["v_add_u32 %s, 0x10000, %s" % (v(r), v(r)) for r in (VT, VT + 1, VT + 2, VT + 3, VXA)]
            elif st % 8 == 0 and st > 0:
                pre = ["v_subrev_u32 %s, 0x10000, %s" % (v(r), v(r)) for r in (VT, VT + 1, VT + 2, VT + 3, VXA)]
            r = []
            for i in range(4):
                r.append("ds_read_b64_tr_b16 %s, %s offset:%d" % (a(b + i * 4, 2), v(VT + i), sl))
                r.append("ds_read_b64_tr_b16 %s, %s offset:%d" % (a(b + i * 4 + 2, 2), v(VT + i), sl + 1024))
            for tt in range(4):
                r.append("ds_read_b128 %s, %s offset:%d" % (a(b + 16 + tt * 4, 4), v(VXA), sl + tt * 1024))
            return pre, r
        self.vm_wait(("st", 1))
        e("s_barrier")
        pre, r = reads(0)
        for x in pre + r: e(x)
        pending_dma = []
        for st in range(NS):
            b = (st % 2) * 32
            e("s_waitcnt lgkmcnt(0)")
            nxt = st + 1
            if nxt < NS and nxt % 2 == 0:
                self.vm_wait(("st", nxt + 1))
                e("s_barrier")
                if o.get("fine"): self.stamp()
                for s2 in (nxt + 6, nxt + 7):
                    if s2 < NS: pending_dma += [(su, ld, ("st", s2)) for su, ld in dma_ops(s2)]
            if st == 3:
                for blk in range(2):
                    for i3 in range(3):
                        pending_dma.append((["s_add_u32 m0, s47, 0x%x" % (PK_OFF + blk * 12288 + i3 * 4096), "s_nop 0"],
                                            "buffer_load_dwordx4 %s, %s, 0 offen lds" % (v(VPK + 3 * blk + i3), s(64 if blk == 0 else S_W2, 4)), "pk"))
            pre, r = reads(nxt) if nxt < NS else ([], [])
            pk_rd = st - 12 if 12 <= st < 18 else None
            pk_st = st - 13 if 13 <= st < 19 else None
            if pk_rd is not None:
                f = PKF + (st % 2) * 4
                r = r + ["ds_read_b64_tr_b16 %s, %s" % (v(f, 2), v(VPA + pk_rd)),
                         "ds_read_b64_tr_b16 %s, %s offset:%d" % (v(f + 2, 2), v(VPA + pk_rd), 4 * 384)]
            mf = []
            for i in range(4):
                for tt in range(4):
                    mf.append("%s %s, %s, %s, %s" % (M, v(acc(i, tt), 4), a(b + i * 4, 4), a(b + 16 + tt * 4, 4), v(acc(i, tt), 4)))
                if i < 2: mf.append("%s %s, %s, %s, %s" % (M, v(VCS + i * 4, 4), a(b + i * 4, 4), v(VONE, 4), v(VCS + i * 4, 4)))
            for x in pre: e(x)
            dpos = (1, 5, 10, 14)
            for n, m in enumerate(mf):
                dm = None
                if n in dpos and pending_dma:
                    dm = pending_dma.pop(0)
                    for x in dm[0]: e(x)
                e(m)
                if n < len(r): e(r[n])
                if dm: self.vm(dm[1], dm[2])
                if n == 8 and pk_st is not None:
                    f = PKF + ((st - 1) % 2) * 4
                    self.vm("buffer_store_dwordx4 %s, %s, %s, 0 offen sc1" % (v(f, 4), v(VPA + 6 + pk_st), s(S_WS, 4)), "pkst")
                if n == 16 and st == 15: self.nonce_issue(VN)
                if n == 16 and st == 17:
                    e("s_lshl_b32 s44, %s, 7" % s(S_M1)); e("s_lshr_b32 s45, %s, 1" % s(S_W)); e("s_lshl_b32 s45, s45, 6"); e("s_add_u32 s44, s44, s45")
                    e("v_add_u32 %s, s44, %s" % (v(t0), v(V_C))); e("v_lshlrev_b32 %s, 4, %s" % (v(t0), v(t0)))
                    e("v_add_u32 %s, 0x%x, %s" % (v(19), WS_STAT, v(t0)))
                    for tt in range(4):
                        self.vm("buffer_load_dwordx4 %s, %s, %s, 0 offen offset:%d sc1" % (v(VST + tt * 4, 4), v(19), s(S_WS, 4), tt * 256), "stat")
            assert st < NS - 1 or not pending_dma
        self.stamp()
        self.c("P1 epilogue")
        e("s_lshr_b32 s44, %s, 1" % s(S_W)); e("s_and_b32 s45, %s, 1" % s(S_W)); e("s_lshl_b32 s45, s45, 1")
        e("s_add_u32 s46, s44, s45")
        e("s_xor_b32 s44, s44, 1"); e("s_add_u32 s50, s44, s45")
        e("s_lshl_b32 s51, s46, 7"); e("s_add_u32 s51, s51, 0x%x" % CS_OFF)
        e("v_lshlrev_b32 %s, 4, %s" % (v(t0), v(V_G)))
        e("v_add_u32 %s, s51, %s" % (v(t1), v(t0)))
        e("v_cmp_eq_u32 vcc, 0, %s" % v(V_C))
        e("s_and_saveexec_b64 s[52:53], vcc")
        e("ds_write_b128 %s, %s" % (v(t1), v(VCS, 4)))
        e("ds_write_b128 %s, %s offset:64" % (v(t1), v(VCS + 4, 4)))
        e("s_mov_b64 exec, s[52:53]")
        e("s_mov_b32 s61, s46")
        self.nonce_get(VN)
        self.vm_wait("stat")
        l0 = self.newlabel("SR"); l1 = self.newlabel("SD")
        e("s_mov_b32 s44, 0")
        self.label(l0)
        e("s_mov_b64 s[52:53], -1")
        for tt in range(4):
            e("v_cmp_eq_u32 s[54:55], %s, %s" % (s(S_NONCE), v(VST + tt * 4 + 2)))
            e("v_cmp_eq_u32 s[56:57], %s, %s" % (s(S_NONCE + 1), v(VST + tt * 4 + 3)))
            e("s_and_b64 s[52:53], s[52:53], s[54:55]"); e("s_and_b64 s[52:53], s[52:53], s[56:57]")
        e("s_cmp_eq_u64 s[52:53], -1"); e("s_cbranch_scc1 %s" % l1)
        e("s_add_u32 s44, s44, 1"); e("s_cmp_gt_u32 s44, 20000"); e("s_cbranch_scc1 %s" % l1)
        for tt in range(4):
            e("buffer_load_dwordx4 %s, %s, %s, 0 offen offset:%d sc1" % (v(VST + tt * 4, 4), v(19), s(S_WS, 4), tt * 256))
        e("s_waitcnt vmcnt(0)")
        e("s_branch %s" % l0)
        self.label(l1)
        e("s_waitcnt lgkmcnt(0)")
        e("s_barrier")
        CSV = 146
        e("s_lshl_b32 s52, s50, 7"); e("s_add_u32 s52, s52, 0x%x" % CS_OFF)
        e("v_add_u32 %s, s52, %s" % (v(t1), v(t0)))
        e("ds_read_b128 %s, %s" % (v(CSV + 8, 4), v(t1)))
        e("ds_read_b128 %s, %s offset:64" % (v(CSV + 12, 4), v(t1)))
        for i in range(8): e("v_mov_b32 %s, %s" % (v(CSV + i), v(VCS + i)))
        qs = math.log2(math.e) / math.sqrt(20.0)
        e("s_cmp_lt_u32 %s, 5" % s(S_N1)); e("s_mov_b32 s53, 0x3f800000"); e("s_cselect_b32 s53, 0x%x, s53" % f2u(qs))
        for tt in range(4):
            e("v_mul_f32 %s, s53, %s" % (v(VST + tt * 4 + 1), v(VST + tt * 4 + 1)))
            e("v_xor_b32 %s, 0x80000000, %s" % (v(VST + tt * 4), v(VST + tt * 4)))
        e("v_lshlrev_b32 %s, 11, %s" % (v(t2), v(V_G))); e("v_add_u32 %s, %s, %s" % (v(t2), v(t2), v(V_C))); e("v_lshlrev_b32 %s, 4, %s" % (v(t2), v(t2)))
        e("s_lshl_b32 s54, %s, 7" % s(S_M1)); e("s_lshr_b32 s55, %s, 1" % s(S_W)); e("s_lshl_b32 s55, s55, 6"); e("s_add_u32 s54, s54, s55")
        e("s_lshl_b32 s55, %s, 4" % s(S_N1))
        for q, sp in ((0, 61), (1, 50)):
            e("s_lshl_b32 s56, %s, 2" % s(sp)); e("s_add_u32 s56, s56, s55"); e("s_lshl_b32 s56, s56, 11"); e("s_add_u32 s56, s56, s54")
            e("s_lshl_b32 s56, s56, 4"); e("s_add_u32 %s, s56, 0x%x" % (s(58 + q), WS_QKV))
        e("s_waitcnt lgkmcnt(0)")
        OUTR = 188
        n = 0
        for q in range(2):
            for tt in range(4):
                nm = VST + tt * 4
                P = []
                for hf in range(2):
                    i = 2 * q + hf; A_ = acc(i, tt)
                    for h in range(2):
                        e("v_pk_fma_f32 %s, %s, %s, %s op_sel_hi:[1,0,1]" % (v(A_ + 2 * h, 2), v(CSV + i * 4 + 2 * h, 2), v(nm, 2), v(A_ + 2 * h, 2)))
                    for h in range(2):
                        e("v_pk_mul_f32 %s, %s, %s op_sel:[0,1] op_sel_hi:[1,1]" % (v(A_ + 2 * h, 2), v(A_ + 2 * h, 2), v(nm, 2)))
                    e("v_cvt_pk_bf16_f32 %s, %s, %s" % (v(A_), v(A_), v(A_ + 1)))
                    e("v_cvt_pk_bf16_f32 %s, %s, %s" % (v(A_ + 1), v(A_ + 2), v(A_ + 3)))
                    P.append(A_)
                O4 = OUTR + (n % 4) * 4
                e("v_cndmask_b32 %s, %s, %s, %s" % (v(O4), v(P[0]), v(P[1]), s(S_ODD, 2)))
                e("v_cndmask_b32 %s, %s, %s, %s" % (v(O4 + 1), v(P[0] + 1), v(P[1] + 1), s(S_ODD, 2)))
                e("v_cndmask_b32 %s, %s, %s, %s" % (v(O4 + 2), v(P[1]), v(P[0]), s(S_ODD, 2)))
                e("v_cndmask_b32 %s, %s, %s, %s" % (v(O4 + 3), v(P[1] + 1), v(P[0] + 1), s(S_ODD, 2)))
                self.vm("buffer_store_dwordx4 %s, %s, %s, %s offen offset:%d sc1" % (v(O4, 4), v(t2), s(S_WS, 4), s(58 + q), tt * 256), "qkvst")
                n += 1
        self.vm_wait("qkvst")
        e("s_branch %s" % lab_j)
        self.label(lab_h)
        self.prologue2()
        self.p1_helper()
        self.label(lab_j)
        self.stamp()
        e("s_barrier")
        e("s_lshl_b32 s52, %s, 4" % s(S_M1)); e("s_add_u32 s52, s52, %s" % s(S_N1))
        e("s_mov_b32 s89, s52")
        self.flag_set(0, 52, TMP)
        self.vmq = []
        self.stamp()

    def wait_all(self, phase, vt, barrier=True, allwaves=False):
        e = self.e
        l = self.newlabel("WA")
        if not allwaves:
            e("s_cmp_lg_u32 %s, 0" % s(S_W)); e("s_cbranch_scc1 %s" % l)
        e("v_lshlrev_b32 %s, 8, %s" % (v(vt), v(V_L)))
        if phase: e("v_add_u32 %s, 0x%x, %s" % (v(vt), WS_FLAGS + phase * 16384, v(vt)))
        self.flag_poll(vt, vt + 2, nloads=4, stride=64)
        self.label(l)
        if barrier: e("s_barrier")
    def poll_group(self, phase, vt):
        e = self.e
        e("s_lshl_b32 s52, %s, 10" % s(S_M3)); e("s_add_u32 s52, s52, 0x%x" % (WS_FLAGS + phase * 16384))
        e("v_lshlrev_b32 %s, 6, %s" % (v(vt), v(V_C)))
        e("v_add_u32 %s, s52, %s" % (v(vt), v(vt)))
        self.flag_poll(vt, vt + 2)
    def job4(self, sbase, blk, pos, tag, vl16=4):
        return (["s_add_u32 m0, %s, 0x%x" % (s(S_W1K), pos * 1024), "s_add_u32 %s, %s, 0x%x" % (s(S_SOFF), s(sbase), blk * 1024)],
                "buffer_load_dwordx4 %s, %s, %s offen sc1 lds" % (v(vl16), s(S_WS, 4), s(S_SOFF)), tag)
    def emit_job(self, j):
        for x in j[0]: self.e(x)
        self.vm(j[1], j[2])
    def dma3(self, sbase, blk0, pos0, njobs, tag, vl16=4):
        e = self.e
        e("s_add_u32 s49, %s, %s" % (s(sbase), s(S_W3)))
        for k in range(njobs):
            e("s_add_u32 m0, %s, 0x%x" % (s(S_W3), (pos0 + 3 * k) * 1024))
            e("s_add_u32 %s, s49, 0x%x" % (s(S_SOFF), (blk0 + 3 * k) * 1024))
            self.vm("buffer_load_dwordx4 %s, %s, %s offen sc1 lds" % (v(vl16), s(S_WS, 4), s(S_SOFF)), tag)
    def group_flag_idx(self):
        self.e("s_lshl_b32 s52, %s, 4" % s(S_M3)); self.e("s_add_u32 s52, s52, %s" % s(S_J3))

    def p2(self):
        e = self.e; o = self.o
        KB, VB, BB, QB, OB = 0, 30720, 62080, 69632, 150 * 1024
        T = 200
        t0, t1, t2, t3 = T, T + 1, T + 2, T + 3
        VL16 = 4
        VKA = 5
        VVA = 8
        VMF, VML = 12, 16
        VQ = 20
        OA = 36
        SB = [56, 124]
        NEG = f2u(-1e30)
        self.c("P2 set-up")
        e("v_lshlrev_b32 %s, 4, %s" % (v(VL16), v(V_L)))
        e("s_lshl_b32 %s, %s, 10" % (s(S_W1K), s(S_W))); e("s_sub_u32 %s, %s, 1024" % (s(S_W3), s(S_W1K)))
        e("s_lshr_b32 %s, %s, 1" % (s(S_NQ), s(S_J3)))
        for sb, sk, sz, base in ((S_B3, S_NQ, 102400, WS_PW3), (S_B4, S_J3, 122880, WS_PW4), (S_B5, S_NQ, 245760, WS_PW5)):
            e("s_mul_i32 %s, %s, %d" % (s(sb), s(sk), sz)); e("s_add_u32 %s, %s, 0x%x" % (s(sb), s(sb), base)); e("s_add_u32 %s, %s, %s" % (s(sb), s(sb), s(S_W1K)))
        e("s_lshl_b32 %s, %s, 3" % (s(S_TI), s(S_M3))); e("s_and_b32 s52, %s, 1" % s(S_J3)); e("s_lshl_b32 s52, s52, 2")
        e("s_add_u32 %s, %s, s52" % (s(S_TI), s(S_TI))); e("s_add_u32 %s, %s, %s" % (s(S_TI), s(S_TI), s(S_W)))
        e("s_lshl_b32 s52, %s, 7" % s(S_M3)); e("s_sub_i32 s52, 256, s52")
        e("v_mov_b32 %s, 0xf149" % v(t0 + 4))
        e("v_mov_b32 %s, 0" % v(t0 + 9)); e("v_mov_b32 %s, 0x3f80" % v(t0 + 10)); e("v_mov_b32 %s, 0" % v(t0 + 11))
        e("v_cmp_gt_i32 vcc, s52, v0")
        e("v_cndmask_b32 %s, 0, %s, vcc" % (v(t0 + 8), v(t0 + 4)))
        e("v_lshlrev_b32 %s, 4, v0" % v(t1)); e("v_add_u32 %s, %d, %s" % (v(t1), BB, v(t1)))
        e("ds_write_b128 %s, %s" % (v(t1), v(t0 + 8, 4)))
        e("v_add_u32 %s, 256, v0" % v(t2))
        e("v_cmp_gt_i32 vcc, s52, %s" % v(t2))
        e("v_cndmask_b32 %s, 0, %s, vcc" % (v(t0 + 12), v(t0 + 4)))
        e("v_mov_b32 %s, 0" % v(t0 + 13)); e("v_mov_b32 %s, 0x3f80" % v(t0 + 14)); e("v_mov_b32 %s, 0" % v(t0 + 15))
        e("v_cmp_gt_u32 vcc, 160, v0")
        e("s_and_saveexec_b64 s[54:55], vcc")
        e("ds_write_b128 %s, %s offset:4096" % (v(t1), v(t0 + 12, 4)))
        e("s_mov_b64 exec, s[54:55]")
        e("s_mul_i32 s55, %s, 5" % s(S_J3))
        e("s_lshl_b32 s56, %s, 7" % s(S_M3)); e("s_sub_i32 s56, s56, 256")
        e("s_cmp_ge_u32 %s, 2" % s(S_W))
        e("s_cselect_b32 s57, -2, 4")
        e("s_cselect_b32 s70, 26624, 0")
        e("s_cselect_b32 s71, 128, 0")
        e("s_add_i32 s57, s57, %s" % s(S_W))
        for k, (reg, add) in enumerate(((S_W, 0), (57, 0), (S_W, 2))):
            e("s_add_i32 s58, %s, %d" % (s(reg), add)); e("s_lshl_b32 s58, s58, 6"); e("s_add_i32 s58, s58, s56"); e("s_cmp_lt_i32 s58, 0")
            e("s_cselect_b32 %s, 0x%x, 0" % (s(64 + k), BIGOFF))
        e("s_add_u32 s65, s65, s70")
        e("s_lshl_b32 s56, s56, 4"); e("s_add_u32 s56, s56, %s" % s(S_W1K))
        e("s_add_u32 s58, s55, 80"); e("s_lshl_b32 s58, s58, 15"); e("s_add_u32 s58, s58, 0x%x" % WS_QKV); e("s_add_u32 s68, s58, s56")
        e("s_add_u32 s69, s68, 0x%x" % (80 << 15))
        e("s_lshr_b32 s58, %s, 1" % s(S_W)); e("s_add_u32 s58, s58, s55"); e("s_lshl_b32 s58, s58, 15"); e("s_lshl_b32 s59, %s, 11" % s(S_M3)); e("s_add_u32 s58, s58, s59")
        e("s_and_b32 s59, %s, 1" % s(S_W)); e("s_lshl_b32 s59, s59, 10"); e("s_add_u32 s58, s58, s59"); e("s_add_u32 s72, s58, 0x%x" % WS_QKV)
        self.c("fragment addresses and masks")
        e("s_lshl_b32 s57, %s, 5" % s(S_W)); e("v_add_u32 %s, s57, %s" % (v(t0), v(V_C))); e("v_lshlrev_b32 %s, 4, %s" % (v(t0), v(t0)))
        e("v_cmp_eq_u32 s[58:59], 3, %s" % v(V_G)); e("v_cmp_eq_u32 s[60:61], 2, %s" % v(V_G))
        e("v_mul_u32_u24 %s, 6144, %s" % (v(t1), v(V_G)))
        e("v_mov_b32 %s, %d" % (v(t2), BB))
        e("v_cndmask_b32 %s, %s, %s, s[58:59]" % (v(VKA), v(t1), v(t2)))
        e("v_add_u32 %s, %d, %s" % (v(t3), 3 * 6144, v(t1)))
        e("v_mov_b32 %s, %d" % (v(t0 + 4), 2 * 6144))
        e("v_cndmask_b32 %s, %s, %s, s[60:61]" % (v(t3), v(t3), v(t0 + 4)))
        e("v_cndmask_b32 %s, %s, %s, s[58:59]" % (v(VKA + 1), v(t3), v(t2)))
        e("v_add_u32 %s, %s, %s" % (v(VKA), v(VKA), v(t0))); e("v_add_u32 %s, %s, %s" % (v(VKA + 1), v(VKA + 1), v(t0)))
        VQA = 52
        e("v_lshlrev_b32 %s, 11, %s" % (v(t1), v(V_G)))
        e("v_cndmask_b32 %s, %s, 0, s[58:59]" % (v(VQA), v(t1)))
        e("v_add_u32 %s, %d, %s" % (v(t3), 3 * 2048, v(t1))); e("v_mov_b32 %s, %d" % (v(t0 + 4), 2 * 2048))
        e("v_cndmask_b32 %s, %s, %s, s[60:61]" % (v(t3), v(t3), v(t0 + 4)))
        e("v_cndmask_b32 %s, %s, 0, s[58:59]" % (v(VQA + 1), v(t3)))
        e("v_add_u32 %s, %d, %s" % (v(t3), QB, v(t0)))
        for h in range(2): e("v_add_u32 %s, %s, %s" % (v(VQA + h), v(VQA + h), v(t3)))
        e("v_lshrrev_b32 %s, 2, %s" % (v(t0), v(V_C))); e("v_lshl_add_u32 %s, %s, 2, %s" % (v(t0), v(V_G), v(t0)))
        e("v_add_u32 %s, s57, %s" % (v(t0), v(t0))); e("v_lshlrev_b32 %s, 4, %s" % (v(t0), v(t0)))
        e("v_and_b32 %s, 3, %s" % (v(t1), v(V_L)))
        for h in range(2):
            e("v_add_u32 %s, %d, %s" % (v(t2), 5 * h, v(t1)))
            e("v_lshrrev_b32 %s, 1, %s" % (v(t3), v(t2))); e("v_mul_u32_u24 %s, 6272, %s" % (v(t3), v(t3)))
            e("v_and_b32 %s, 1, %s" % (v(t2), v(t2))); e("v_lshl_add_u32 %s, %s, 3, %s" % (v(t3), v(t2), v(t3)))
            e("v_add_u32 %s, %s, %s" % (v(VVA + 2 * h), v(t3), v(t0)))
            e("v_add_u32 %s, %d, %s" % (v(VVA + 2 * h), VB, v(VVA + 2 * h)))
            X = 5 * h + 4
            e("v_and_b32 %s, 1, %s" % (v(t2), v(t1))); e("v_cmp_eq_u32 vcc, 1, %s" % v(t2))
            e("v_mov_b32 %s, %d" % (v(t3), VB + (X >> 1) * 6272 + (X & 1) * 8)); e("v_mov_b32 %s, %d" % (v(t0 + 4), BB + 8))
            e("v_cndmask_b32 %s, %s, %s, vcc" % (v(t3), v(t3), v(t0 + 4)))
            e("v_add_u32 %s, %s, %s" % (v(VVA + 2 * h + 1), v(t3), v(t0)))
        e("v_lshlrev_b32 %s, 2, %s" % (v(t0), v(V_G))); e("v_mov_b32 %s, 0x%x" % (v(t1), NEG))
        for i in range(4):
            e("v_add_u32 %s, %d, %s" % (v(t2), i, v(t0)))
            e("v_cmp_gt_u32 vcc, %s, %s" % (v(t2), v(V_C)))
            e("v_cndmask_b32 %s, %s, 0, vcc" % (v(VMF + i), v(t1)))
            e("v_cndmask_b32 %s, 0, %s, vcc" % (v(VML + i), v(t1)))
        VOW = 54
        e("s_mul_i32 %s, %s, 2560" % (s(S_OST), s(S_W))); e("s_add_u32 %s, %s, %d" % (s(S_OST), s(S_OST), OB))
        e("v_mul_u32_u24 %s, 80, %s" % (v(VOW), v(V_C))); e("v_lshl_add_u32 %s, %s, 3, %s" % (v(VOW), v(V_G), v(VOW))); e("v_add_u32 %s, %s, %s" % (v(VOW), s(S_OST), v(VOW)))
        e("s_waitcnt vmcnt(0) lgkmcnt(0)")
        e("s_barrier")
        self.flag_set(4, 89, T + 20)
        self.wait_all(0, T + 20)
        self.stamp()
        self.vmq = []
        def kvjob(base_s, ldsb, pitch, u, pat, tag):
            g = u * 32768 + (0, 4096, 32768 + 2048)[pat]
            l = ldsb + u * pitch + (0, 4096, pitch + 2048)[pat]
            e("s_add_u32 m0, %s, %d" % (s(S_W1K), l))
            if pat == 1 and pitch != 6144: e("s_add_u32 m0, m0, s71")
            e("s_add_u32 %s, %s, %s" % (s(S_SOFF), s(base_s), s(64 + pat)))
            if g: e("s_add_u32 %s, %s, %d" % (s(S_SOFF), s(S_SOFF), g))
            self.vm("buffer_load_dwordx4 %s, %s, %s offen sc1 lds" % (v(VL16), s(S_WS, 4), s(S_SOFF)), tag)
        def halfjob(base_s, ldsb, pitch, u, tag):
            e("s_cmp_ge_u32 %s, 2" % s(S_W))
            e("s_cselect_b32 s58, %d, %d" % (156 * 1024 - 2048, 0) if False else "s_mov_b32 s58, %d" % (ldsb + u * pitch + 4096))
            e("s_cselect_b32 s58, %d, s58" % (76 * 1024))
            e("s_add_u32 m0, %s, s58" % s(S_W1K))
            e("s_cselect_b32 s58, 0x%x, s65" % BIGOFF if False else "s_cmp_ge_u32 %s, 2" % s(S_W))
            e("s_cselect_b32 s58, 0x%x, s65" % BIGOFF)
            e("s_add_u32 %s, %s, s58" % (s(S_SOFF), s(base_s))); e("s_add_u32 %s, %s, %d" % (s(S_SOFF), s(S_SOFF), u * 32768 + 4096))
            self.vm("buffer_load_dwordx4 %s, %s, %s offen sc1 lds" % (v(VL16), s(S_WS, 4), s(S_SOFF)), tag)
        def qjob(u0, tag):
            e("s_add_u32 m0, %s, %d" % (s(S_W1K), QB + u0 * 2048))
            if u0 == 4:
                e("s_cmp_ge_u32 %s, 2" % s(S_W)); e("s_cselect_b32 s58, 0x%x, 0" % BIGOFF); e("s_add_u32 %s, s72, s58" % s(S_SOFF))
                e("s_add_u32 %s, %s, %d" % (s(S_SOFF), s(S_SOFF), u0 * 32768))
            else:
                e("s_add_u32 %s, s72, %d" % (s(S_SOFF), u0 * 32768))
            self.vm("buffer_load_dwordx4 %s, %s, %s offen sc1 lds" % (v(VL16), s(S_WS, 4), s(S_SOFF)), tag)
        for u in (0, 2):
            for pat in range(3): kvjob(68, KB, 6144, u, pat, "kq")
            qjob(u, "kq")
        qjob(4, "kq")
        for u in (0, 2):
            for pat in range(3): kvjob(69, VB, 6272, u, pat, "rest")
        for base_s, ldsb, pitch in ((68, KB, 6144), (69, VB, 6272)):
            kvjob(base_s, ldsb, pitch, 4, 0, "rest"); halfjob(base_s, ldsb, pitch, 4, "rest")
        lw = self.newlabel("FP")
        e("s_cmp_lg_u32 %s, 0" % s(S_W)); e("s_cbranch_scc1 %s" % lw)
        e("v_lshlrev_b32 %s, 8, %s" % (v(T + 20), v(V_L))); e("v_add_u32 %s, 0x%x, %s" % (v(T + 20), WS_FLAGS + 4 * 16384, v(T + 20)))
        for k in range(4):
            e("buffer_load_dwordx2 %s, %s, %s, 0 offen offset:%d sc1" % (v(T + 22 + 2 * k, 2), v(T + 20), s(S_WS, 4), k * 64))
        e("s_waitcnt vmcnt(14)")
        e("s_branch %s_j" % lw)
        self.label(lw)
        self.vm_wait("kq")
        self.label(lw + "_j")
        e("s_waitcnt lgkmcnt(0)")
        e("s_barrier")
        self.stamp()
        self.c("fragment loads")
        KF = [0, 72]; VF = [144, 0]
        def k_reads(h): return ["ds_read_b128 %s, %s offset:%d" % (a(KF[h] + B * 4, 4), v(VKA + h), B * 256) for B in range(18)]
        def v_reads(h):
            r = []
            for p in range(9):
                for dt in range(2):
                    d = VF[h] + (p * 2 + dt) * 4
                    r.append("ds_read_b64_tr_b16 %s, %s offset:%d" % (a(d, 2), v(VVA + 2 * h + dt), p * 512))
                    r.append("ds_read_b64_tr_b16 %s, %s offset:%d" % (a(d + 2, 2), v(VVA + 2 * h + dt), p * 512 + 256))
            return r
        for h in range(2):
            for qs in range(2):
                e("ds_read_b128 %s, %s offset:%d" % (v(VQ + (h * 2 + qs) * 4, 4), v(VQA + h), qs * 256))
        for x in k_reads(0)[:11]: e(x)
        e("v_cmp_eq_u32 s[58:59], 3, %s" % v(V_G)); e("v_cmp_eq_u32 s[60:61], 2, %s" % v(V_G))
        e("s_waitcnt lgkmcnt(11)")
        e("v_mov_b32 %s, 0x3f80" % v(t1))
        for h in range(2):
            for qs in range(2):
                q = VQ + (h * 2 + qs) * 4
                z = (2, 3) if h == 0 else (0, 1)
                for i in z: e("v_cndmask_b32 %s, %s, 0, s[60:61]" % (v(q + i), v(q + i)))
                e("v_cndmask_b32 %s, %s, %s, s[58:59]" % (v(q), v(q), v(t1)))
                for i in range(1, 4): e("v_cndmask_b32 %s, %s, 0, s[58:59]" % (v(q + i), v(q + i)))
        e("s_waitcnt lgkmcnt(8)")
        for x in k_reads(0)[11:]: e(x)
        tasks = [(0, 0), (0, 1), (1, 0), (1, 1)]
        def A(ti):
            h, qs = tasks[ti]; S = SB[ti % 2]; r = []
            for b in range(17):
                C = v(VMF, 4) if b == 0 else (v(VML, 4) if b == 16 else "0")
                r.append("%s %s, %s, %s, %s" % (M, v(S + b * 4, 4), a(KF[h] + (qs + b) * 4, 4), v(VQ + (h * 2 + qs) * 4, 4), C))
            return r
        MX = T + 8
        def Bst(ti):
            S = SB[ti % 2]
            vals = [S + i for i in range(68)]
            ins = []
            for c4 in range(4):
                ins.append("v_max3_f32 %s, %s, %s, %s" % (v(MX + c4), v(vals[3 * c4]), v(vals[3 * c4 + 1]), v(vals[3 * c4 + 2])))
            k = 12; ch = 0
            while k < 68:
                ins.append("v_max3_f32 %s, %s, %s, %s" % (v(MX + ch), v(MX + ch), v(vals[k]), v(vals[k + 1]))); k += 2; ch = (ch + 1) % 4
            groups = [ins[i:i + 2] for i in range(0, len(ins), 2)]
            tail = ["v_max3_f32 %s, %s, %s, %s" % (v(MX), v(MX), v(MX + 1), v(MX + 2)), "v_max_f32 %s, %s, %s" % (v(MX), v(MX), v(MX + 3)),
                    "v_mov_b32 %s, %s" % (v(MX + 1), v(MX)), "s_nop 0", "v_permlane16_swap_b32 %s, %s" % (v(MX), v(MX + 1)), "v_max_f32 %s, %s, %s" % (v(MX), v(MX), v(MX + 1)),
                    "v_mov_b32 %s, %s" % (v(MX + 1), v(MX)), "s_nop 0", "v_permlane32_swap_b32 %s, %s" % (v(MX), v(MX + 1)), "v_max_f32 %s, %s, %s" % (v(MX + 4), v(MX), v(MX + 1))]
            return groups, tail
        def Cst(ti):
            h, qs = tasks[ti]; S = SB[ti % 2]
            def adds(b):
                q = S + b * 4
                return ["v_pk_add_f32 %s, %s, %s op_sel_hi:[1,0] neg_lo:[0,1] neg_hi:[0,1]" % (v(q + 2 * hh, 2), v(q + 2 * hh, 2), v(MX + 4, 2)) for hh in range(2)]
            def cvts(b):
                q = S + b * 4; B = qs + b; r = []
                if B % 2 == 0:
                    r.append("v_cvt_pk_bf16_f32 %s, %s, %s" % (v(q), v(q), v(q + 1)))
                    r.append("v_cvt_pk_bf16_f32 %s, %s, %s" % (v(q + 1), v(q + 2), v(q + 3)))
                    if B == 16 and qs == 0: r += ["v_mov_b32 %s, 0" % v(q + 2), "v_mov_b32 %s, 0" % v(q + 3)]
                elif b == 0:
                    r.append("v_cvt_pk_bf16_f32 %s, %s, %s" % (v(q + 3), v(q + 2), v(q + 3)))
                    r.append("v_cvt_pk_bf16_f32 %s, %s, %s" % (v(q + 2), v(q), v(q + 1)))
                    r += ["v_mov_b32 %s, 0" % v(q), "v_mov_b32 %s, 0" % v(q + 1)]
                else:
                    r.append("v_cvt_pk_bf16_f32 %s, %s, %s" % (v(q - 2), v(q), v(q + 1)))
                    r.append("v_cvt_pk_bf16_f32 %s, %s, %s" % (v(q - 1), v(q + 2), v(q + 3)))
                return r
            head = adds(0)
            groups = []
            for b in range(17):
                q = S + b * 4
                groups.append(["v_exp_f32 %s, %s" % (v(q + i), v(q + i)) for i in range(4)] + (adds(b + 1) if b < 16 else []) + cvts(b))
            return head, groups
        def pfrag(ti, p):
            h, qs = tasks[ti]; S = SB[ti % 2]
            if qs == 0: return S + (2 * p) * 4
            return S + (0 if p == 0 else (2 * p - 1)) * 4
        def D(ti):
            h, qs = tasks[ti]; r = []
            for p in range(9):
                for dt in range(2):
                    d = OA + (ti % 2) * 8 + dt * 4
                    r.append("%s %s, %s, %s, %s" % (M, v(d, 4), a(VF[h] + (p * 2 + dt) * 4, 4), v(pfrag(ti, p), 4), v(d, 4) if p else "0"))
            return r
        def E(ti):
            h, qs = tasks[ti]; d = OA + (ti % 2) * 8; L = T + 14; r = []
            r += ["v_mov_b32 %s, %s" % (v(L), v(d + 4)), "v_mov_b32 %s, %s" % (v(L + 1), v(d + 4)),
                  "v_permlane16_swap_b32 %s, %s" % (v(L), v(L + 1)), "v_rcp_f32 %s, %s" % (v(L + 2), v(L + 1))]
            for hh in range(2):
                r.append("v_pk_mul_f32 %s, %s, %s op_sel_hi:[1,0]" % (v(d + 2 * hh, 2), v(d + 2 * hh, 2), v(L + 2, 2)))
                r.append("v_pk_mul_f32 %s, %s, %s op_sel_hi:[1,0]" % (v(d + 4 + 2 * hh, 2), v(d + 4 + 2 * hh, 2), v(L + 2, 2)))
            r += ["v_cvt_pk_bf16_f32 %s, %s, %s" % (v(d), v(d), v(d + 1)), "v_cvt_pk_bf16_f32 %s, %s, %s" % (v(d + 1), v(d + 2), v(d + 3)),
                  "v_cvt_pk_bf16_f32 %s, %s, %s" % (v(d + 4), v(d + 4), v(d + 5)), "v_cvt_pk_bf16_f32 %s, %s, %s" % (v(d + 5), v(d + 6), v(d + 7)),
                  "ds_write_b64 %s, %s offset:%d" % (v(VOW), v(d, 2), qs * 1280 + h * 40),
                  "s_mov_b64 exec, 0xffff",
                  "ds_write_b64 %s, %s offset:%d" % (v(VOW), v(d + 4, 2), qs * 1280 + h * 40 + 32),
                  "s_mov_b64 exec, -1"]
            return r
        def stage(ti, mB, mC, lds, jobs, mid=None):
            groups, tail = Bst(ti)
            mB = list(mB); mC = list(mC); lds = list(lds); jobs = list(jobs)
            for gi, gr in enumerate(groups):
                if mB: e(mB.pop(0))
                for x in gr: e(x)
            for x in mB: e(x)
            for x in tail: e(x)
            if mid: mid()
            head, cg = Cst(ti)
            for x in head: e(x)
            per = (len(lds) + 16) // 17
            for b, gr in enumerate(cg):
                if mC: e(mC.pop(0))
                jb = None
                if jobs and b >= 0:
                    jb = jobs.pop(0)
                    for x in jb[0]: e(x)
                for x in gr[:4]: e(x)
                if lds: e("s_waitcnt lgkmcnt(%d)" % (15 - per))
                for _ in range(per):
                    if lds: e(lds.pop(0))
                for x in gr[4:]: e(x)
                if jb: self.vm(jb[1], jb[2])
            for x in mC: e(x)
            for x in lds: e(x)
            for jb in jobs: self.emit_job(jb)
        W0 = ["s_waitcnt lgkmcnt(0)"]
        def chunked(r):
            out = []
            return list(r)
        wo_a = [self.job4(S_B3, 4 * k, 80 + 4 * k, "w3a") for k in range(17)]
        wo_b = [self.job4(S_B3, 68 + 4 * k, 4 * k, "w3b") for k in range(8)]
        w1_a = [self.job4(S_B4, 4 * k, 32 + 4 * k, "w4a") for k in range(12)]
        def touch(sbase, first_blk, n8k, who, nshare):
            r = []
            for k in range((n8k + 3) // 4):
                su = ["s_mul_i32 s58, %s, %d" % (s(who), n8k * 8192), "s_add_u32 s58, s58, %s" % s(sbase), "s_mul_i32 s59, %s, 7168" % s(S_W),
                      "s_add_u32 s58, s58, s59", "s_add_u32 %s, s58, %d" % (s(S_SOFF), first_blk * 1024 + k * 32768)]
                r.append((su, "buffer_load_dword v%d, v198, %s, %s offen" % (192 + k, s(S_WS, 4), s(S_SOFF)), "touch"))
            return r
        e("v_lshlrev_b32 v198, 7, %s" % v(V_L))
        e("s_and_b32 s73, %s, 1" % s(S_M3))
        e("s_lshl_b32 s74, s73, 1"); e("s_and_b32 s58, %s, 1" % s(S_J3)); e("s_add_u32 s74, s74, s58")
        tch = touch(S_B4, 48, 5, 73, 2) if o.get("pf2", 1) else []
        self.vmq = []
        e("s_waitcnt lgkmcnt(0)")
        for x in A(0): e(x)
        if o.get("fine2"): self.stamp()
        def sync2():
            lw = self.newlabel("S2")
            if o.get("fine2"): self.stamp()
            e("s_waitcnt vmcnt(0)")
            e("s_cmp_lg_u32 %s, 0" % s(S_W)); e("s_cbranch_scc1 %s" % lw)
            e("s_mov_b64 s[50:51], -1")
            for k in range(4):
                e("v_cmp_eq_u32 s[46:47], %s, %s" % (s(S_NONCE), v(T + 22 + 2 * k))); e("v_cmp_eq_u32 s[48:49], %s, %s" % (s(S_NONCE + 1), v(T + 23 + 2 * k)))
                e("s_and_b64 s[50:51], s[50:51], s[46:47]"); e("s_and_b64 s[50:51], s[50:51], s[48:49]")
            e("s_cmp_eq_u64 s[50:51], -1"); e("s_cbranch_scc1 %s" % lw)
            self.flag_poll(T + 20, T + 22, nloads=4, stride=64)
            self.label(lw)
            e("s_barrier")
            if o.get("fine2"): self.stamp()
        stage(0, A(1), [], chunked(v_reads(0)) + chunked(k_reads(1)), [], mid=sync2)
        e("s_waitcnt lgkmcnt(0)")
        if o.get("fine2"): self.stamp()
        stage(1, D(0)[:17], D(0)[17:] + A(2)[:16], chunked(v_reads(1)), wo_a)
        for x in A(2)[16:]: e(x)
        e("s_waitcnt lgkmcnt(0)")
        e("s_barrier")
        if o.get("fine2"): self.stamp()
        for x in E(0): e(x)
        stage(2, D(1)[:17], D(1)[17:] + A(3)[:16], [], wo_b + w1_a[:6])
        for x in A(3)[16:]: e(x)
        for x in E(1): e(x)
        if o.get("fine2"): self.stamp()
        stage(3, D(2)[:17], D(2)[17:], [], w1_a[6:] + tch)
        for x in E(2): e(x)
        for x in D(3): e(x)
        for x in E(3): e(x)
        self.stamp()
        self.c("o: staging -> fragment-major global")
        e("v_mul_u32_u24 %s, 80, %s" % (v(t0), v(V_C))); e("v_add_u32 %s, %s, %s" % (v(t0), s(S_OST), v(t0)))
        e("v_lshl_add_u32 %s, %s, 4, %s" % (v(t1), v(V_G), v(t0)))
        e("v_mul_u32_u24 %s, 1280, %s" % (v(t2), v(V_G))); e("v_add_u32 %s, %s, %s" % (v(t2), v(t2), v(t0)))
        e("v_min_u32 %s, %d, %s" % (v(t2), OB + 4 * 2560 - 80, v(t2)))
        e("s_waitcnt lgkmcnt(0)")
        R = 56
        e("ds_read_b128 %s, %s" % (v(R, 4), v(t1)))
        e("ds_read_b128 %s, %s offset:1280" % (v(R + 4, 4), v(t1)))
        e("ds_read_b128 %s, %s offset:64" % (v(R + 8, 4), v(t2)))
        e("s_mul_i32 s55, %s, 5" % s(S_J3))
        e("s_lshl_b32 s58, %s, 3" % s(S_M3)); e("s_lshl_b32 s59, %s, 1" % s(S_W)); e("s_add_u32 s58, s58, s59"); e("s_mul_i32 s58, s58, 20480")
        e("s_add_u32 s58, s58, 0x%x" % WS_O)
        e("v_add_u32 %s, s55, %s" % (v(t0), v(V_G)))
        e("v_lshrrev_b32 %s, 2, %s" % (v(t1), v(t0))); e("v_lshlrev_b32 %s, 10, %s" % (v(t1), v(t1)))
        e("v_and_b32 %s, 3, %s" % (v(t0), v(t0))); e("v_lshl_add_u32 %s, %s, 8, %s" % (v(t1), v(t0), v(t1)))
        e("v_lshl_add_u32 %s, %s, 4, %s" % (v(t1), v(V_C), v(t1)))
        e("s_add_u32 s59, s55, 4"); e("s_lshr_b32 s60, s59, 2"); e("s_lshl_b32 s60, s60, 10"); e("s_and_b32 s59, s59, 3"); e("s_lshl_b32 s59, s59, 8"); e("s_add_u32 s60, s60, s59")
        e("v_mul_u32_u24 %s, 20480, %s" % (v(t3), v(V_G))); e("v_lshl_add_u32 %s, %s, 4, %s" % (v(t3), v(V_C), v(t3))); e("v_add_u32 %s, s60, %s" % (v(t3), v(t3)))
        e("s_waitcnt lgkmcnt(0)")
        self.vm("buffer_store_dwordx4 %s, %s, %s, s58 offen sc1" % (v(R, 4), v(t1), s(S_WS, 4)), "ost")
        e("s_add_u32 s59, s58, 20480")
        self.vm("buffer_store_dwordx4 %s, %s, %s, s59 offen sc1" % (v(R + 4, 4), v(t1), s(S_WS, 4)), "ost")
        e("s_mov_b64 exec, 0xffffffff")
        self.vm("buffer_store_dwordx4 %s, %s, %s, s58 offen sc1" % (v(R + 8, 4), v(t3), s(S_WS, 4)), "ost")
        e("s_mov_b64 exec, -1")

    def handoff(self, phase, jobs):
        e = self.e
        l2 = self.newlabel("H2")
        for j in jobs: self.emit_job(j)
        e("s_waitcnt vmcnt(%d)" % len(jobs))
        e("s_barrier")
        self.stamp()
        e("s_cmp_lg_u32 %s, 0" % s(S_W)); e("s_cbranch_scc1 %s" % l2)
        self.group_flag_idx()
        self.flag_set(phase, 52, 212, checkwave=False)
        self.poll_group(phase, 212)
        self.label(l2)
        e("s_waitcnt vmcnt(0)")
        e("s_barrier")
        self.stamp()

    def gemm_small(self, NS, VL16, ACC, pos, bfrag, btag, RING, T, hooks, slots):
        e = self.e
        VA = T + 16
        def rd(st):
            r = []
            for t in range(5):
                off = pos(st * 5 + t) * 1024
                r.append("ds_read_b128 %s, %s offset:%d" % (a(RING + ((st % 3) * 5 + t) * 4, 4), v(VA + off // 65536), off % 65536))
            return r
        for x in rd(0) + rd(1): e(x)
        for st in range(NS):
            if st in hooks: hooks[st]()
            self.vm_wait(btag(st), " lgkmcnt(%d)" % (5 if st + 1 < NS else 0))
            nx = rd(st + 2) if st + 2 < NS else []
            jobs = list(slots(st))
            for t in range(5):
                jb = None
                if jobs and t in (0, 2, 4):
                    jb = jobs.pop(0)
                    for x in jb[0]: e(x)
                e("%s %s, %s, %s, %s" % (M, v(ACC + t * 4, 4), a(RING + ((st % 3) * 5 + t) * 4, 4), a(bfrag(st), 4), v(ACC + t * 4, 4)))
                if t < len(nx): e(nx[t])
                if jb: self.vm(jb[1], jb[2])
            for jb in jobs: self.emit_job(jb)

    def frag_job(self, dst, sreg, idx, tag, VL16=4):
        su = []
        if idx % 4 == 0 and idx > 0: su = ["s_add_u32 %s, %s, 4096" % (s(sreg), s(sreg))]
        return (su, "buffer_load_dwordx4 %s, %s, %s, %s offen offset:%d sc1" % (a(dst, 4), v(VL16), s(S_WS, 4), s(sreg), (idx % 4) * 1024), tag)

    def p3(self):
        e = self.e; o = self.o
        VL16 = 4; T = 200; t0, t1, t2, t3 = T, T + 1, T + 2, T + 3
        XR = 8
        ACC = 32
        HR = 240
        self.c("P2 -> P3 hand-off")
        VA = T + 16
        e("v_mov_b32 %s, %s" % (v(VA), v(VL16))); e("v_add_u32 %s, 0x10000, %s" % (v(VA + 1), v(VL16))); e("v_add_u32 %s, 0x20000, %s" % (v(VA + 2), v(VL16)))
        for i in range(20): e("v_mov_b32 %s, 0" % v(ACC + i))
        e("s_lshl_b32 s54, %s, 4" % s(S_TI)); e("v_add_u32 %s, s54, %s" % (v(t0), v(V_C))); e("v_mul_u32_u24 %s, 1280, %s" % (v(t0), v(t0)))
        e("s_mul_i32 s54, %s, 160" % s(S_NQ))
        e("v_lshl_add_u32 %s, %s, 4, %s" % (v(t1), v(V_G), v(t0))); e("v_add_u32 %s, s54, %s" % (v(20), v(t1)))
        e("v_lshl_add_u32 %s, %s, 3, %s" % (v(t1), v(V_G), v(t0))); e("v_add_u32 %s, s54, %s" % (v(21), v(t1)))
        e("s_waitcnt lgkmcnt(0)")
        e("s_barrier")
        self.handoff(1, [])
        self.c("P3 main")
        e("s_mul_i32 s54, %s, 20480" % s(S_TI)); e("s_add_u32 s54, s54, 0x%x" % WS_O)
        fj = [self.frag_job(st * 4, 54, st, ("of", st)) for st in range(20)]
        LA = 10
        for st in range(LA): self.emit_job(fj[st])
        xr = [([], "buffer_load_dwordx4 %s, v20, %s, 0 offen" % (v(XR, 4), s(S_X, 4)), "xr"),
              ([], "buffer_load_dwordx4 %s, v20, %s, 0 offen offset:64" % (v(XR + 4, 4), s(S_X, 4)), "xr"),
              ([], "buffer_load_dwordx2 %s, v21, %s, 0 offen offset:128" % (v(XR + 8, 2), s(S_X, 4)), "xr")]
        def slots(st):
            r = []
            if st + LA < 20: r.append(fj[st + LA])
            if 12 <= st < 15: r.append(xr[st - 12])
            return r
        self.gemm_small(20, VL16, ACC, lambda i: 80 + i if i < 68 else i - 68, lambda st: st * 4, lambda st: ("of", st), 80, T, {}, slots)
        self.stamp()
        self.c("P3 epilogue")
        SUM, SQ = T + 4, T + 6
        e("v_mov_b32 %s, 0" % v(SUM)); e("v_mov_b32 %s, 0" % v(SUM + 1)); e("v_mov_b32 %s, 0" % v(SQ)); e("v_mov_b32 %s, 0" % v(SQ + 1))
        e("s_mul_i32 s54, %s, 20480" % s(S_TI)); e("s_add_u32 s54, s54, 0x%x" % WS_H)
        e("s_mul_i32 s55, %s, 10" % s(S_NQ))
        def uaddr(dst, ureg):
            e("v_lshrrev_b32 %s, 2, %s" % (v(t2), v(ureg))); e("v_lshlrev_b32 %s, 10, %s" % (v(t2), v(t2)))
            e("v_and_b32 %s, 3, %s" % (v(t3), v(ureg))); e("v_lshl_add_u32 %s, %s, 8, %s" % (v(t2), v(t3), v(t2)))
            e("v_lshl_add_u32 %s, %s, 4, %s" % (v(dst), v(V_C), v(t2)))
        for p in range(2):
            e("v_add_u32 %s, s55, %s" % (v(t0), v(V_G)))
            if p: e("v_add_u32 %s, 4, %s" % (v(t0), v(t0)))
            uaddr(22 + p, t0)
        e("v_lshrrev_b32 %s, 1, %s" % (v(t0), v(V_G))); e("v_add_u32 %s, s55, %s" % (v(t0), v(t0))); e("v_add_u32 %s, 8, %s" % (v(t0), v(t0)))
        uaddr(24, t0)
        e("v_and_b32 %s, 1, %s" % (v(t0), v(V_G))); e("v_lshl_add_u32 %s, %s, 3, %s" % (v(24), v(t0), v(24)))
        self.vm_wait("xr")
        for t in range(5):
            A_ = ACC + t * 4
            xs = (XR + (t >> 1) * 4 + (t & 1) * 2) if t < 4 else XR + 8
            for hh in range(2):
                e("v_lshlrev_b32 %s, 16, %s" % (v(t0), v(xs + hh))); e("v_and_b32 %s, 0xffff0000, %s" % (v(t1), v(xs + hh)))
                e("v_pk_add_f32 %s, %s, %s" % (v(A_ + 2 * hh, 2), v(A_ + 2 * hh, 2), v(t0, 2)))
                hd = (HR + (t >> 1) * 4 + (t & 1) * 2 + hh) if t < 4 else HR + 8 + hh
                e("v_cvt_pk_bf16_f32 %s, %s, %s" % (v(hd), v(A_ + 2 * hh), v(A_ + 2 * hh + 1)))
            if t == 1: self.vm("buffer_store_dwordx4 %s, v22, %s, s54 offen sc1" % (v(HR, 4), s(S_WS, 4)), "hst")
            if t == 3: self.vm("buffer_store_dwordx4 %s, v23, %s, s54 offen sc1" % (v(HR + 4, 4), s(S_WS, 4)), "hst")
            if t == 4: self.vm("buffer_store_dwordx2 %s, v24, %s, s54 offen sc1" % (v(HR + 8, 2), s(S_WS, 4)), "hst")
        for t in range(5):
            A_ = ACC + t * 4
            for hh in range(2):
                e("v_pk_add_f32 %s, %s, %s" % (v(SUM, 2), v(SUM, 2), v(A_ + 2 * hh, 2)))
                e("v_pk_fma_f32 %s, %s, %s, %s" % (v(SQ, 2), v(A_ + 2 * hh, 2), v(A_ + 2 * hh, 2), v(SQ, 2)))
        e("v_add_f32 %s, %s, %s" % (v(SUM), v(SUM), v(SUM + 1))); e("v_add_f32 %s, %s, %s" % (v(SUM + 1), v(SQ), v(SQ + 1)))
        self.reduce4(SUM, t0); self.reduce4(SUM + 1, t0)
        e("s_lshl_b32 s54, %s, 4" % s(S_TI)); e("v_add_u32 %s, s54, %s" % (v(t0), v(V_C))); e("v_lshlrev_b32 %s, 6, %s" % (v(t0), v(t0)))
        e("s_lshl_b32 s54, %s, 3" % s(S_NQ)); e("s_add_u32 s54, s54, 0x%x" % WS_HS)
        e("s_mov_b64 exec, 0xffff")
        self.vm("buffer_store_dwordx2 %s, %s, %s, s54 offen sc1" % (v(SUM, 2), v(t0), s(S_WS, 4)), "hst")
        e("s_mov_b64 exec, -1")

    def p4(self):
        e = self.e; o = self.o
        VL16 = 4; T = 200; t0, t1, t2, t3 = T, T + 1, T + 2, T + 3
        ACC = 32
        CSA = 80
        CSV = 88
        VONE = 112
        VST = 116
        CS_OFF = 158 * 1024
        RING = 160
        pos = lambda i: 32 + i if i < 48 else 80 + (i - 48)
        self.c("P3 -> P4 hand-off")
        for i in range(4): e("v_mov_b32 %s, 0x3f803f80" % v(VONE + i))
        for i in range(8): e("v_mov_b32 %s, 0" % v(CSA + i))
        for i in range(48): e("v_mov_b32 %s, 0" % v(ACC + i))
        e("s_barrier")
        self.handoff(2, [self.job4(S_B4, 48 + 4 * k, 80 + 4 * k, "w4b") for k in range(18)])
        self.c("P4 main")
        e("s_lshl_b32 s54, %s, 3" % s(S_M3)); e("s_lshl_b32 s55, %s, 1" % s(S_W)); e("s_add_u32 s54, s54, s55")
        e("s_mov_b32 s88, s54")
        e("s_mul_i32 s55, s54, 20480"); e("s_add_u32 s55, s55, 0x%x" % WS_H); e("s_add_u32 s56, s55, 20480")
        fj = [[self.frag_job((st * 2 + tt) * 4, 55 + tt, st, ("hf", st)) for tt in range(2)] for st in range(20)]
        LA = 5
        for st in range(LA):
            for j in fj[st]: self.emit_job(j)
        e("s_lshl_b32 s57, s54, 4"); e("v_add_u32 %s, s57, %s" % (v(t0), v(V_C))); e("v_lshlrev_b32 %s, 6, %s" % (v(t0), v(t0)))
        e("v_lshl_add_u32 %s, %s, 4, %s" % (v(t0), v(V_G), v(t0))); e("v_add_u32 %s, 0x%x, %s" % (v(25), WS_HS, v(t0)))
        e("s_add_u32 s58, %s, 4" % s(S_W)); e("s_cmp_ge_u32 s58, 6"); e("s_cselect_b32 s57, 6, 0"); e("s_sub_u32 s58, s58, s57")
        e("v_add_u32 %s, %s, %s" % (v(t0), s(S_W1K), v(VL16)))
        e("s_lshl_b32 s57, s58, 10"); e("v_add_u32 %s, s57, %s" % (v(t1), v(VL16)))
        e("v_add_u32 %s, 0x10000, %s" % (v(t2), v(t0))); e("v_add_u32 %s, 0x10000, %s" % (v(t3), v(t1)))
        e("v_add_u32 %s, 0x20000, %s" % (v(t0 + 4), v(t0))); e("v_add_u32 %s, 0x20000, %s" % (v(t0 + 5), v(t1)))
        def csrd(st):
            off = pos(st * 6) * 1024
            return ["ds_read_b128 %s, %s offset:%d" % (a(RING + ((st % 4) * 2 + q) * 4, 4), v(t0 + 2 * (off // 65536) + q), off % 65536) for q in range(2)]
        for st in range(3):
            for x in csrd(st): e(x)
        for st in range(20):
            nx = csrd(st + 3) if st + 3 < 20 else []
            for x in nx: e(x)
            e("s_waitcnt lgkmcnt(%d)" % (2 * min(3, 19 - st)))
            for q in range(2):
                e("%s %s, %s, %s, %s" % (M, v(CSA + q * 4, 4), a(RING + ((st % 4) * 2 + q) * 4, 4), v(VONE, 4), v(CSA + q * 4, 4)))
        e("v_lshlrev_b32 %s, 4, %s" % (v(t2), v(V_G)))
        e("s_lshl_b32 s57, %s, 6" % s(S_W)); e("s_add_u32 s57, s57, %d" % CS_OFF); e("v_add_u32 %s, s57, %s" % (v(t0), v(t2)))
        e("s_lshl_b32 s57, s58, 6"); e("s_add_u32 s57, s57, %d" % CS_OFF); e("v_add_u32 %s, s57, %s" % (v(t1), v(t2)))
        e("v_add_u32 %s, %d, %s" % (v(26), CS_OFF, v(t2)))
        VA = T + 16
        e("v_mov_b32 %s, %s" % (v(VA), v(VL16))); e("v_add_u32 %s, 0x10000, %s" % (v(VA + 1), v(VL16))); e("v_add_u32 %s, 0x20000, %s" % (v(VA + 2), v(VL16)))
        def rd(st):
            r = []
            for t in range(6):
                off = pos(st * 6 + t) * 1024
                r.append("ds_read_b128 %s, %s offset:%d" % (a(RING + ((st % 2) * 6 + t) * 4, 4), v(VA + off // 65536), off % 65536))
            return r
        e("v_cmp_eq_u32 vcc, 0, %s" % v(V_C))
        for x in rd(0): e(x)
        e("s_and_saveexec_b64 s[58:59], vcc")
        e("ds_write_b128 %s, %s" % (v(t0), v(CSA, 4)))
        e("ds_write_b128 %s, %s" % (v(t1), v(CSA + 4, 4)))
        e("s_mov_b64 exec, s[58:59]")
        w5b = [self.job4(S_B5, 32 + 4 * k, 32 + 4 * k, "w5b") for k in range(12)]
        hs = [([], "buffer_load_dwordx4 %s, v25, %s, 0 offen offset:%d sc1" % (v(VST + tt * 4, 4), s(S_WS, 4), tt * 1024), "hs") for tt in range(2)]
        for st in range(20):
            if st == 10:
                e("s_barrier")
                for t in range(6): e("ds_read_b128 %s, %s offset:%d" % (v(CSV + t * 4, 4), v(26), t * 64))
            self.vm_wait(("hf", st), " lgkmcnt(0)")
            nx = rd(st + 1) if st + 1 < 20 else []
            jobs = list(fj[st + LA]) if st + LA < 20 else []
            if st < 8: jobs.append(self.job4(S_B5, 4 * st, 4 * st, "w5a"))
            if st == 15: jobs += hs
            if st >= 10:
                jobs += w5b[:2] if st >= 15 or st in (11, 13) else w5b[:1]
                w5b = w5b[2:] if (st >= 15 or st in (11, 13)) else w5b[1:]
            k = 0; n = 0
            for t in range(6):
                for tt in range(2):
                    d = ACC + (t * 2 + tt) * 4
                    jb = None
                    if jobs and n % 3 == 0:
                        jb = jobs.pop(0)
                        for x in jb[0]: e(x)
                    e("%s %s, %s, %s, %s" % (M, v(d, 4), a(RING + ((st % 2) * 6 + t) * 4, 4), a((st * 2 + tt) * 4, 4), v(d, 4)))
                    if tt == 0 and k < len(nx): e(nx[k]); k += 1
                    if jb: self.vm(jb[1], jb[2])
                    n += 1
            for jb in jobs: self.emit_job(jb)
        assert not w5b
        self.stamp()
        e("s_barrier")
        self.c("P4 epilogue (remaining resident part of W2 streams in underneath)")
        w5c = [self.job4(S_B5, 80 + 4 * k, 80 + 4 * k, "w5c") for k in range(20)]
        self.vm_wait("hs")
        NM = [T + 4, T + 6]
        for tt in range(2):
            q = VST + tt * 4
            e("v_add_f32 %s, %s, %s" % (v(q), v(q), v(q + 2))); e("v_add_f32 %s, %s, %s" % (v(q + 1), v(q + 1), v(q + 3)))
            self.reduce4(q, t0); self.reduce4(q + 1, t0)
            e("v_mul_f32 %s, 0x%x, %s" % (v(NM[tt]), f2u(-1.0 / 640), v(q)))
            e("v_mul_f32 %s, 0x%x, %s" % (v(q + 1), f2u(1.0 / 640), v(q + 1)))
            e("v_fma_f32 %s, -%s, %s, %s" % (v(q + 1), v(NM[tt]), v(NM[tt]), v(q + 1)))
            e("v_max_f32 %s, 0, %s" % (v(q + 1), v(q + 1))); e("v_add_f32 %s, 0x%x, %s" % (v(q + 1), f2u(1e-5), v(q + 1)))
            e("v_rsq_f32 %s, %s" % (v(NM[tt] + 1), v(q + 1)))
            for _ in range(2): self.emit_job(w5c.pop(0))
        e("s_mul_i32 s54, s88, 49152"); e("s_mul_i32 s55, %s, 3072" % s(S_J3)); e("s_add_u32 s54, s54, s55"); e("s_add_u32 s54, s54, 0x%x" % WS_H1)
        e("s_add_u32 s55, s54, 49152")
        e("s_mov_b32 s56, 0x%x" % f2u(-math.log2(math.e))); e("s_mov_b32 s57, s56")
        n = 0
        for tt in range(2):
            for p in range(3):
                O4 = 124 + (n % 4) * 4
                zs = []
                for hf in range(2):
                    t = 2 * p + hf; A_ = ACC + (t * 2 + tt) * 4
                    for hh in range(2): zs.append((A_ + 2 * hh, CSV + t * 4 + 2 * hh, O4 + hf * 2 + hh))
                E_ = [T + 8, T + 10, T + 12, T + 14]
                for k, (z, c_, od) in enumerate(zs): e("v_pk_fma_f32 %s, %s, %s, %s op_sel_hi:[1,0,1]" % (v(z, 2), v(c_, 2), v(NM[tt], 2), v(z, 2)))
                for k, (z, c_, od) in enumerate(zs): e("v_pk_mul_f32 %s, %s, %s op_sel:[0,1] op_sel_hi:[1,1]" % (v(z, 2), v(z, 2), v(NM[tt], 2)))
                for k, (z, c_, od) in enumerate(zs): e("v_pk_mul_f32 %s, %s, s[56:57]" % (v(E_[k], 2), v(z, 2)))
                for k in range(4): e("v_exp_f32 %s, %s" % (v(E_[k]), v(E_[k]))); e("v_exp_f32 %s, %s" % (v(E_[k] + 1), v(E_[k] + 1)))
                for k in range(4): e("v_pk_add_f32 %s, %s, 1.0 op_sel_hi:[1,0]" % (v(E_[k], 2), v(E_[k], 2)))
                for k in range(4): e("v_rcp_f32 %s, %s" % (v(E_[k]), v(E_[k]))); e("v_rcp_f32 %s, %s" % (v(E_[k] + 1), v(E_[k] + 1)))
                for k, (z, c_, od) in enumerate(zs): e("v_pk_mul_f32 %s, %s, %s" % (v(z, 2), v(z, 2), v(E_[k], 2)))
                for k, (z, c_, od) in enumerate(zs): e("v_cvt_pk_bf16_f32 %s, %s, %s" % (v(od), v(z), v(z + 1)))
                if n < 5:
                    for _ in range(4 if n == 0 else 3):
                        if w5c: self.emit_job(w5c.pop(0))
                self.vm("buffer_store_dwordx4 %s, %s, %s, %s offen offset:%d sc1" % (v(O4, 4), v(VL16), s(S_WS, 4), s(54 + tt), p * 1024), "h1st")
                n += 1
        assert not w5c

    def p5(self):
        e = self.e; o = self.o
        VL16 = 4; T = 200; t0, t1, t2, t3 = T, T + 1, T + 2, T + 3
        ACC = 32; HR = 240
        self.c("P4 -> P5 hand-off")
        for i in range(20): e("v_mov_b32 %s, 0" % v(ACC + i))
        self.handoff(3, [])
        self.c("P5 main")
        e("s_mul_i32 s54, %s, 49152" % s(S_TI)); e("s_add_u32 s54, s54, 0x%x" % WS_H1)
        fj = [self.frag_job(st * 4, 54, st, ("f1", st)) for st in range(48)]
        LA = 12
        for st in range(LA): self.emit_job(fj[st])
        bA = [self.job4(S_B5, 160 + 4 * k, 4 * k, "b5a") for k in range(10)]
        bB = [self.job4(S_B5, 200 + 4 * k, 40 + 4 * k, "b5b") for k in range(10)]
        def slots(st):
            r = []
            if st + LA < 48: r.append(fj[st + LA])
            if 9 <= st < 19: r.append(bA[st - 9])
            if 19 <= st < 29: r.append(bB[st - 19])
            return r
        def bar(): e("s_barrier")
        def landed(tag):
            def fn():
                self.vm_wait(tag); e("s_barrier")
            return fn
        hooks = {9: bar, 19: bar, 30: landed("b5a"), 38: landed("b5b")}
        self.gemm_small(48, VL16, ACC, lambda i: i % 160, lambda st: st * 4, lambda st: ("f1", st), 192, T, hooks, slots)
        self.stamp()
        self.c("P5 epilogue")
        for t in range(5):
            A_ = ACC + t * 4
            for hh in range(2):
                hd = (HR + (t >> 1) * 4 + (t & 1) * 2 + hh) if t < 4 else HR + 8 + hh
                e("v_lshlrev_b32 %s, 16, %s" % (v(t0), v(hd))); e("v_and_b32 %s, 0xffff0000, %s" % (v(t1), v(hd)))
                e("v_pk_add_f32 %s, %s, %s" % (v(A_ + 2 * hh, 2), v(A_ + 2 * hh, 2), v(t0, 2)))
                od = (64 + (t >> 1) * 4 + (t & 1) * 2 + hh) if t < 4 else 72 + hh
                e("v_cvt_pk_bf16_f32 %s, %s, %s" % (v(od), v(A_ + 2 * hh), v(A_ + 2 * hh + 1)))
            if t == 1: e("buffer_store_dwordx4 v[64:67], v20, %s, 0 offen" % s(S_OUT, 4))
            if t == 3: e("buffer_store_dwordx4 v[68:71], v20, %s, 0 offen offset:64" % s(S_OUT, 4))
        e("buffer_store_dwordx2 v[72:73], v21, %s, 0 offen offset:128" % s(S_OUT, 4))
        self.stamp()

    def finish(self):
        self.label("L_end")
        self.e("s_endpgm")

def build(opts):
    g = Gen(opts)
    g.prologue()
    stop = opts.get("stop", 5)
    g.p1()
    if stop >= 2: g.p2()
    if stop >= 3: g.p3()
    if stop >= 4: g.p4()
    if stop >= 5: g.p5()
    g.e("s_waitcnt vmcnt(0)")
    g.finish()
    body = g.finalize(2 if opts.get('nocheck') else True)
    hdr = open("cdna_kernels/%s.s.ref" % NAME).read().split("\n")
    head = [l for l in hdr if l.startswith(";") and ("Kernarg" in l or "offset" in l)]
    txt = "\n".join(head) + "\n; @launch grid=(256,1,1) block=(256,1,1) lds=163840\n"
    txt += '.amdgcn_target "amdgcn-amd-amdhsa--gfx950"\n.text\n.globl %s_kernel\n.p2align 8\n.type %s_kernel,@function\n%s_kernel:\n' % (NAME, NAME, NAME)
    txt += body + "\n"
    txt = txt.replace("CODE_Q", "16384")
    txt += """.section .rodata,"a"
.p2align 6
.amdhsa_kernel %s_kernel
  .amdhsa_next_free_vgpr 512
  .amdhsa_next_free_sgpr 96
  .amdhsa_accum_offset 256
  .amdhsa_group_segment_fixed_size 0
  .amdhsa_kernarg_size 72
  .amdhsa_user_sgpr_count 2
  .amdhsa_user_sgpr_kernarg_segment_ptr 1
  .amdhsa_system_sgpr_workgroup_id_x 1
  .amdhsa_float_denorm_mode_32 3
.end_amdhsa_kernel
""" % NAME
    return txt, g

if __name__ == "__main__":
    opts = {}
    out = sys.argv[1]
    for x in sys.argv[2:]:
        if "=" in x:
            k, val = x.split("="); opts[k] = int(val)
        else: opts[x] = 1
    txt, g = build(opts)
    open(out, "w").write(txt)
    print("lines", len(txt.split("\n")), "bytes", len(txt), "nops", g.nops)
```

```python
import sys, math, struct
from asmlib import Asm, v, a, s

NAME = 'sequential_preLN__sliding_block__dense_activation_silu__prompt'
M = "v_mfma_f32_16x16x32_bf16"

WS_FLAGS = 0x0
WS_STAT = 0x20000
WS_HS = 0x40000
WS_QKV = 0x100000
WS_O = 0x900000
WS_H = 0xC00000
WS_H1 = 0xF00000
WS_PW3 = 0x1500000
WS_PW4 = 0x1600000
WS_PW5 = 0x1800000
WS_ST = 0x1A00000
WS_SIZE = 0x1B00000
BIGOFF = 0x7F000000

def f2u(x):
    return struct.unpack("<I", struct.pack("<f", x))[0]

S_X, S_WQ, S_WO, S_W1, S_W2, S_OUT, S_WS, S_DBG = 4, 8, 12, 16, 20, 24, 28, 32
S_W = 36
S_M1, S_N1, S_M3, S_J3 = 37, 38, 39, 40
S_NONCE = 42
S_SOFF = 62
S_TMO = 63
S_STC = 80
S_STT = 82
S_ODD = 84
S_TI, S_NQ = 86, 87
S_B3, S_B4, S_B5 = 90, 91, 92
S_W1K, S_W3 = 93, 94
S_OST = 95

V_L, V_C, V_G = 1, 2, 3

class Gen(Asm):
    def __init__(self, opts):
        super().__init__()
        self.o = opts
        self.vmq = []
        self.nlab = 0
        self.nstamp = 0
    def vm(self, text, tag=None):
        if self.o.get("fast") and tag in ("ost", "hst", "h1st"): text = text.replace(" sc1", "")
        self.e(text); self.vmq.append(tag)
    def vm_n(self, tag):
        idx = max(i for i, t in enumerate(self.vmq) if t == tag)
        n = len(self.vmq) - 1 - idx
        assert n <= 63, (tag, n)
        return n
    def vm_wait(self, tag, extra=""):
        self.e("s_waitcnt vmcnt(%d)%s" % (self.vm_n(tag), extra))
    def newlabel(self, p="L"):
        self.nlab += 1
        return "%s_%d" % (p, self.nlab)
    def stamp(self, idx=None):
        if not self.o.get("stamps"): return
        i = self.nstamp if idx is None else idx
        if idx is None: self.nstamp += 1
        assert i < 32
        e = self.e
        e("%s %s" % ("s_memtime" if self.o.get("stamps") == 2 else "s_memrealtime", s(S_STT, 2)))
        e("s_waitcnt lgkmcnt(0)")
        e("v_mov_b32 v254, %s" % s(S_STT)); e("v_mov_b32 v255, %s" % s(S_STT + 1))
        e("s_lshl_b32 %s, s2, 2" % s(S_STC)); e("s_add_u32 %s, %s, %s" % (s(S_STC), s(S_STC), s(S_W)))
        e("s_lshl_b32 %s, %s, 8" % (s(S_STC), s(S_STC)))
        e("s_add_u32 %s, %s, 0x%x" % (s(S_STC), s(S_STC), WS_ST + i * 8))
        e("v_mov_b32 v253, %s" % s(S_STC))
        e("s_mov_b64 exec, 1")
        self.vm("buffer_store_dwordx2 v[254:255], v253, %s, 0 offen" % s(S_WS, 4), "stamp")
        e("s_mov_b64 exec, -1")

    def reduce4(self, x, tmp, op="v_add_f32"):
        e = self.e
        e("v_mov_b32 %s, %s" % (v(tmp), v(x)))
        e("v_permlane16_swap_b32 %s, %s" % (v(x), v(tmp)))
        e("%s %s, %s, %s" % (op, v(x), v(x), v(tmp)))
        e("v_mov_b32 %s, %s" % (v(tmp), v(x)))
        e("v_permlane32_swap_b32 %s, %s" % (v(x), v(tmp)))
        e("%s %s, %s, %s" % (op, v(x), v(x), v(tmp)))

    def nonce_issue(self, vr):
        self.e("v_mov_b32 %s, 0" % v(vr + 2))
        self.vm("buffer_load_dwordx2 %s, %s, %s, 0 offen sc1" % (v(vr, 2), v(vr + 2), s(S_DBG, 4)), "nonce")
    def nonce_get(self, vr):
        e = self.e
        self.vm_wait("nonce")
        l0 = self.newlabel("NL"); l1 = self.newlabel("ND")
        e("v_readfirstlane_b32 %s, %s" % (s(S_NONCE), v(vr)))
        e("v_readfirstlane_b32 %s, %s" % (s(S_NONCE + 1), v(vr + 1)))
        e("s_cmp_lg_u32 %s, 0" % s(S_NONCE))
        e("s_cbranch_scc1 %s" % l1)
        e("s_mov_b32 s44, 0")
        self.label(l0)
        e("buffer_load_dwordx2 %s, %s, %s, 0 offen sc1" % (v(vr, 2), v(vr + 2), s(S_DBG, 4)))
        e("s_waitcnt vmcnt(0)")
        e("v_readfirstlane_b32 %s, %s" % (s(S_NONCE), v(vr)))
        e("v_readfirstlane_b32 %s, %s" % (s(S_NONCE + 1), v(vr + 1)))
        e("s_add_u32 s44, s44, 1")
        e("s_cmp_gt_u32 s44, 20000")
        e("s_cbranch_scc1 %s" % l1)
        e("s_cmp_eq_u32 %s, 0" % s(S_NONCE))
        e("s_cbranch_scc1 %s" % l0)
        self.label(l1)
    def flag_set(self, phase, sidx, vt, checkwave=True):
        e = self.e
        l = self.newlabel("FS")
        if checkwave: e("s_cmp_lg_u32 %s, 0" % s(S_W)); e("s_cbranch_scc1 %s" % l)
        e("s_lshl_b32 s44, %s, 6" % s(sidx)); e("s_add_u32 s44, s44, 0x%x" % (WS_FLAGS + phase * 16384))
        e("v_mov_b32 %s, %s" % (v(vt), s(S_NONCE))); e("v_mov_b32 %s, %s" % (v(vt + 1), s(S_NONCE + 1)))
        e("v_mov_b32 %s, s44" % v(vt + 2))
        e("s_mov_b64 exec, 1")
        e("buffer_store_dwordx2 %s, %s, %s, 0 offen%s" % (v(vt, 2), v(vt + 2), s(S_WS, 4), "" if (self.o.get("fast") and phase in (1, 2, 3)) else " sc1"))
        e("s_mov_b64 exec, -1")
        self.label(l)
    def flag_poll(self, vaddr, vt, nloads=1, stride=0):
        e = self.e
        l0 = self.newlabel("PL"); l1 = self.newlabel("PD")
        e("s_mov_b32 s44, 0")
        self.label(l0)
        for k in range(nloads):
            e("buffer_load_dwordx2 %s, %s, %s, 0 offen offset:%d sc1" % (v(vt + 2 * k, 2), v(vaddr), s(S_WS, 4), k * stride))
        e("s_waitcnt vmcnt(0)")
        for k in range(nloads):
            e("v_cmp_eq_u32 %s, %s, %s" % (s(46 + 0, 2), s(S_NONCE), v(vt + 2 * k)))
            e("v_cmp_eq_u32 %s, %s, %s" % (s(48 + 0, 2), s(S_NONCE + 1), v(vt + 2 * k + 1)))
            e("s_and_b64 s[46:47], s[46:47], s[48:49]")
            if k == 0: e("s_mov_b64 s[50:51], s[46:47]")
            else: e("s_and_b64 s[50:51], s[50:51], s[46:47]")
        e("s_cmp_eq_u64 s[50:51], -1")
        e("s_cbranch_scc1 %s" % l1)
        e("s_add_u32 s44, s44, 1")
        e("s_cmp_gt_u32 s44, 20000")
        e("s_cbranch_scc0 %s" % l0)
        e("s_mov_b32 %s, 1" % s(S_TMO))
        self.label(l1)

    def srd(self, d, src, size):
        e = self.e
        e("s_mov_b32 %s, %s" % (s(d), s(src))); e("s_and_b32 %s, %s, 0xffff" % (s(d + 1), s(src + 1)))
        e("s_mov_b32 %s, 0x%x" % (s(d + 2), size)); e("s_mov_b32 %s, 0x20000" % s(d + 3))
    def prologue(self):
        e = self.e
        e("s_cmp_ge_u32 s2, 256")
        e("s_cbranch_scc1 L_end")
        e("s_load_dwordx16 s[64:79], s[0:1], 0")
        e("s_load_dwordx2 s[80:81], s[0:1], 64")
        e("v_and_b32 %s, 63, v0" % v(V_L))
        e("v_lshrrev_b32 v4, 6, v0")
        e("v_and_b32 %s, 15, %s" % (v(V_C), v(V_L)))
        e("v_lshrrev_b32 %s, 4, %s" % (v(V_G), v(V_L)))
        e("v_readfirstlane_b32 %s, v4" % s(S_W))
        e("s_and_b32 s3, s2, 7")
        e("s_lshr_b32 s41, s2, 3")
        e("s_lshr_b32 %s, s3, 1" % s(S_M1)); e("s_lshl_b32 %s, %s, 2" % (s(S_M1), s(S_M1)))
        e("s_lshr_b32 s62, s41, 3"); e("s_add_u32 %s, %s, s62" % (s(S_M1), s(S_M1)))
        e("s_and_b32 %s, s3, 1" % s(S_N1)); e("s_lshl_b32 %s, %s, 3" % (s(S_N1), s(S_N1)))
        e("s_and_b32 s62, s41, 7"); e("s_add_u32 %s, %s, s62" % (s(S_N1), s(S_N1)))
        e("s_lshl_b32 %s, s3, 1" % s(S_M3)); e("s_lshr_b32 s62, s41, 4"); e("s_add_u32 %s, %s, s62" % (s(S_M3), s(S_M3)))
        e("s_and_b32 %s, s41, 15" % s(S_J3))
        e("s_mov_b32 %s, 0" % s(S_TMO))
        e("v_and_b32 v4, 1, %s" % v(V_G))
        e("v_cmp_eq_u32 %s, 1, v4" % s(S_ODD, 2))
    def prologue2(self):
        e = self.e
        self.srd(S_WO, 68, 640 * 640 * 2)
        self.srd(S_W1, 72, 640 * 1536 * 2)
        self.srd(S_W2, 74, 1536 * 640 * 2)
        self.srd(S_OUT, 76, 2048 * 640 * 2)

    def x_dma_setup(self, VX, t0, t1):
        e = self.e
        e("v_lshrrev_b32 %s, 2, %s" % (v(t0), v(V_L)))
        e("v_lshrrev_b32 %s, 2, %s" % (v(t1), v(t0)))
        e("v_sub_u32 %s, 4, %s" % (v(t1), v(t1))); e("v_and_b32 %s, 3, %s" % (v(t1), v(t1)))
        e("v_xor_b32 %s, %s, %s" % (v(t1), v(t1), v(V_L))); e("v_and_b32 %s, 3, %s" % (v(t1), v(t1)))
        e("s_lshl_b32 s44, %s, 7" % s(S_M1)); e("s_lshl_b32 s45, %s, 5" % s(S_W)); e("s_add_u32 s44, s44, s45")
        e("v_add_u32 %s, s44, %s" % (v(t0), v(t0)))
        e("v_mul_u32_u24 %s, 1280, %s" % (v(t0), v(t0)))
        e("v_lshl_add_u32 %s, %s, 4, %s" % (v(VX), v(t1), v(t0)))
        e("v_add_u32 %s, 20480, %s" % (v(VX + 1), v(VX)))
    def x_frag_addr(self, VA, t0, base_const):
        e = self.e
        e("v_lshrrev_b32 %s, 2, %s" % (v(t0), v(V_C)))
        e("v_sub_u32 %s, 4, %s" % (v(t0), v(t0))); e("v_and_b32 %s, 3, %s" % (v(t0), v(t0)))
        e("v_xor_b32 %s, %s, %s" % (v(t0), v(t0), v(V_G)))
        e("v_lshlrev_b32 %s, 4, %s" % (v(t0), v(t0)))
        e("v_lshl_add_u32 %s, %s, 6, %s" % (v(VA), v(V_C), v(t0)))
        if base_const: e("v_add_u32 %s, %s, %s" % (v(VA), base_const, v(VA)))

    def p1_helper(self):
        e = self.e
        self.c("helper workgroup: LayerNorm statistics of x for token block m1")
        save = list(self.vmq); self.vmq = []
        VX, VA, T = 12, 14, 208
        self.x_dma_setup(VX, T, T + 1)
        self.x_frag_addr(VA, T, None)
        e("s_lshl_b32 s47, %s, 15" % s(S_W))
        e("v_add_u32 %s, s47, %s" % (v(VA), v(VA)))
        def issue(st):
            for tt in range(2):
                e("s_add_u32 m0, s47, 0x%x" % ((st % 16) * 2048 + tt * 1024))
                e("s_mov_b32 %s, %d" % (s(S_SOFF), st * 64))
                self.vm("buffer_load_dwordx4 %s, %s, %s offen lds" % (v(VX + tt), s(S_X, 4), s(S_SOFF)), ("hx", st))
        for st in range(16): issue(st)
        self.nonce_issue(16)
        for i in range(4): e("v_mov_b32 %s, 0x3f803f80" % v(20 + i))
        for i in range(16): e("v_mov_b32 %s, 0" % v(32 + i))
        for st in range(20):
            self.vm_wait(("hx", st))
            b = (st % 2) * 8
            for tt in range(2):
                e("ds_read_b128 %s, %s offset:%d" % (a(b + tt * 4, 4), v(VA), (st % 16) * 2048 + tt * 1024))
            e("s_waitcnt lgkmcnt(0)")
            if st < 4: issue(st + 16)
            for tt in range(2):
                e("%s %s, %s, %s, %s" % (M, v(32 + tt * 4, 4), a(b + tt * 4, 4), a(b + tt * 4, 4), v(32 + tt * 4, 4)))
                e("%s %s, %s, %s, %s" % (M, v(40 + tt * 4, 4), v(20, 4), a(b + tt * 4, 4), v(40 + tt * 4, 4)))
        self.nonce_get(16)
        e("v_and_b32 %s, 3, %s" % (v(T), v(V_C)))
        e("v_lshrrev_b32 %s, 2, %s" % (v(T + 1), v(V_C)))
        e("v_cmp_eq_u32 s[46:47], %s, %s" % (v(T + 1), v(V_G)))
        for tt in range(2):
            d = 32 + tt * 4
            for i in range(1, 4):
                e("v_cmp_eq_u32 vcc, %d, %s" % (i, v(T)))
                e("v_cndmask_b32 %s, %s, %s, vcc" % (v(d), v(d), v(d + i)))
            e("v_cndmask_b32 %s, 0, %s, s[46:47]" % (v(d), v(d)))
            self.reduce4(d, T + 2)
            sm = 40 + tt * 4
            e("v_mul_f32 %s, 0x%x, %s" % (v(sm), f2u(1.0 / 640), v(sm)))
            e("v_mul_f32 %s, 0x%x, %s" % (v(d), f2u(1.0 / 640), v(d)))
            e("v_fma_f32 %s, -%s, %s, %s" % (v(d), v(sm), v(sm), v(d)))
            e("v_max_f32 %s, 0, %s" % (v(d), v(d)))
            e("v_add_f32 %s, 0x%x, %s" % (v(d), f2u(1e-5), v(d)))
            e("v_rsq_f32 %s, %s" % (v(d), v(d)))
            o4 = 48 + tt * 4
            e("v_mov_b32 %s, %s" % (v(o4), v(sm))); e("v_mov_b32 %s, %s" % (v(o4 + 1), v(d)))
            e("v_mov_b32 %s, %s" % (v(o4 + 2), s(S_NONCE))); e("v_mov_b32 %s, %s" % (v(o4 + 3), s(S_NONCE + 1)))
        e("s_lshl_b32 s44, %s, 7" % s(S_M1)); e("s_lshl_b32 s45, %s, 5" % s(S_W)); e("s_add_u32 s44, s44, s45")
        e("v_add_u32 %s, s44, %s" % (v(T), v(V_C)))
        e("v_lshlrev_b32 %s, 4, %s" % (v(T), v(T)))
        e("v_add_u32 %s, 0x%x, %s" % (v(T), WS_STAT, v(T)))
        e("s_mov_b64 exec, 0xffff")
        for tt in range(2):
            e("buffer_store_dwordx4 %s, %s, %s, 0 offen offset:%d sc1" % (v(48 + tt * 4, 4), v(T), s(S_WS, 4), tt * 256))
        e("s_mov_b64 exec, -1")
        e("s_waitcnt vmcnt(0)")
        self.vmq = save

    def p1(self):
        e = self.e; o = self.o
        VT = 4
        VXA = 8
        VX = 10
        VWO = 12
        VPK = 13
        VONE = 20
        VCS = 24
        ACC = 32
        VST = 96
        VN = 112
        VPA = 124
        PKF = 116
        TMP = 208
        t0, t1, t2, t3 = TMP, TMP + 1, TMP + 2, TMP + 3
        acc = lambda i, tt: ACC + (i * 4 + tt) * 4
        PK_OFF = 131072
        CS_OFF = 131072 + 24576
        lab_h = self.newlabel("HELP"); lab_j = self.newlabel("P1J")
        self.c("P1: address setup (no pointers needed yet)")
        self.x_dma_setup(VX, t0, t1)
        e("s_lshr_b32 s44, %s, 1" % s(S_W)); e("s_lshl_b32 s44, s44, 3")
        e("v_and_b32 %s, 1, %s" % (v(t0), v(V_G))); e("v_and_b32 %s, 2, %s" % (v(t1), v(V_G)))
        e("v_lshl_or_b32 %s, %s, 1, %s" % (v(t0), v(t1), v(t0))); e("v_or_b32 %s, s44, %s" % (v(t0), v(t0)))
        e("v_xor_b32 %s, %s, %s" % (v(t0), v(t0), v(V_C)))
        e("s_lshl_b32 s45, %s, 2" % s(S_W)); e("v_add_u32 %s, s45, %s" % (v(t1), v(V_G)))
        e("v_mul_u32_u24 %s, 3840, %s" % (v(t1), v(t1)))
        e("v_lshl_add_u32 %s, %s, 4, %s" % (v(t1), v(t0), v(t1)))
        e("s_lshl_b32 s44, %s, 8" % s(S_N1)); e("v_add_u32 %s, s44, %s" % (v(VWO), v(t1)))
        e("s_lshl_b32 s47, %s, 10" % s(S_W))
        e("s_lshl_b32 s48, %s, 11" % s(S_W))
        e("s_waitcnt lgkmcnt(0)")
        self.srd(S_X, 64, 2048 * 640 * 2)
        self.srd(S_WQ, 66, 640 * 1920 * 2)
        self.srd(S_WS, 80, WS_SIZE)
        self.srd(S_DBG, 78, 256)
        l = self.newlabel("NP")
        e("s_lshl_b32 s44, s2, 2"); e("s_or_b32 s44, s44, %s" % s(S_W))
        e("s_cmp_lg_u32 s44, 0"); e("s_cbranch_scc1 %s" % l)
        e("s_memrealtime s[44:45]")
        e("s_waitcnt lgkmcnt(0)")
        e("s_or_b32 s44, s44, 1")
        e("v_mov_b32 v204, s44"); e("v_mov_b32 v205, s45"); e("v_mov_b32 v206, 0")
        e("s_mov_b64 exec, 1")
        e("buffer_store_dwordx2 v[204:205], v206, %s, 0 offen sc1" % s(S_DBG, 4))
        e("s_mov_b64 exec, -1")
        self.label(l)
        e("s_cmp_eq_u32 %s, 15" % s(S_N1)); e("s_cbranch_scc1 %s" % lab_h)
        def dma_ops(st):
            ops = []
            sl = (st % 8) * 16384
            for h in range(2):
                ops.append((["s_add_u32 m0, s47, 0x%x" % (sl + h * 4096), "s_mov_b32 %s, 0x%x" % (s(S_SOFF), (32 * st + 16 * h) * 3840)],
                            "buffer_load_dwordx4 %s, %s, %s offen lds" % (v(VWO), s(S_WQ, 4), s(S_SOFF))))
            for tt in range(2):
                ops.append((["s_add_u32 m0, s48, 0x%x" % (sl + 8192 + tt * 1024), "s_mov_b32 %s, %d" % (s(S_SOFF), st * 64)],
                            "buffer_load_dwordx4 %s, %s, %s offen lds" % (v(VX + tt), s(S_X, 4), s(S_SOFF))))
            return ops
        def issue_now(st):
            for su, ld in dma_ops(st):
                for x in su: e(x)
                self.vm(ld, ("st", st))
        issue_now(0)
        if o.get("pf1", 1):
            e("s_and_b32 s44, %s, 3" % s(S_M1)); e("s_mul_i32 s44, s44, %d" % (160 * 3840)); e("s_lshl_b32 s45, %s, 8" % s(S_N1)); e("s_add_u32 s44, s44, s45")
            e("s_lshl_b32 s45, %s, 6" % s(S_W)); e("v_add_u32 %s, s45, %s" % (v(t0), v(V_L)))
            e("v_lshrrev_b32 %s, 1, %s" % (v(t1), v(t0))); e("v_mul_u32_u24 %s, 3840, %s" % (v(t1), v(t1)))
            e("v_and_b32 %s, 1, %s" % (v(t2), v(t0))); e("v_lshl_add_u32 %s, %s, 7, %s" % (v(t1), v(t2), v(t1)))
            self.vm("buffer_load_dword v190, %s, %s, s44 offen" % (v(t1), s(S_WQ, 4)), "touch")
            lt = self.newlabel("TX"); lj = self.newlabel("TJ")
            e("s_cmp_lg_u32 %s, 0" % s(S_W)); e("s_cbranch_scc1 %s" % lt)
            e("v_add_u32 %s, %d, %s" % (v(t1), 128 * 3840, v(t1)))
            e("buffer_load_dword v191, %s, %s, s44 offen" % (v(t1), s(S_WQ, 4)))
            e("s_branch %s" % lj)
            self.label(lt)
            e("v_subrev_u32 %s, 64, %s" % (v(t0), v(t0))); e("v_min_u32 %s, 159, %s" % (v(t0), v(t0)))
            e("v_mul_u32_u24 %s, 6554, %s" % (v(t1), v(t0))); e("v_lshrrev_b32 %s, 16, %s" % (v(t1), v(t1)))
            e("v_mul_u32_u24 %s, 10, %s" % (v(t2), v(t1))); e("v_sub_u32 %s, %s, %s" % (v(t2), v(t0), v(t2)))
            e("s_and_b32 s44, %s, 7" % s(S_N1)); e("s_lshl_b32 s44, s44, 4"); e("s_lshl_b32 s45, %s, 7" % s(S_M1)); e("s_add_u32 s44, s44, s45")
            e("v_add_u32 %s, s44, %s" % (v(t1), v(t1))); e("v_mul_u32_u24 %s, 1280, %s" % (v(t1), v(t1)))
            e("v_lshl_add_u32 %s, %s, 7, %s" % (v(t1), v(t2), v(t1)))
            e("buffer_load_dword v187, %s, %s, 0 offen" % (v(t1), s(S_X, 4)))
            self.label(lj)
            self.vmq.append("touch")
        for st in range(1, 3): issue_now(st)
        if o.get("cpf", 1):
            e("s_getpc_b64 s[44:45]")
            self.label("L_pc")
            e("s_mov_b32 s50, L_end-L_pc")
            e("v_lshlrev_b32 %s, 7, %s" % (v(t0), v(V_L)))
            e("s_lshl_b32 s46, %s, 14" % s(S_W)); e("v_add_u32 %s, s46, %s" % (v(t0), v(t0)))
            for k in range(2):
                e("v_min_u32 %s, s50, %s" % (v(t1), v(t0)))
                self.vm("global_load_dword v%d, %s, s[44:45]" % (188 + k, v(t1)), "touch")
                if k == 0: e("v_add_u32 %s, 8192, %s" % (v(t0), v(t0)))
        self.stamp()
        self.prologue2()
        self.c("W tile / x fragment read addresses")
        e("v_lshrrev_b32 %s, 2, %s" % (v(t0), v(V_C)))
        e("v_and_b32 %s, 3, %s" % (v(t1), v(V_L)))
        e("v_and_b32 %s, 1, %s" % (v(t2), v(t0))); e("v_and_b32 %s, 2, %s" % (v(t3), v(t0)))
        e("v_lshl_or_b32 %s, %s, 1, %s" % (v(t2), v(t3), v(t2)))
        e("v_and_b32 %s, 1, %s" % (v(t3), v(V_G))); e("v_lshl_or_b32 %s, %s, 3, %s" % (v(t2), v(t3), v(t2)))
        e("v_lshl_add_u32 %s, %s, 3, %s" % (v(t0), v(V_G), v(t0))); e("v_lshlrev_b32 %s, 8, %s" % (v(t0), v(t0)))
        e("s_lshr_b32 s50, %s, 1" % s(S_W)); e("s_and_b32 s45, %s, 1" % s(S_W)); e("s_lshl_b32 s45, s45, 1")
        for i in range(4):
            if i % 2 == 0:
                e("s_xor_b32 s44, s50, %d" % (i >> 1)); e("s_add_u32 s44, s44, s45"); e("s_lshl_b32 s44, s44, 2")
                e("v_add_u32 %s, s44, %s" % (v(t3), v(t1))); e("v_xor_b32 %s, %s, %s" % (v(t3), v(t3), v(t2)))
                e("v_lshl_add_u32 %s, %s, 4, %s" % (v(t3 + 1), v(t3), v(t0)))
            e("v_and_b32 %s, 1, %s" % (v(t3), v(t1)))
            if i & 1: e("v_xor_b32 %s, 1, %s" % (v(t3), v(t3)))
            e("v_lshl_add_u32 %s, %s, 3, %s" % (v(VT + i), v(t3), v(t3 + 1)))
        self.x_frag_addr(VXA, t0, None)
        e("s_lshl_b32 s44, s50, 12"); e("s_add_u32 s44, s44, 8192")
        e("v_add_u32 %s, s44, %s" % (v(VXA), v(VXA)))
        for st in range(3, 5): issue_now(st)
        for i in range(4): e("v_mov_b32 %s, 0x3f803f80" % v(VONE + i))
        for st in range(5, 8): issue_now(st)
        self.c("pack set-up")
        PS = []
        pe = PS.append
        pe("s_mul_i32 s49, %s, 15" % s(S_M1)); pe("s_add_u32 s49, s49, %s" % s(S_N1))
        pe("s_cmp_lt_u32 s49, 80")
        pe("s_cselect_b32 s64, %s, %s" % (s(S_WO), s(S_W1))); pe("s_cselect_b32 s65, %s, %s" % (s(S_WO + 1), s(S_W1 + 1)))
        pe("s_cselect_b32 s66, %s, %s" % (s(S_WO + 2), s(S_W1 + 2))); pe("s_mov_b32 s67, 0x20000")
        pe("s_mov_b32 s72, 1280"); pe("s_cselect_b32 s72, s72, 3072")
        pe("s_cselect_b32 s73, 19, 23")
        pe("s_cselect_b32 s74, 2, 3")
        pe("s_cselect_b32 s75, 0, 80")
        pe("s_mov_b32 s76, 320"); pe("s_cselect_b32 s76, s76, 384")
        pe("s_cselect_b32 s77, 5, 6")
        pe("s_mov_b32 s78, 20")
        pe("s_mov_b32 s79, 0x%x" % WS_PW3); pe("s_cselect_b32 s79, s79, 0x%x" % WS_PW4)
        pe("s_sub_u32 s50, s49, s75"); pe("s_lshr_b32 s51, s50, s74")
        pe("s_lshl_b32 s52, 1, s74"); pe("s_sub_u32 s52, s52, 1"); pe("s_and_b32 s52, s50, s52")
        for i3 in range(3):
            pe("s_lshl_b32 s54, %s, 6" % s(S_W)); pe("s_add_u32 s54, s54, %d" % (256 * i3))
            pe("v_add_u32 %s, s54, %s" % (v(t0), v(V_L)))
            pe("v_mul_u32_u24 %s, 2731, %s" % (v(136 + i3), v(t0))); pe("v_lshrrev_b32 %s, 16, %s" % (v(136 + i3), v(136 + i3)))
            pe("v_mul_u32_u24 %s, 24, %s" % (v(t2), v(136 + i3))); pe("v_sub_u32 %s, %s, %s" % (v(139 + i3), v(t0), v(t2)))
        pe("v_lshrrev_b32 %s, 2, %s" % (v(t1), v(V_C))); pe("v_lshl_add_u32 %s, %s, 3, %s" % (v(t1), v(V_G), v(t1))); pe("v_mul_u32_u24 %s, 384, %s" % (v(t1), v(t1)))
        pe("v_and_b32 %s, 3, %s" % (v(t0), v(V_L)))
        pe("v_lshl_add_u32 v142, %s, 4, %s" % (v(t0), v(t1))); pe("v_lshl_add_u32 v143, %s, 3, %s" % (v(t0), v(t1)))
        pe("v_lshlrev_b32 v144, 4, %s" % v(V_L))
        pe("s_lshr_b32 s60, %s, 1" % s(S_W))
        pe("s_and_b32 s61, %s, 1" % s(S_W)); pe("s_mul_i32 s61, s61, 3")
        def pack_setup(blk, valid_s):
            pe("s_mul_i32 s53, s51, s72"); pe("s_lshl_b32 s53, s53, 5"); pe("s_mul_i32 s54, s52, s76"); pe("s_add_u32 s53, s53, s54")
            for i3 in range(3):
                pe("v_min_u32 %s, s73, %s" % (v(t2), v(139 + i3)))
                pe("v_mul_lo_u32 %s, %s, s72" % (v(t1), v(136 + i3)))
                pe("v_lshl_add_u32 %s, %s, 4, %s" % (v(t1), v(t2), v(t1)))
                pe("v_add_u32 %s, s53, %s" % (v(VPK + 3 * blk + i3), v(t1)))
            pe("s_lshl_b32 s57, s52, 1"); pe("s_add_u32 s57, s57, s60"); pe("s_mul_i32 s57, s57, s78"); pe("s_add_u32 s57, s57, s51")
            pe("s_mul_i32 s57, s57, s77"); pe("s_lshl_b32 s57, s57, 10"); pe("s_add_u32 s57, s57, s79")
            if valid_s is not None:
                pe("s_cmp_lt_u32 s49, %d" % valid_s); pe("s_cselect_b32 s57, s57, 0x%x" % BIGOFF)
            pe("s_mul_i32 s58, s60, s77"); pe("s_lshl_b32 s58, s58, 5"); pe("s_add_u32 s58, s58, %d" % (PK_OFF + blk * 12288))
            for i3 in range(3):
                pe("s_add_u32 s56, s61, %d" % i3)
                pe("s_lshr_b32 s54, s56, 1"); pe("s_lshl_b32 s54, s54, 6"); pe("s_and_b32 s55, s56, 1"); pe("s_lshl_b32 s55, s55, 3")
                pe("s_add_u32 s54, s54, s55"); pe("s_add_u32 s54, s54, s58")
                pe("s_lshl_b32 s55, s77, 3"); pe("s_add_u32 s55, s55, s56"); pe("s_cmp_eq_u32 s55, 44")
                pe("s_cselect_b64 s[68:69], -1, 0")
                pe("v_cndmask_b32 %s, v142, v143, s[68:69]" % v(t0))
                pe("v_add_u32 %s, s54, %s" % (v(VPA + 3 * blk + i3), v(t0)))
                pe("s_lshl_b32 s54, s56, 10"); pe("s_add_u32 s54, s54, s57"); pe("s_cmp_lt_u32 s56, s77"); pe("s_cselect_b32 s54, s54, 0x%x" % BIGOFF)
                pe("v_add_u32 %s, s54, v144" % v(VPA + 6 + 3 * blk + i3))
        pack_setup(0, None)
        for x in ("s_mov_b32 s72, 1280", "s_mov_b32 s73, 19", "s_mov_b32 s76, 320", "s_mov_b32 s77, 5", "s_mov_b32 s78, 48", "s_mov_b32 s79, 0x%x" % WS_PW5,
                  "s_lshr_b32 s51, s49, 2", "s_and_b32 s52, s49, 3"): pe(x)
        pack_setup(1, 192)
        for x in PS: e(x)
        self.stamp()
        self.c("P1 main loop")
        NS = 20
        def reads(st):
            b = (st % 2) * 32; sl = (st % 4) * 16384
            pre = []
            if st % 8 == 4:
                pre = ["v_add_u32 %s, 0x10000, %s" % (v(r), v(r)) for r in (VT, VT + 1, VT + 2, VT + 3, VXA)]
            elif st % 8 == 0 and st > 0:
                pre = ["v_subrev_u32 %s, 0x10000, %s" % (v(r), v(r)) for r in (VT, VT + 1, VT + 2, VT + 3, VXA)]
            r = []
            for i in range(4):
                r.append("ds_read_b64_tr_b16 %s, %s offset:%d" % (a(b + i * 4, 2), v(VT + i), sl))
                r.append("ds_read_b64_tr_b16 %s, %s offset:%d" % (a(b + i * 4 + 2, 2), v(VT + i), sl + 1024))
            for tt in range(4):
                r.append("ds_read_b128 %s, %s offset:%d" % (a(b + 16 + tt * 4, 4), v(VXA), sl + tt * 1024))
            return pre, r
        self.vm_wait(("st", 1))
        e("s_barrier")
        pre, r = reads(0)
        for x in pre + r: e(x)
        pending_dma = []
        for st in range(NS):
            b = (st % 2) * 32
            e("s_waitcnt lgkmcnt(0)")
            nxt = st + 1
            if nxt < NS and nxt % 2 == 0:
                self.vm_wait(("st", nxt + 1))
                e("s_barrier")
                if o.get("fine"): self.stamp()
                for s2 in (nxt + 6, nxt + 7):
                    if s2 < NS: pending_dma += [(su, ld, ("st", s2)) for su, ld in dma_ops(s2)]
            if st == 3:
                for blk in range(2):
                    for i3 in range(3):
                        pending_dma.append((["s_add_u32 m0, s47, 0x%x" % (PK_OFF + blk * 12288 + i3 * 4096), "s_nop 0"],
                                            "buffer_load_dwordx4 %s, %s, 0 offen lds" % (v(VPK + 3 * blk + i3), s(64 if blk == 0 else S_W2, 4)), "pk"))
            pre, r = reads(nxt) if nxt < NS else ([], [])
            pk_rd = st - 12 if 12 <= st < 18 else None
            pk_st = st - 13 if 13 <= st < 19 else None
            if pk_rd is not None:
                f = PKF + (st % 2) * 4
                r = r + ["ds_read_b64_tr_b16 %s, %s" % (v(f, 2), v(VPA + pk_rd)),
                         "ds_read_b64_tr_b16 %s, %s offset:%d" % (v(f + 2, 2), v(VPA + pk_rd), 4 * 384)]
            mf = []
            for i in range(4):
                for tt in range(4):
                    mf.append("%s %s, %s, %s, %s" % (M, v(acc(i, tt), 4), a(b + i * 4, 4), a(b + 16 + tt * 4, 4), v(acc(i, tt), 4) if st else "0"))
                if i < 2: mf.append("%s %s, %s, %s, %s" % (M, v(VCS + i * 4, 4), a(b + i * 4, 4), v(VONE, 4), v(VCS + i * 4, 4) if st else "0"))
            for x in pre: e(x)
            dpos = (1, 5, 10, 14)
            for n, m in enumerate(mf):
                dm = None
                if n in dpos and pending_dma:
                    dm = pending_dma.pop(0)
                    for x in dm[0]: e(x)
                e(m)
                if n < len(r): e(r[n])
                if dm: self.vm(dm[1], dm[2])
                if n == 8 and pk_st is not None:
                    f = PKF + ((st - 1) % 2) * 4
                    self.vm("buffer_store_dwordx4 %s, %s, %s, 0 offen sc1" % (v(f, 4), v(VPA + 6 + pk_st), s(S_WS, 4)), "pkst")
                if n == 16 and st == 15: self.nonce_issue(VN)
                if n == 16 and st == 17:
                    e("s_lshl_b32 s44, %s, 7" % s(S_M1)); e("s_lshr_b32 s45, %s, 1" % s(S_W)); e("s_lshl_b32 s45, s45, 6"); e("s_add_u32 s44, s44, s45")
                    e("v_add_u32 %s, s44, %s" % (v(t0), v(V_C))); e("v_lshlrev_b32 %s, 4, %s" % (v(t0), v(t0)))
                    e("v_add_u32 %s, 0x%x, %s" % (v(19), WS_STAT, v(t0)))
                    for tt in range(4):
                        self.vm("buffer_load_dwordx4 %s, %s, %s, 0 offen offset:%d sc1" % (v(VST + tt * 4, 4), v(19), s(S_WS, 4), tt * 256), "stat")
            assert st < NS - 1 or not pending_dma
        self.stamp()
        self.c("P1 epilogue")
        e("s_lshr_b32 s44, %s, 1" % s(S_W)); e("s_and_b32 s45, %s, 1" % s(S_W)); e("s_lshl_b32 s45, s45, 1")
        e("s_add_u32 s46, s44, s45")
        e("s_xor_b32 s44, s44, 1"); e("s_add_u32 s50, s44, s45")
        e("s_lshl_b32 s51, s46, 7"); e("s_add_u32 s51, s51, 0x%x" % CS_OFF)
        e("v_lshlrev_b32 %s, 4, %s" % (v(t0), v(V_G)))
        e("v_add_u32 %s, s51, %s" % (v(t1), v(t0)))
        e("v_cmp_eq_u32 vcc, 0, %s" % v(V_C))
        e("s_and_saveexec_b64 s[52:53], vcc")
        e("ds_write_b128 %s, %s" % (v(t1), v(VCS, 4)))
        e("ds_write_b128 %s, %s offset:64" % (v(t1), v(VCS + 4, 4)))
        e("s_mov_b64 exec, s[52:53]")
        e("s_mov_b32 s61, s46")
        self.nonce_get(VN)
        self.vm_wait("stat")
        l0 = self.newlabel("SR"); l1 = self.newlabel("SD")
        e("s_mov_b32 s44, 0")
        self.label(l0)
        e("s_mov_b64 s[52:53], -1")
        for tt in range(4):
            e("v_cmp_eq_u32 s[54:55], %s, %s" % (s(S_NONCE), v(VST + tt * 4 + 2)))
            e("v_cmp_eq_u32 s[56:57], %s, %s" % (s(S_NONCE + 1), v(VST + tt * 4 + 3)))
            e("s_and_b64 s[52:53], s[52:53], s[54:55]"); e("s_and_b64 s[52:53], s[52:53], s[56:57]")
        e("s_cmp_eq_u64 s[52:53], -1"); e("s_cbranch_scc1 %s" % l1)
        e("s_add_u32 s44, s44, 1"); e("s_cmp_gt_u32 s44, 20000"); e("s_cbranch_scc1 %s" % l1)
        for tt in range(4):
            e("buffer_load_dwordx4 %s, %s, %s, 0 offen offset:%d sc1" % (v(VST + tt * 4, 4), v(19), s(S_WS, 4), tt * 256))
        e("s_waitcnt vmcnt(0)")
        e("s_branch %s" % l0)
        self.label(l1)
        e("s_waitcnt lgkmcnt(0)")
        e("s_barrier")
        CSV = 146
        e("s_lshl_b32 s52, s50, 7"); e("s_add_u32 s52, s52, 0x%x" % CS_OFF)
        e("v_add_u32 %s, s52, %s" % (v(t1), v(t0)))
        e("ds_read_b128 %s, %s" % (v(CSV + 8, 4), v(t1)))
        e("ds_read_b128 %s, %s offset:64" % (v(CSV + 12, 4), v(t1)))
        for i in range(8): e("v_mov_b32 %s, %s" % (v(CSV + i), v(VCS + i)))
        qs = math.log2(math.e) / math.sqrt(20.0)
        e("s_cmp_lt_u32 %s, 5" % s(S_N1)); e("s_mov_b32 s53, 0x3f800000"); e("s_cselect_b32 s53, 0x%x, s53" % f2u(qs))
        for tt in range(4):
            e("v_mul_f32 %s, s53, %s" % (v(VST + tt * 4 + 1), v(VST + tt * 4 + 1)))
            e("v_xor_b32 %s, 0x80000000, %s" % (v(VST + tt * 4), v(VST + tt * 4)))
        e("v_lshlrev_b32 %s, 11, %s" % (v(t2), v(V_G))); e("v_add_u32 %s, %s, %s" % (v(t2), v(t2), v(V_C))); e("v_lshlrev_b32 %s, 4, %s" % (v(t2), v(t2)))
        e("s_lshl_b32 s54, %s, 7" % s(S_M1)); e("s_lshr_b32 s55, %s, 1" % s(S_W)); e("s_lshl_b32 s55, s55, 6"); e("s_add_u32 s54, s54, s55")
        e("s_lshl_b32 s55, %s, 4" % s(S_N1))
        for q, sp in ((0, 61), (1, 50)):
            e("s_lshl_b32 s56, %s, 2" % s(sp)); e("s_add_u32 s56, s56, s55"); e("s_lshl_b32 s56, s56, 11"); e("s_add_u32 s56, s56, s54")
            e("s_lshl_b32 s56, s56, 4"); e("s_add_u32 %s, s56, 0x%x" % (s(58 + q), WS_QKV))
        e("s_waitcnt lgkmcnt(0)")
        OUTR = 188
        n = 0
        for q in range(2):
            for tt in range(4):
                nm = VST + tt * 4
                P = []
                for hf in range(2):
                    i = 2 * q + hf; A_ = acc(i, tt)
                    for h in range(2):
                        e("v_pk_fma_f32 %s, %s, %s, %s op_sel_hi:[1,0,1]" % (v(A_ + 2 * h, 2), v(CSV + i * 4 + 2 * h, 2), v(nm, 2), v(A_ + 2 * h, 2)))
                    for h in range(2):
                        e("v_pk_mul_f32 %s, %s, %s op_sel:[0,1] op_sel_hi:[1,1]" % (v(A_ + 2 * h, 2), v(A_ + 2 * h, 2), v(nm, 2)))
                    e("v_cvt_pk_bf16_f32 %s, %s, %s" % (v(A_), v(A_), v(A_ + 1)))
                    e("v_cvt_pk_bf16_f32 %s, %s, %s" % (v(A_ + 1), v(A_ + 2), v(A_ + 3)))
                    P.append(A_)
                O4 = OUTR + (n % 4) * 4
                e("v_cndmask_b32 %s, %s, %s, %s" % (v(O4), v(P[0]), v(P[1]), s(S_ODD, 2)))
                e("v_cndmask_b32 %s, %s, %s, %s" % (v(O4 + 1), v(P[0] + 1), v(P[1] + 1), s(S_ODD, 2)))
                e("v_cndmask_b32 %s, %s, %s, %s" % (v(O4 + 2), v(P[1]), v(P[0]), s(S_ODD, 2)))
                e("v_cndmask_b32 %s, %s, %s, %s" % (v(O4 + 3), v(P[1] + 1), v(P[0] + 1), s(S_ODD, 2)))
                self.vm("buffer_store_dwordx4 %s, %s, %s, %s offen offset:%d sc1" % (v(O4, 4), v(t2), s(S_WS, 4), s(58 + q), tt * 256), "qkvst")
                n += 1
        self.vm_wait("qkvst")
        e("s_branch %s" % lab_j)
        self.label(lab_h)
        self.prologue2()
        self.p1_helper()
        self.label(lab_j)
        self.stamp()
        e("s_barrier")
        e("s_lshl_b32 s52, %s, 4" % s(S_M1)); e("s_add_u32 s52, s52, %s" % s(S_N1))
        e("s_mov_b32 s89, s52")
        self.flag_set(0, 52, TMP)
        self.vmq = []
        self.stamp()

    def wait_all(self, phase, vt, barrier=True, allwaves=False):
        e = self.e
        l = self.newlabel("WA")
        if not allwaves:
            e("s_cmp_lg_u32 %s, 0" % s(S_W)); e("s_cbranch_scc1 %s" % l)
        e("v_lshlrev_b32 %s, 8, %s" % (v(vt), v(V_L)))
        if phase: e("v_add_u32 %s, 0x%x, %s" % (v(vt), WS_FLAGS + phase * 16384, v(vt)))
        self.flag_poll(vt, vt + 2, nloads=4, stride=64)
        self.label(l)
        if barrier: e("s_barrier")
    def poll_group(self, phase, vt):
        e = self.e
        e("s_lshl_b32 s52, %s, 10" % s(S_M3)); e("s_add_u32 s52, s52, 0x%x" % (WS_FLAGS + phase * 16384))
        e("v_lshlrev_b32 %s, 6, %s" % (v(vt), v(V_C)))
        e("v_add_u32 %s, s52, %s" % (v(vt), v(vt)))
        self.flag_poll(vt, vt + 2)
    def job4(self, sbase, blk, pos, tag, vl16=4):
        return (["s_add_u32 m0, %s, 0x%x" % (s(S_W1K), pos * 1024), "s_add_u32 %s, %s, 0x%x" % (s(S_SOFF), s(sbase), blk * 1024)],
                "buffer_load_dwordx4 %s, %s, %s offen sc1 lds" % (v(vl16), s(S_WS, 4), s(S_SOFF)), tag)
    def emit_job(self, j):
        for x in j[0]: self.e(x)
        self.vm(j[1], j[2])
    def dma3(self, sbase, blk0, pos0, njobs, tag, vl16=4):
        e = self.e
        e("s_add_u32 s49, %s, %s" % (s(sbase), s(S_W3)))
        for k in range(njobs):
            e("s_add_u32 m0, %s, 0x%x" % (s(S_W3), (pos0 + 3 * k) * 1024))
            e("s_add_u32 %s, s49, 0x%x" % (s(S_SOFF), (blk0 + 3 * k) * 1024))
            self.vm("buffer_load_dwordx4 %s, %s, %s offen sc1 lds" % (v(vl16), s(S_WS, 4), s(S_SOFF)), tag)
    def group_flag_idx(self):
        self.e("s_lshl_b32 s52, %s, 4" % s(S_M3)); self.e("s_add_u32 s52, s52, %s" % s(S_J3))

    def p2(self):
        e = self.e; o = self.o
        KB, VB, BB, QB, OB = 0, 30720, 62080, 69632, 150 * 1024
        T = 200
        t0, t1, t2, t3 = T, T + 1, T + 2, T + 3
        VL16 = 4
        VKA = 5
        VVA = 8
        VMF, VML = 12, 16
        VQ = 20
        OA = 36
        SB = [56, 124]
        NEG = f2u(-1e30)
        self.c("P2 set-up")
        e("v_lshlrev_b32 %s, 4, %s" % (v(VL16), v(V_L)))
        e("s_lshl_b32 %s, %s, 10" % (s(S_W1K), s(S_W))); e("s_sub_u32 %s, %s, 1024" % (s(S_W3), s(S_W1K)))
        e("s_lshr_b32 %s, %s, 1" % (s(S_NQ), s(S_J3)))
        for sb, sk, sz, base in ((S_B3, S_NQ, 102400, WS_PW3), (S_B4, S_J3, 122880, WS_PW4), (S_B5, S_NQ, 245760, WS_PW5)):
            e("s_mul_i32 %s, %s, %d" % (s(sb), s(sk), sz)); e("s_add_u32 %s, %s, 0x%x" % (s(sb), s(sb), base)); e("s_add_u32 %s, %s, %s" % (s(sb), s(sb), s(S_W1K)))
        e("s_lshl_b32 %s, %s, 3" % (s(S_TI), s(S_M3))); e("s_and_b32 s52, %s, 1" % s(S_J3)); e("s_lshl_b32 s52, s52, 2")
        e("s_add_u32 %s, %s, s52" % (s(S_TI), s(S_TI))); e("s_add_u32 %s, %s, %s" % (s(S_TI), s(S_TI), s(S_W)))
        e("s_lshl_b32 s52, %s, 7" % s(S_M3)); e("s_sub_i32 s52, 256, s52")
        e("v_mov_b32 %s, 0xf149" % v(t0 + 4))
        e("v_mov_b32 %s, 0" % v(t0 + 9)); e("v_mov_b32 %s, 0x3f80" % v(t0 + 10)); e("v_mov_b32 %s, 0" % v(t0 + 11))
        e("v_cmp_gt_i32 vcc, s52, v0")
        e("v_cndmask_b32 %s, 0, %s, vcc" % (v(t0 + 8), v(t0 + 4)))
        e("v_lshlrev_b32 %s, 4, v0" % v(t1)); e("v_add_u32 %s, %d, %s" % (v(t1), BB, v(t1)))
        e("ds_write_b128 %s, %s" % (v(t1), v(t0 + 8, 4)))
        e("v_add_u32 %s, 256, v0" % v(t2))
        e("v_cmp_gt_i32 vcc, s52, %s" % v(t2))
        e("v_cndmask_b32 %s, 0, %s, vcc" % (v(t0 + 12), v(t0 + 4)))
        e("v_mov_b32 %s, 0" % v(t0 + 13)); e("v_mov_b32 %s, 0x3f80" % v(t0 + 14)); e("v_mov_b32 %s, 0" % v(t0 + 15))
        e("v_cmp_gt_u32 vcc, 160, v0")
        e("s_and_saveexec_b64 s[54:55], vcc")
        e("ds_write_b128 %s, %s offset:4096" % (v(t1), v(t0 + 12, 4)))
        e("s_mov_b64 exec, s[54:55]")
        e("s_mul_i32 s55, %s, 5" % s(S_J3))
        e("s_lshl_b32 s56, %s, 7" % s(S_M3)); e("s_sub_i32 s56, s56, 256")
        e("s_cmp_ge_u32 %s, 2" % s(S_W))
        e("s_cselect_b32 s57, -2, 4")
        e("s_cselect_b32 s70, 26624, 0")
        e("s_cselect_b32 s71, 128, 0")
        e("s_add_i32 s57, s57, %s" % s(S_W))
        for k, (reg, add) in enumerate(((S_W, 0), (57, 0), (S_W, 2))):
            e("s_add_i32 s58, %s, %d" % (s(reg), add)); e("s_lshl_b32 s58, s58, 6"); e("s_add_i32 s58, s58, s56"); e("s_cmp_lt_i32 s58, 0")
            e("s_cselect_b32 %s, 0x%x, 0" % (s(64 + k), BIGOFF))
        e("s_add_u32 s65, s65, s70")
        e("s_lshl_b32 s56, s56, 4"); e("s_add_u32 s56, s56, %s" % s(S_W1K))
        e("s_add_u32 s58, s55, 80"); e("s_lshl_b32 s58, s58, 15"); e("s_add_u32 s58, s58, 0x%x" % WS_QKV); e("s_add_u32 s68, s58, s56")
        e("s_add_u32 s69, s68, 0x%x" % (80 << 15))
        e("s_lshr_b32 s58, %s, 1" % s(S_W)); e("s_add_u32 s58, s58, s55"); e("s_lshl_b32 s58, s58, 15"); e("s_lshl_b32 s59, %s, 11" % s(S_M3)); e("s_add_u32 s58, s58, s59")
        e("s_and_b32 s59, %s, 1" % s(S_W)); e("s_lshl_b32 s59, s59, 10"); e("s_add_u32 s58, s58, s59"); e("s_add_u32 s72, s58, 0x%x" % WS_QKV)
        self.c("fragment addresses and masks")
        e("s_lshl_b32 s57, %s, 5" % s(S_W)); e("v_add_u32 %s, s57, %s" % (v(t0), v(V_C))); e("v_lshlrev_b32 %s, 4, %s" % (v(t0), v(t0)))
        e("v_cmp_eq_u32 s[58:59], 3, %s" % v(V_G)); e("v_cmp_eq_u32 s[60:61], 2, %s" % v(V_G))
        e("v_mul_u32_u24 %s, 6144, %s" % (v(t1), v(V_G)))
        e("v_mov_b32 %s, %d" % (v(t2), BB))
        e("v_cndmask_b32 %s, %s, %s, s[58:59]" % (v(VKA), v(t1), v(t2)))
        e("v_add_u32 %s, %d, %s" % (v(t3), 3 * 6144, v(t1)))
        e("v_mov_b32 %s, %d" % (v(t0 + 4), 2 * 6144))
        e("v_cndmask_b32 %s, %s, %s, s[60:61]" % (v(t3), v(t3), v(t0 + 4)))
        e("v_cndmask_b32 %s, %s, %s, s[58:59]" % (v(VKA + 1), v(t3), v(t2)))
        e("v_add_u32 %s, %s, %s" % (v(VKA), v(VKA), v(t0))); e("v_add_u32 %s, %s, %s" % (v(VKA + 1), v(VKA + 1), v(t0)))
        VQA = 52
        e("v_lshlrev_b32 %s, 11, %s" % (v(t1), v(V_G)))
        e("v_cndmask_b32 %s, %s, 0, s[58:59]" % (v(VQA), v(t1)))
        e("v_add_u32 %s, %d, %s" % (v(t3), 3 * 2048, v(t1))); e("v_mov_b32 %s, %d" % (v(t0 + 4), 2 * 2048))
        e("v_cndmask_b32 %s, %s, %s, s[60:61]" % (v(t3), v(t3), v(t0 + 4)))
        e("v_cndmask_b32 %s, %s, 0, s[58:59]" % (v(VQA + 1), v(t3)))
        e("v_add_u32 %s, %d, %s" % (v(t3), QB, v(t0)))
        for h in range(2): e("v_add_u32 %s, %s, %s" % (v(VQA + h), v(VQA + h), v(t3)))
        e("v_lshrrev_b32 %s, 2, %s" % (v(t0), v(V_C))); e("v_lshl_add_u32 %s, %s, 2, %s" % (v(t0), v(V_G), v(t0)))
        e("v_add_u32 %s, s57, %s" % (v(t0), v(t0))); e("v_lshlrev_b32 %s, 4, %s" % (v(t0), v(t0)))
        e("v_and_b32 %s, 3, %s" % (v(t1), v(V_L)))
        for h in range(2):
            e("v_add_u32 %s, %d, %s" % (v(t2), 5 * h, v(t1)))
            e("v_lshrrev_b32 %s, 1, %s" % (v(t3), v(t2))); e("v_mul_u32_u24 %s, 6272, %s" % (v(t3), v(t3)))
            e("v_and_b32 %s, 1, %s" % (v(t2), v(t2))); e("v_lshl_add_u32 %s, %s, 3, %s" % (v(t3), v(t2), v(t3)))
            e("v_add_u32 %s, %s, %s" % (v(VVA + 2 * h), v(t3), v(t0)))
            e("v_add_u32 %s, %d, %s" % (v(VVA + 2 * h), VB, v(VVA + 2 * h)))
            X = 5 * h + 4
            e("v_and_b32 %s, 1, %s" % (v(t2), v(t1))); e("v_cmp_eq_u32 vcc, 1, %s" % v(t2))
            e("v_mov_b32 %s, %d" % (v(t3), VB + (X >> 1) * 6272 + (X & 1) * 8)); e("v_mov_b32 %s, %d" % (v(t0 + 4), BB + 8))
            e("v_cndmask_b32 %s, %s, %s, vcc" % (v(t3), v(t3), v(t0 + 4)))
            e("v_add_u32 %s, %s, %s" % (v(VVA + 2 * h + 1), v(t3), v(t0)))
        e("v_lshlrev_b32 %s, 2, %s" % (v(t0), v(V_G))); e("v_mov_b32 %s, 0x%x" % (v(t1), NEG))
        for i in range(4):
            e("v_add_u32 %s, %d, %s" % (v(t2), i, v(t0)))
            e("v_cmp_gt_u32 vcc, %s, %s" % (v(t2), v(V_C)))
            e("v_cndmask_b32 %s, %s, 0, vcc" % (v(VMF + i), v(t1)))
            e("v_cndmask_b32 %s, 0, %s, vcc" % (v(VML + i), v(t1)))
        VOW = 54
        e("s_mul_i32 %s, %s, 2560" % (s(S_OST), s(S_W))); e("s_add_u32 %s, %s, %d" % (s(S_OST), s(S_OST), OB))
        e("v_mul_u32_u24 %s, 80, %s" % (v(VOW), v(V_C))); e("v_lshl_add_u32 %s, %s, 3, %s" % (v(VOW), v(V_G), v(VOW))); e("v_add_u32 %s, %s, %s" % (v(VOW), s(S_OST), v(VOW)))
        e("s_waitcnt vmcnt(0) lgkmcnt(0)")
        e("s_barrier")
        self.flag_set(4, 89, T + 20)
        self.wait_all(0, T + 20)
        self.stamp()
        self.vmq = []
        def kvjob(base_s, ldsb, pitch, u, pat, tag):
            g = u * 32768 + (0, 4096, 32768 + 2048)[pat]
            l = ldsb + u * pitch + (0, 4096, pitch + 2048)[pat]
            e("s_add_u32 m0, %s, %d" % (s(S_W1K), l))
            if pat == 1 and pitch != 6144: e("s_add_u32 m0, m0, s71")
            e("s_add_u32 %s, %s, %s" % (s(S_SOFF), s(base_s), s(64 + pat)))
            if g: e("s_add_u32 %s, %s, %d" % (s(S_SOFF), s(S_SOFF), g))
            self.vm("buffer_load_dwordx4 %s, %s, %s offen sc1 lds" % (v(VL16), s(S_WS, 4), s(S_SOFF)), tag)
        def halfjob(base_s, ldsb, pitch, u, tag):
            e("s_cmp_ge_u32 %s, 2" % s(S_W))
            e("s_cselect_b32 s58, %d, %d" % (156 * 1024 - 2048, 0) if False else "s_mov_b32 s58, %d" % (ldsb + u * pitch + 4096))
            e("s_cselect_b32 s58, %d, s58" % (76 * 1024))
            e("s_add_u32 m0, %s, s58" % s(S_W1K))
            e("s_cselect_b32 s58, 0x%x, s65" % BIGOFF if False else "s_cmp_ge_u32 %s, 2" % s(S_W))
            e("s_cselect_b32 s58, 0x%x, s65" % BIGOFF)
            e("s_add_u32 %s, %s, s58" % (s(S_SOFF), s(base_s))); e("s_add_u32 %s, %s, %d" % (s(S_SOFF), s(S_SOFF), u * 32768 + 4096))
            self.vm("buffer_load_dwordx4 %s, %s, %s offen sc1 lds" % (v(VL16), s(S_WS, 4), s(S_SOFF)), tag)
        def qjob(u0, tag):
            e("s_add_u32 m0, %s, %d" % (s(S_W1K), QB + u0 * 2048))
            if u0 == 4:
                e("s_cmp_ge_u32 %s, 2" % s(S_W)); e("s_cselect_b32 s58, 0x%x, 0" % BIGOFF); e("s_add_u32 %s, s72, s58" % s(S_SOFF))
                e("s_add_u32 %s, %s, %d" % (s(S_SOFF), s(S_SOFF), u0 * 32768))
            else:
                e("s_add_u32 %s, s72, %d" % (s(S_SOFF), u0 * 32768))
            self.vm("buffer_load_dwordx4 %s, %s, %s offen sc1 lds" % (v(VL16), s(S_WS, 4), s(S_SOFF)), tag)
        for u in (0, 2):
            for pat in range(3): kvjob(68, KB, 6144, u, pat, "kq")
            qjob(u, "kq")
        qjob(4, "kq")
        for u in (0, 2):
            for pat in range(3): kvjob(69, VB, 6272, u, pat, "rest")
        for base_s, ldsb, pitch in ((68, KB, 6144), (69, VB, 6272)):
            kvjob(base_s, ldsb, pitch, 4, 0, "rest"); halfjob(base_s, ldsb, pitch, 4, "rest")
        lw = self.newlabel("FP")
        e("v_lshlrev_b32 %s, 8, %s" % (v(T + 20), v(V_L))); e("v_add_u32 %s, 0x%x, %s" % (v(T + 20), WS_FLAGS + 4 * 16384, v(T + 20)))
        e("s_cmp_lg_u32 %s, 0" % s(S_W)); e("s_cbranch_scc1 %s" % lw)
        for k in range(4):
            e("buffer_load_dwordx2 %s, %s, %s, 0 offen offset:%d sc1" % (v(T + 22 + 2 * k, 2), v(T + 20), s(S_WS, 4), k * 64))
        e("s_waitcnt vmcnt(14)")
        e("s_branch %s_j" % lw)
        self.label(lw)
        self.vm_wait("kq")
        self.label(lw + "_j")
        e("s_waitcnt lgkmcnt(0)")
        e("s_barrier")
        self.stamp()
        self.c("fragment loads")
        KF = [0, 72]; VF = [144, 0]
        def k_reads(h): return ["ds_read_b128 %s, %s offset:%d" % (a(KF[h] + B * 4, 4), v(VKA + h), B * 256) for B in range(18)]
        def v_reads(h):
            r = []
            for p in range(9):
                for dt in range(2):
                    d = VF[h] + (p * 2 + dt) * 4
                    r.append("ds_read_b64_tr_b16 %s, %s offset:%d" % (a(d, 2), v(VVA + 2 * h + dt), p * 512))
                    r.append("ds_read_b64_tr_b16 %s, %s offset:%d" % (a(d + 2, 2), v(VVA + 2 * h + dt), p * 512 + 256))
            return r
        for h in range(2):
            for qs in range(2):
                e("ds_read_b128 %s, %s offset:%d" % (v(VQ + (h * 2 + qs) * 4, 4), v(VQA + h), qs * 256))
        for x in k_reads(0)[:11]: e(x)
        e("v_cmp_eq_u32 s[58:59], 3, %s" % v(V_G)); e("v_cmp_eq_u32 s[60:61], 2, %s" % v(V_G))
        e("s_waitcnt lgkmcnt(11)")
        e("v_mov_b32 %s, 0x3f80" % v(t1))
        for h in range(2):
            for qs in range(2):
                q = VQ + (h * 2 + qs) * 4
                z = (2, 3) if h == 0 else (0, 1)
                for i in z: e("v_cndmask_b32 %s, %s, 0, s[60:61]" % (v(q + i), v(q + i)))
                e("v_cndmask_b32 %s, %s, %s, s[58:59]" % (v(q), v(q), v(t1)))
                for i in range(1, 4): e("v_cndmask_b32 %s, %s, 0, s[58:59]" % (v(q + i), v(q + i)))
        e("s_waitcnt lgkmcnt(8)")
        for x in k_reads(0)[11:]: e(x)
        tasks = [(0, 0), (0, 1), (1, 0), (1, 1)]
        def A(ti):
            h, qs = tasks[ti]; S = SB[ti % 2]; r = []
            for b in range(17):
                C = v(VMF, 4) if b == 0 else (v(VML, 4) if b == 16 else "0")
                r.append("%s %s, %s, %s, %s" % (M, v(S + b * 4, 4), a(KF[h] + (qs + b) * 4, 4), v(VQ + (h * 2 + qs) * 4, 4), C))
            return r
        MX = T + 8
        def Bst(ti):
            S = SB[ti % 2]
            vals = [S + i for i in range(68)]
            ins = []
            for c4 in range(4):
                ins.append("v_max3_f32 %s, %s, %s, %s" % (v(MX + c4), v(vals[3 * c4]), v(vals[3 * c4 + 1]), v(vals[3 * c4 + 2])))
            k = 12; ch = 0
            while k < 68:
                ins.append("v_max3_f32 %s, %s, %s, %s" % (v(MX + ch), v(MX + ch), v(vals[k]), v(vals[k + 1]))); k += 2; ch = (ch + 1) % 4
            groups = [ins[i:i + 2] for i in range(0, len(ins), 2)]
            tail = ["v_max3_f32 %s, %s, %s, %s" % (v(MX), v(MX), v(MX + 1), v(MX + 2)), "v_max_f32 %s, %s, %s" % (v(MX), v(MX), v(MX + 3)),
                    "v_mov_b32 %s, %s" % (v(MX + 1), v(MX)), "s_nop 0", "v_permlane16_swap_b32 %s, %s" % (v(MX), v(MX + 1)), "v_max_f32 %s, %s, %s" % (v(MX), v(MX), v(MX + 1)),
                    "v_mov_b32 %s, %s" % (v(MX + 1), v(MX)), "s_nop 0", "v_permlane32_swap_b32 %s, %s" % (v(MX), v(MX + 1)), "v_max_f32 %s, %s, %s" % (v(MX + 4), v(MX), v(MX + 1))]
            return groups, tail
        def Cst(ti):
            h, qs = tasks[ti]; S = SB[ti % 2]
            def adds(b):
                q = S + b * 4
                return ["v_pk_add_f32 %s, %s, %s op_sel_hi:[1,0] neg_lo:[0,1] neg_hi:[0,1]" % (v(q + 2 * hh, 2), v(q + 2 * hh, 2), v(MX + 4, 2)) for hh in range(2)]
            def cvts(b):
                q = S + b * 4; B = qs + b; r = []
                if B % 2 == 0:
                    r.append("v_cvt_pk_bf16_f32 %s, %s, %s" % (v(q), v(q), v(q + 1)))
                    r.append("v_cvt_pk_bf16_f32 %s, %s, %s" % (v(q + 1), v(q + 2), v(q + 3)))
                    if B == 16 and qs == 0: r += ["v_mov_b32 %s, 0" % v(q + 2), "v_mov_b32 %s, 0" % v(q + 3)]
                elif b == 0:
                    r.append("v_cvt_pk_bf16_f32 %s, %s, %s" % (v(q + 3), v(q + 2), v(q + 3)))
                    r.append("v_cvt_pk_bf16_f32 %s, %s, %s" % (v(q + 2), v(q), v(q + 1)))
                    r += ["v_mov_b32 %s, 0" % v(q), "v_mov_b32 %s, 0" % v(q + 1)]
                else:
                    r.append("v_cvt_pk_bf16_f32 %s, %s, %s" % (v(q - 2), v(q), v(q + 1)))
                    r.append("v_cvt_pk_bf16_f32 %s, %s, %s" % (v(q - 1), v(q + 2), v(q + 3)))
                return r
            head = adds(0)
            groups = []
            for b in range(17):
                q = S + b * 4
                groups.append(["v_exp_f32 %s, %s" % (v(q + i), v(q + i)) for i in range(4)] + (adds(b + 1) if b < 16 else []) + cvts(b))
            return head, groups
        def pfrag(ti, p):
            h, qs = tasks[ti]; S = SB[ti % 2]
            if qs == 0: return S + (2 * p) * 4
            return S + (0 if p == 0 else (2 * p - 1)) * 4
        def D(ti):
            h, qs = tasks[ti]; r = []
            for p in range(9):
                for dt in range(2):
                    d = OA + (ti % 2) * 8 + dt * 4
                    r.append("%s %s, %s, %s, %s" % (M, v(d, 4), a(VF[h] + (p * 2 + dt) * 4, 4), v(pfrag(ti, p), 4), v(d, 4) if p else "0"))
            return r
        def E(ti):
            h, qs = tasks[ti]; d = OA + (ti % 2) * 8; L = T + 14; r = []
            r += ["v_mov_b32 %s, %s" % (v(L), v(d + 4)), "v_mov_b32 %s, %s" % (v(L + 1), v(d + 4)),
                  "v_permlane16_swap_b32 %s, %s" % (v(L), v(L + 1)), "v_rcp_f32 %s, %s" % (v(L + 2), v(L + 1))]
            for hh in range(2):
                r.append("v_pk_mul_f32 %s, %s, %s op_sel_hi:[1,0]" % (v(d + 2 * hh, 2), v(d + 2 * hh, 2), v(L + 2, 2)))
                r.append("v_pk_mul_f32 %s, %s, %s op_sel_hi:[1,0]" % (v(d + 4 + 2 * hh, 2), v(d + 4 + 2 * hh, 2), v(L + 2, 2)))
            r += ["v_cvt_pk_bf16_f32 %s, %s, %s" % (v(d), v(d), v(d + 1)), "v_cvt_pk_bf16_f32 %s, %s, %s" % (v(d + 1), v(d + 2), v(d + 3)),
                  "v_cvt_pk_bf16_f32 %s, %s, %s" % (v(d + 4), v(d + 4), v(d + 5)), "v_cvt_pk_bf16_f32 %s, %s, %s" % (v(d + 5), v(d + 6), v(d + 7)),
                  "ds_write_b64 %s, %s offset:%d" % (v(VOW), v(d, 2), qs * 1280 + h * 40),
                  "s_mov_b64 exec, 0xffff",
                  "ds_write_b64 %s, %s offset:%d" % (v(VOW), v(d + 4, 2), qs * 1280 + h * 40 + 32),
                  "s_mov_b64 exec, -1"]
            return r
        def stage(ti, mB, mC, lds, jobs, mid=None):
            groups, tail = Bst(ti)
            mB = list(mB); mC = list(mC); lds = list(lds); jobs = list(jobs)
            for gi, gr in enumerate(groups):
                if mB: e(mB.pop(0))
                for x in gr: e(x)
            for x in mB: e(x)
            for x in tail: e(x)
            if mid: mid()
            head, cg = Cst(ti)
            for x in head: e(x)
            per = (len(lds) + 16) // 17
            for b, gr in enumerate(cg):
                if mC: e(mC.pop(0))
                jb = None
                if jobs and b >= 0:
                    jb = jobs.pop(0)
                    for x in jb[0]: e(x)
                for x in gr[:4]: e(x)
                if lds: e("s_waitcnt lgkmcnt(%d)" % (15 - per))
                for _ in range(per):
                    if lds: e(lds.pop(0))
                for x in gr[4:]: e(x)
                if jb: self.vm(jb[1], jb[2])
            for x in mC: e(x)
            for x in lds: e(x)
            for jb in jobs: self.emit_job(jb)
        W0 = ["s_waitcnt lgkmcnt(0)"]
        def chunked(r):
            out = []
            return list(r)
        wo_a = [self.job4(S_B3, 4 * k, 80 + 4 * k, "w3a") for k in range(17)]
        wo_b = [self.job4(S_B3, 68 + 4 * k, 4 * k, "w3b") for k in range(8)]
        w1_a = [self.job4(S_B4, 4 * k, 32 + 4 * k, "w4a") for k in range(12)]
        def touch(sbase, first_blk, n8k, who, nshare):
            r = []
            for k in range((n8k + 3) // 4):
                su = ["s_mul_i32 s58, %s, %d" % (s(who), n8k * 8192), "s_add_u32 s58, s58, %s" % s(sbase), "s_mul_i32 s59, %s, 7168" % s(S_W),
                      "s_add_u32 s58, s58, s59", "s_add_u32 %s, s58, %d" % (s(S_SOFF), first_blk * 1024 + k * 32768)]
                r.append((su, "buffer_load_dword v%d, v198, %s, %s offen" % (192 + k, s(S_WS, 4), s(S_SOFF)), "touch"))
            return r
        e("v_lshlrev_b32 v198, 7, %s" % v(V_L))
        e("s_and_b32 s73, %s, 1" % s(S_M3))
        e("s_lshl_b32 s74, s73, 1"); e("s_and_b32 s58, %s, 1" % s(S_J3)); e("s_add_u32 s74, s74, s58")
        tch = touch(S_B4, 48, 5, 73, 2) if o.get("pf2", 1) else []
        self.vmq = []
        e("s_waitcnt lgkmcnt(0)")
        for x in A(0): e(x)
        if o.get("fine2"): self.stamp()
        def sync2():
            lw = self.newlabel("S2")
            if o.get("fine2"): self.stamp()
            e("s_waitcnt vmcnt(0)")
            e("s_cmp_lg_u32 %s, 0" % s(S_W)); e("s_cbranch_scc1 %s" % lw)
            e("s_mov_b64 s[50:51], -1")
            for k in range(4):
                e("v_cmp_eq_u32 s[46:47], %s, %s" % (s(S_NONCE), v(T + 22 + 2 * k))); e("v_cmp_eq_u32 s[48:49], %s, %s" % (s(S_NONCE + 1), v(T + 23 + 2 * k)))
                e("s_and_b64 s[50:51], s[50:51], s[46:47]"); e("s_and_b64 s[50:51], s[50:51], s[48:49]")
            e("s_cmp_eq_u64 s[50:51], -1"); e("s_cbranch_scc1 %s" % lw)
            self.flag_poll(T + 20, T + 22, nloads=4, stride=64)
            self.label(lw)
            e("s_barrier")
            if o.get("fine2"): self.stamp()
        stage(0, A(1), [], chunked(v_reads(0)) + chunked(k_reads(1)), [], mid=sync2)
        e("s_waitcnt lgkmcnt(0)")
        if o.get("fine2"): self.stamp()
        stage(1, D(0)[:17], D(0)[17:] + A(2)[:16], chunked(v_reads(1)), wo_a)
        for x in A(2)[16:]: e(x)
        e("s_waitcnt lgkmcnt(0)")
        e("s_barrier")
        if o.get("fine2"): self.stamp()
        for x in E(0): e(x)
        stage(2, D(1)[:17], D(1)[17:] + A(3)[:16], [], wo_b + w1_a[:6])
        for x in A(3)[16:]: e(x)
        for x in E(1): e(x)
        if o.get("fine2"): self.stamp()
        stage(3, D(2)[:17], D(2)[17:], [], w1_a[6:] + tch)
        for x in E(2): e(x)
        for x in D(3): e(x)
        for x in E(3): e(x)
        self.stamp()
        self.c("o: staging -> fragment-major global")
        e("v_mul_u32_u24 %s, 80, %s" % (v(t0), v(V_C))); e("v_add_u32 %s, %s, %s" % (v(t0), s(S_OST), v(t0)))
        e("v_lshl_add_u32 %s, %s, 4, %s" % (v(t1), v(V_G), v(t0)))
        e("v_mul_u32_u24 %s, 1280, %s" % (v(t2), v(V_G))); e("v_add_u32 %s, %s, %s" % (v(t2), v(t2), v(t0)))
        e("v_min_u32 %s, %d, %s" % (v(t2), OB + 4 * 2560 - 80, v(t2)))
        e("s_waitcnt lgkmcnt(0)")
        R = 56
        e("ds_read_b128 %s, %s" % (v(R, 4), v(t1)))
        e("ds_read_b128 %s, %s offset:1280" % (v(R + 4, 4), v(t1)))
        e("ds_read_b128 %s, %s offset:64" % (v(R + 8, 4), v(t2)))
        e("s_mul_i32 s55, %s, 5" % s(S_J3))
        e("s_lshl_b32 s58, %s, 3" % s(S_M3)); e("s_lshl_b32 s59, %s, 1" % s(S_W)); e("s_add_u32 s58, s58, s59"); e("s_mul_i32 s58, s58, 20480")
        e("s_add_u32 s58, s58, 0x%x" % WS_O)
        e("v_add_u32 %s, s55, %s" % (v(t0), v(V_G)))
        e("v_lshrrev_b32 %s, 2, %s" % (v(t1), v(t0))); e("v_lshlrev_b32 %s, 10, %s" % (v(t1), v(t1)))
        e("v_and_b32 %s, 3, %s" % (v(t0), v(t0))); e("v_lshl_add_u32 %s, %s, 8, %s" % (v(t1), v(t0), v(t1)))
        e("v_lshl_add_u32 %s, %s, 4, %s" % (v(t1), v(V_C), v(t1)))
        e("s_add_u32 s59, s55, 4"); e("s_lshr_b32 s60, s59, 2"); e("s_lshl_b32 s60, s60, 10"); e("s_and_b32 s59, s59, 3"); e("s_lshl_b32 s59, s59, 8"); e("s_add_u32 s60, s60, s59")
        e("v_mul_u32_u24 %s, 20480, %s" % (v(t3), v(V_G))); e("v_lshl_add_u32 %s, %s, 4, %s" % (v(t3), v(V_C), v(t3))); e("v_add_u32 %s, s60, %s" % (v(t3), v(t3)))
        e("s_waitcnt lgkmcnt(0)")
        self.vm("buffer_store_dwordx4 %s, %s, %s, s58 offen sc1" % (v(R, 4), v(t1), s(S_WS, 4)), "ost")
        e("s_add_u32 s59, s58, 20480")
        self.vm("buffer_store_dwordx4 %s, %s, %s, s59 offen sc1" % (v(R + 4, 4), v(t1), s(S_WS, 4)), "ost")
        e("s_mov_b64 exec, 0xffffffff")
        self.vm("buffer_store_dwordx4 %s, %s, %s, s58 offen sc1" % (v(R + 8, 4), v(t3), s(S_WS, 4)), "ost")
        e("s_mov_b64 exec, -1")

    def handoff(self, phase, jobs):
        e = self.e
        l2 = self.newlabel("H2")
        for j in jobs: self.emit_job(j)
        e("s_waitcnt vmcnt(%d)" % len(jobs))
        e("s_barrier")
        self.stamp()
        e("s_cmp_lg_u32 %s, 0" % s(S_W)); e("s_cbranch_scc1 %s" % l2)
        self.group_flag_idx()
        self.flag_set(phase, 52, 212, checkwave=False)
        self.poll_group(phase, 212)
        self.label(l2)
        e("s_waitcnt vmcnt(0)")
        e("s_barrier")
        self.stamp()

    def gemm_small(self, NS, VL16, ACC, pos, bfrag, btag, RING, T, hooks, slots):
        e = self.e
        VA = T + 16
        def rd(st):
            r = []
            for t in range(5):
                off = pos(st * 5 + t) * 1024
                r.append("ds_read_b128 %s, %s offset:%d" % (a(RING + ((st % 3) * 5 + t) * 4, 4), v(VA + off // 65536), off % 65536))
            return r
        for x in rd(0) + rd(1): e(x)
        for st in range(NS):
            if st in hooks: hooks[st]()
            self.vm_wait(btag(st), " lgkmcnt(%d)" % (5 if st + 1 < NS else 0))
            nx = rd(st + 2) if st + 2 < NS else []
            jobs = list(slots(st))
            for t in range(5):
                jb = None
                if jobs and t in (0, 2, 4):
                    jb = jobs.pop(0)
                    for x in jb[0]: e(x)
                e("%s %s, %s, %s, %s" % (M, v(ACC + t * 4, 4), a(RING + ((st % 3) * 5 + t) * 4, 4), a(bfrag(st), 4), v(ACC + t * 4, 4)))
                if t < len(nx): e(nx[t])
                if jb: self.vm(jb[1], jb[2])
            for jb in jobs: self.emit_job(jb)

    def frag_job(self, dst, sreg, idx, tag, VL16=4):
        su = []
        if idx % 4 == 0 and idx > 0: su = ["s_add_u32 %s, %s, 4096" % (s(sreg), s(sreg))]
        return (su, "buffer_load_dwordx4 %s, %s, %s, %s offen offset:%d sc1" % (a(dst, 4), v(VL16), s(S_WS, 4), s(sreg), (idx % 4) * 1024), tag)

    def p3(self):
        e = self.e; o = self.o
        VL16 = 4; T = 200; t0, t1, t2, t3 = T, T + 1, T + 2, T + 3
        XR = 8
        ACC = 32
        HR = 240
        self.c("P2 -> P3 hand-off")
        VA = T + 16
        e("v_mov_b32 %s, %s" % (v(VA), v(VL16))); e("v_add_u32 %s, 0x10000, %s" % (v(VA + 1), v(VL16))); e("v_add_u32 %s, 0x20000, %s" % (v(VA + 2), v(VL16)))
        for i in range(20): e("v_mov_b32 %s, 0" % v(ACC + i))
        e("s_lshl_b32 s54, %s, 4" % s(S_TI)); e("v_add_u32 %s, s54, %s" % (v(t0), v(V_C))); e("v_mul_u32_u24 %s, 1280, %s" % (v(t0), v(t0)))
        e("s_mul_i32 s54, %s, 160" % s(S_NQ))
        e("v_lshl_add_u32 %s, %s, 4, %s" % (v(t1), v(V_G), v(t0))); e("v_add_u32 %s, s54, %s" % (v(20), v(t1)))
        e("v_lshl_add_u32 %s, %s, 3, %s" % (v(t1), v(V_G), v(t0))); e("v_add_u32 %s, s54, %s" % (v(21), v(t1)))
        e("s_waitcnt lgkmcnt(0)")
        e("s_barrier")
        self.handoff(1, [])
        self.c("P3 main")
        e("s_mul_i32 s54, %s, 20480" % s(S_TI)); e("s_add_u32 s54, s54, 0x%x" % WS_O)
        fj = [self.frag_job(st * 4, 54, st, ("of", st)) for st in range(20)]
        LA = 10
        for st in range(LA): self.emit_job(fj[st])
        xr = [([], "buffer_load_dwordx4 %s, v20, %s, 0 offen" % (v(XR, 4), s(S_X, 4)), "xr"),
              ([], "buffer_load_dwordx4 %s, v20, %s, 0 offen offset:64" % (v(XR + 4, 4), s(S_X, 4)), "xr"),
              ([], "buffer_load_dwordx2 %s, v21, %s, 0 offen offset:128" % (v(XR + 8, 2), s(S_X, 4)), "xr")]
        def slots(st):
            r = []
            if st + LA < 20: r.append(fj[st + LA])
            if 12 <= st < 15: r.append(xr[st - 12])
            return r
        self.gemm_small(20, VL16, ACC, lambda i: 80 + i if i < 68 else i - 68, lambda st: st * 4, lambda st: ("of", st), 80, T, {}, slots)
        self.stamp()
        self.c("P3 epilogue")
        SUM, SQ = T + 4, T + 6
        e("v_mov_b32 %s, 0" % v(SUM)); e("v_mov_b32 %s, 0" % v(SUM + 1)); e("v_mov_b32 %s, 0" % v(SQ)); e("v_mov_b32 %s, 0" % v(SQ + 1))
        e("s_mul_i32 s54, %s, 20480" % s(S_TI)); e("s_add_u32 s54, s54, 0x%x" % WS_H)
        e("s_mul_i32 s55, %s, 10" % s(S_NQ))
        def uaddr(dst, ureg):
            e("v_lshrrev_b32 %s, 2, %s" % (v(t2), v(ureg))); e("v_lshlrev_b32 %s, 10, %s" % (v(t2), v(t2)))
            e("v_and_b32 %s, 3, %s" % (v(t3), v(ureg))); e("v_lshl_add_u32 %s, %s, 8, %s" % (v(t2), v(t3), v(t2)))
            e("v_lshl_add_u32 %s, %s, 4, %s" % (v(dst), v(V_C), v(t2)))
        for p in range(2):
            e("v_add_u32 %s, s55, %s" % (v(t0), v(V_G)))
            if p: e("v_add_u32 %s, 4, %s" % (v(t0), v(t0)))
            uaddr(22 + p, t0)
        e("v_lshrrev_b32 %s, 1, %s" % (v(t0), v(V_G))); e("v_add_u32 %s, s55, %s" % (v(t0), v(t0))); e("v_add_u32 %s, 8, %s" % (v(t0), v(t0)))
        uaddr(24, t0)
        e("v_and_b32 %s, 1, %s" % (v(t0), v(V_G))); e("v_lshl_add_u32 %s, %s, 3, %s" % (v(24), v(t0), v(24)))
        self.vm_wait("xr")
        for t in range(5):
            A_ = ACC + t * 4
            xs = (XR + (t >> 1) * 4 + (t & 1) * 2) if t < 4 else XR + 8
            for hh in range(2):
                e("v_lshlrev_b32 %s, 16, %s" % (v(t0), v(xs + hh))); e("v_and_b32 %s, 0xffff0000, %s" % (v(t1), v(xs + hh)))
                e("v_pk_add_f32 %s, %s, %s" % (v(A_ + 2 * hh, 2), v(A_ + 2 * hh, 2), v(t0, 2)))
                hd = (HR + (t >> 1) * 4 + (t & 1) * 2 + hh) if t < 4 else HR + 8 + hh
                e("v_cvt_pk_bf16_f32 %s, %s, %s" % (v(hd), v(A_ + 2 * hh), v(A_ + 2 * hh + 1)))
            if t == 1: self.vm("buffer_store_dwordx4 %s, v22, %s, s54 offen sc1" % (v(HR, 4), s(S_WS, 4)), "hst")
            if t == 3: self.vm("buffer_store_dwordx4 %s, v23, %s, s54 offen sc1" % (v(HR + 4, 4), s(S_WS, 4)), "hst")
            if t == 4: self.vm("buffer_store_dwordx2 %s, v24, %s, s54 offen sc1" % (v(HR + 8, 2), s(S_WS, 4)), "hst")
        for t in range(5):
            A_ = ACC + t * 4
            for hh in range(2):
                e("v_pk_add_f32 %s, %s, %s" % (v(SUM, 2), v(SUM, 2), v(A_ + 2 * hh, 2)))
                e("v_pk_fma_f32 %s, %s, %s, %s" % (v(SQ, 2), v(A_ + 2 * hh, 2), v(A_ + 2 * hh, 2), v(SQ, 2)))
        e("v_add_f32 %s, %s, %s" % (v(SUM), v(SUM), v(SUM + 1))); e("v_add_f32 %s, %s, %s" % (v(SUM + 1), v(SQ), v(SQ + 1)))
        self.reduce4(SUM, t0); self.reduce4(SUM + 1, t0)
        e("s_lshl_b32 s54, %s, 4" % s(S_TI)); e("v_add_u32 %s, s54, %s" % (v(t0), v(V_C))); e("v_lshlrev_b32 %s, 6, %s" % (v(t0), v(t0)))
        e("s_lshl_b32 s54, %s, 3" % s(S_NQ)); e("s_add_u32 s54, s54, 0x%x" % WS_HS)
        e("s_mov_b64 exec, 0xffff")
        self.vm("buffer_store_dwordx2 %s, %s, %s, s54 offen sc1" % (v(SUM, 2), v(t0), s(S_WS, 4)), "hst")
        e("s_mov_b64 exec, -1")

    def p4(self):
        e = self.e; o = self.o
        VL16 = 4; T = 200; t0, t1, t2, t3 = T, T + 1, T + 2, T + 3
        ACC = 32
        CSA = 80
        CSV = 88
        VONE = 112
        VST = 116
        CS_OFF = 158 * 1024
        RING = 160
        pos = lambda i: 32 + i if i < 48 else 80 + (i - 48)
        self.c("P3 -> P4 hand-off")
        for i in range(4): e("v_mov_b32 %s, 0x3f803f80" % v(VONE + i))
        for i in range(8): e("v_mov_b32 %s, 0" % v(CSA + i))
        for i in range(48): e("v_mov_b32 %s, 0" % v(ACC + i))
        e("s_barrier")
        self.handoff(2, [self.job4(S_B4, 48 + 4 * k, 80 + 4 * k, "w4b") for k in range(18)])
        self.c("P4 main")
        e("s_lshl_b32 s54, %s, 3" % s(S_M3)); e("s_lshl_b32 s55, %s, 1" % s(S_W)); e("s_add_u32 s54, s54, s55")
        e("s_mov_b32 s88, s54")
        e("s_mul_i32 s55, s54, 20480"); e("s_add_u32 s55, s55, 0x%x" % WS_H); e("s_add_u32 s56, s55, 20480")
        fj = [[self.frag_job((st * 2 + tt) * 4, 55 + tt, st, ("hf", st)) for tt in range(2)] for st in range(20)]
        LA = 5
        for st in range(LA):
            for j in fj[st]: self.emit_job(j)
        e("s_lshl_b32 s57, s54, 4"); e("v_add_u32 %s, s57, %s" % (v(t0), v(V_C))); e("v_lshlrev_b32 %s, 6, %s" % (v(t0), v(t0)))
        e("v_lshl_add_u32 %s, %s, 4, %s" % (v(t0), v(V_G), v(t0))); e("v_add_u32 %s, 0x%x, %s" % (v(25), WS_HS, v(t0)))
        e("s_add_u32 s58, %s, 4" % s(S_W)); e("s_cmp_ge_u32 s58, 6"); e("s_cselect_b32 s57, 6, 0"); e("s_sub_u32 s58, s58, s57")
        e("v_add_u32 %s, %s, %s" % (v(t0), s(S_W1K), v(VL16)))
        e("s_lshl_b32 s57, s58, 10"); e("v_add_u32 %s, s57, %s" % (v(t1), v(VL16)))
        e("v_add_u32 %s, 0x10000, %s" % (v(t2), v(t0))); e("v_add_u32 %s, 0x10000, %s" % (v(t3), v(t1)))
        e("v_add_u32 %s, 0x20000, %s" % (v(t0 + 4), v(t0))); e("v_add_u32 %s, 0x20000, %s" % (v(t0 + 5), v(t1)))
        def csrd(st):
            off = pos(st * 6) * 1024
            return ["ds_read_b128 %s, %s offset:%d" % (a(RING + ((st % 4) * 2 + q) * 4, 4), v(t0 + 2 * (off // 65536) + q), off % 65536) for q in range(2)]
        for st in range(3):
            for x in csrd(st): e(x)
        for st in range(20):
            nx = csrd(st + 3) if st + 3 < 20 else []
            for x in nx: e(x)
            e("s_waitcnt lgkmcnt(%d)" % (2 * min(3, 19 - st)))
            for q in range(2):
                e("%s %s, %s, %s, %s" % (M, v(CSA + q * 4, 4), a(RING + ((st % 4) * 2 + q) * 4, 4), v(VONE, 4), v(CSA + q * 4, 4)))
        e("v_lshlrev_b32 %s, 4, %s" % (v(t2), v(V_G)))
        e("s_lshl_b32 s57, %s, 6" % s(S_W)); e("s_add_u32 s57, s57, %d" % CS_OFF); e("v_add_u32 %s, s57, %s" % (v(t0), v(t2)))
        e("s_lshl_b32 s57, s58, 6"); e("s_add_u32 s57, s57, %d" % CS_OFF); e("v_add_u32 %s, s57, %s" % (v(t1), v(t2)))
        e("v_add_u32 %s, %d, %s" % (v(26), CS_OFF, v(t2)))
        VA = T + 16
        e("v_mov_b32 %s, %s" % (v(VA), v(VL16))); e("v_add_u32 %s, 0x10000, %s" % (v(VA + 1), v(VL16))); e("v_add_u32 %s, 0x20000, %s" % (v(VA + 2), v(VL16)))
        def rd(st):
            r = []
            for t in range(6):
                off = pos(st * 6 + t) * 1024
                r.append("ds_read_b128 %s, %s offset:%d" % (a(RING + ((st % 2) * 6 + t) * 4, 4), v(VA + off // 65536), off % 65536))
            return r
        e("v_cmp_eq_u32 vcc, 0, %s" % v(V_C))
        for x in rd(0): e(x)
        e("s_and_saveexec_b64 s[58:59], vcc")
        e("ds_write_b128 %s, %s" % (v(t0), v(CSA, 4)))
        e("ds_write_b128 %s, %s" % (v(t1), v(CSA + 4, 4)))
        e("s_mov_b64 exec, s[58:59]")
        w5b = [self.job4(S_B5, 32 + 4 * k, 32 + 4 * k, "w5b") for k in range(12)]
        hs = [([], "buffer_load_dwordx4 %s, v25, %s, 0 offen offset:%d sc1" % (v(VST + tt * 4, 4), s(S_WS, 4), tt * 1024), "hs") for tt in range(2)]
        for st in range(20):
            if st == 10:
                e("s_barrier")
                for t in range(6): e("ds_read_b128 %s, %s offset:%d" % (v(CSV + t * 4, 4), v(26), t * 64))
            self.vm_wait(("hf", st), " lgkmcnt(0)")
            nx = rd(st + 1) if st + 1 < 20 else []
            jobs = list(fj[st + LA]) if st + LA < 20 else []
            if st < 8: jobs.append(self.job4(S_B5, 4 * st, 4 * st, "w5a"))
            if st == 15: jobs += hs
            if st >= 10:
                jobs += w5b[:2] if st >= 15 or st in (11, 13) else w5b[:1]
                w5b = w5b[2:] if (st >= 15 or st in (11, 13)) else w5b[1:]
            k = 0; n = 0
            for t in range(6):
                for tt in range(2):
                    d = ACC + (t * 2 + tt) * 4
                    jb = None
                    if jobs and n % 3 == 0:
                        jb = jobs.pop(0)
                        for x in jb[0]: e(x)
                    e("%s %s, %s, %s, %s" % (M, v(d, 4), a(RING + ((st % 2) * 6 + t) * 4, 4), a((st * 2 + tt) * 4, 4), v(d, 4)))
                    if tt == 0 and k < len(nx): e(nx[k]); k += 1
                    if jb: self.vm(jb[1], jb[2])
                    n += 1
            for jb in jobs: self.emit_job(jb)
        assert not w5b
        self.stamp()
        e("s_barrier")
        self.c("P4 epilogue (remaining resident part of W2 streams in underneath)")
        w5c = [self.job4(S_B5, 80 + 4 * k, 80 + 4 * k, "w5c") for k in range(20)]
        self.vm_wait("hs")
        NM = [T + 4, T + 6]
        for tt in range(2):
            q = VST + tt * 4
            e("v_add_f32 %s, %s, %s" % (v(q), v(q), v(q + 2))); e("v_add_f32 %s, %s, %s" % (v(q + 1), v(q + 1), v(q + 3)))
            self.reduce4(q, t0); self.reduce4(q + 1, t0)
            e("v_mul_f32 %s, 0x%x, %s" % (v(NM[tt]), f2u(-1.0 / 640), v(q)))
            e("v_mul_f32 %s, 0x%x, %s" % (v(q + 1), f2u(1.0 / 640), v(q + 1)))
            e("v_fma_f32 %s, -%s, %s, %s" % (v(q + 1), v(NM[tt]), v(NM[tt]), v(q + 1)))
            e("v_max_f32 %s, 0, %s" % (v(q + 1), v(q + 1))); e("v_add_f32 %s, 0x%x, %s" % (v(q + 1), f2u(1e-5), v(q + 1)))
            e("v_rsq_f32 %s, %s" % (v(NM[tt] + 1), v(q + 1)))
            for _ in range(2): self.emit_job(w5c.pop(0))
        e("s_mul_i32 s54, s88, 49152"); e("s_mul_i32 s55, %s, 3072" % s(S_J3)); e("s_add_u32 s54, s54, s55"); e("s_add_u32 s54, s54, 0x%x" % WS_H1)
        e("s_add_u32 s55, s54, 49152")
        e("s_mov_b32 s56, 0x%x" % f2u(-math.log2(math.e))); e("s_mov_b32 s57, s56")
        n = 0
        for tt in range(2):
            for p in range(3):
                O4 = 124 + (n % 4) * 4
                zs = []
                for hf in range(2):
                    t = 2 * p + hf; A_ = ACC + (t * 2 + tt) * 4
                    for hh in range(2): zs.append((A_ + 2 * hh, CSV + t * 4 + 2 * hh, O4 + hf * 2 + hh))
                E_ = [T + 8, T + 10, T + 12, T + 14]
                for k, (z, c_, od) in enumerate(zs): e("v_pk_fma_f32 %s, %s, %s, %s op_sel_hi:[1,0,1]" % (v(z, 2), v(c_, 2), v(NM[tt], 2), v(z, 2)))
                for k, (z, c_, od) in enumerate(zs): e("v_pk_mul_f32 %s, %s, %s op_sel:[0,1] op_sel_hi:[1,1]" % (v(z, 2), v(z, 2), v(NM[tt], 2)))
                for k, (z, c_, od) in enumerate(zs): e("v_pk_mul_f32 %s, %s, s[56:57]" % (v(E_[k], 2), v(z, 2)))
                for k in range(4): e("v_exp_f32 %s, %s" % (v(E_[k]), v(E_[k]))); e("v_exp_f32 %s, %s" % (v(E_[k] + 1), v(E_[k] + 1)))
                for k in range(4): e("v_pk_add_f32 %s, %s, 1.0 op_sel_hi:[1,0]" % (v(E_[k], 2), v(E_[k], 2)))
                for k in range(4): e("v_rcp_f32 %s, %s" % (v(E_[k]), v(E_[k]))); e("v_rcp_f32 %s, %s" % (v(E_[k] + 1), v(E_[k] + 1)))
                for k, (z, c_, od) in enumerate(zs): e("v_pk_mul_f32 %s, %s, %s" % (v(z, 2), v(z, 2), v(E_[k], 2)))
                for k, (z, c_, od) in enumerate(zs): e("v_cvt_pk_bf16_f32 %s, %s, %s" % (v(od), v(z), v(z + 1)))
                if n < 5:
                    for _ in range(4 if n == 0 else 3):
                        if w5c: self.emit_job(w5c.pop(0))
                self.vm("buffer_store_dwordx4 %s, %s, %s, %s offen offset:%d sc1" % (v(O4, 4), v(VL16), s(S_WS, 4), s(54 + tt), p * 1024), "h1st")
                n += 1
        assert not w5c

    def p5(self):
        e = self.e; o = self.o
        VL16 = 4; T = 200; t0, t1, t2, t3 = T, T + 1, T + 2, T + 3
        ACC = 32; HR = 240
        self.c("P4 -> P5 hand-off")
        for i in range(20): e("v_mov_b32 %s, 0" % v(ACC + i))
        self.handoff(3, [])
        self.c("P5 main")
        e("s_mul_i32 s54, %s, 49152" % s(S_TI)); e("s_add_u32 s54, s54, 0x%x" % WS_H1)
        fj = [self.frag_job(st * 4, 54, st, ("f1", st)) for st in range(48)]
        LA = 12
        for st in range(LA): self.emit_job(fj[st])
        bA = [self.job4(S_B5, 160 + 4 * k, 4 * k, "b5a") for k in range(10)]
        bB = [self.job4(S_B5, 200 + 4 * k, 40 + 4 * k, "b5b") for k in range(10)]
        def slots(st):
            r = []
            if st + LA < 48: r.append(fj[st + LA])
            if 9 <= st < 19: r.append(bA[st - 9])
            if 19 <= st < 29: r.append(bB[st - 19])
            return r
        def bar(): e("s_barrier")
        def landed(tag):
            def fn():
                self.vm_wait(tag); e("s_barrier")
            return fn
        hooks = {9: bar, 19: bar, 30: landed("b5a"), 38: landed("b5b")}
        self.gemm_small(48, VL16, ACC, lambda i: i % 160, lambda st: st * 4, lambda st: ("f1", st), 192, T, hooks, slots)
        self.stamp()
        self.c("P5 epilogue")
        for t in range(5):
            A_ = ACC + t * 4
            for hh in range(2):
                hd = (HR + (t >> 1) * 4 + (t & 1) * 2 + hh) if t < 4 else HR + 8 + hh
                e("v_lshlrev_b32 %s, 16, %s" % (v(t0), v(hd))); e("v_and_b32 %s, 0xffff0000, %s" % (v(t1), v(hd)))
                e("v_pk_add_f32 %s, %s, %s" % (v(A_ + 2 * hh, 2), v(A_ + 2 * hh, 2), v(t0, 2)))
                od = (64 + (t >> 1) * 4 + (t & 1) * 2 + hh) if t < 4 else 72 + hh
                e("v_cvt_pk_bf16_f32 %s, %s, %s" % (v(od), v(A_ + 2 * hh), v(A_ + 2 * hh + 1)))
            if t == 1: e("buffer_store_dwordx4 v[64:67], v20, %s, 0 offen" % s(S_OUT, 4))
            if t == 3: e("buffer_store_dwordx4 v[68:71], v20, %s, 0 offen offset:64" % s(S_OUT, 4))
        e("buffer_store_dwordx2 v[72:73], v21, %s, 0 offen offset:128" % s(S_OUT, 4))
        self.stamp()

    def finish(self):
        self.label("L_end")
        self.e("s_endpgm")

def build(opts):
    g = Gen(opts)
    g.prologue()
    stop = opts.get("stop", 5)
    g.p1()
    if stop >= 2: g.p2()
    if stop >= 3: g.p3()
    if stop >= 4: g.p4()
    if stop >= 5: g.p5()
    g.e("s_waitcnt vmcnt(0)")
    g.finish()
    body = g.finalize(2 if opts.get('nocheck') else True)
    hdr = open("cdna_kernels/%s.s.ref" % NAME).read().split("\n")
    head = [l for l in hdr if l.startswith(";") and ("Kernarg" in l or "offset" in l)]
    txt = "\n".join(head) + "\n; @launch grid=(256,1,1) block=(256,1,1) lds=163840\n"
    txt += '.amdgcn_target "amdgcn-amd-amdhsa--gfx950"\n.text\n.globl %s_kernel\n.p2align 8\n.type %s_kernel,@function\n%s_kernel:\n' % (NAME, NAME, NAME)
    txt += body + "\n"
    txt = txt.replace("CODE_Q", "16384")
    txt += """.section .rodata,"a"
.p2align 6
.amdhsa_kernel %s_kernel
  .amdhsa_next_free_vgpr 512
  .amdhsa_next_free_sgpr 96
  .amdhsa_accum_offset 256
  .amdhsa_group_segment_fixed_size 0
  .amdhsa_kernarg_size 72
  .amdhsa_user_sgpr_count 2
  .amdhsa_user_sgpr_kernarg_segment_ptr 1
  .amdhsa_system_sgpr_workgroup_id_x 1
  .amdhsa_float_denorm_mode_32 3
.end_amdhsa_kernel
""" % NAME
    return txt, g

if __name__ == "__main__":
    opts = {}
    out = sys.argv[1]
    for x in sys.argv[2:]:
        if "=" in x:
            k, val = x.split("="); opts[k] = int(val)
        else: opts[x] = 1
    txt, g = build(opts)
    open(out, "w").write(txt)
    print("lines", len(txt.split("\n")), "bytes", len(txt), "nops", g.nops)
```

```python
import sys, math, struct
from asmlib import Asm, v, a, s

NAME = 'sequential_preLN__sliding_block__dense_activation_silu__prompt'
M = "v_mfma_f32_16x16x32_bf16"

WS_FLAGS = 0x0
WS_STAT = 0x20000
WS_HS = 0x40000
WS_QKV = 0x100000
WS_O = 0x900000
WS_H = 0xC00000
WS_H1 = 0xF00000
WS_PW3 = 0x1500000
WS_PW4 = 0x1600000
WS_PW5 = 0x1800000
WS_ST = 0x1A00000
WS_SIZE = 0x1B00000
BIGOFF = 0x7F000000

def f2u(x):
    return struct.unpack("<I", struct.pack("<f", x))[0]

S_X, S_WQ, S_WO, S_W1, S_W2, S_OUT, S_WS, S_DBG = 4, 8, 12, 16, 20, 24, 28, 32
S_W = 36
S_M1, S_N1, S_M3, S_J3 = 37, 38, 39, 40
S_NONCE = 42
S_SOFF = 62
S_TMO = 63
S_STC = 80
S_STT = 82
S_ODD = 84
S_TI, S_NQ = 86, 87
S_B3, S_B4, S_B5 = 90, 91, 92
S_W1K, S_W3 = 93, 94
S_OST = 95

V_L, V_C, V_G = 1, 2, 3

class Gen(Asm):
    def __init__(self, opts):
        super().__init__()
        self.o = opts
        self.vmq = []
        self.nlab = 0
        self.nstamp = 0
        self.ntouch = 0
    def vm(self, text, tag=None):
        if self.o.get("fast") and tag in ("ost", "hst", "h1st"): text = text.replace(" sc1", "")
        self.e(text); self.vmq.append(tag)
    def vm_n(self, tag):
        idx = max(i for i, t in enumerate(self.vmq) if t == tag)
        n = len(self.vmq) - 1 - idx
        assert n <= 63, (tag, n)
        return n
    def vm_wait(self, tag, extra=""):
        self.e("s_waitcnt vmcnt(%d)%s" % (self.vm_n(tag), extra))
    def newlabel(self, p="L"):
        self.nlab += 1
        return "%s_%d" % (p, self.nlab)
    def stamp(self, idx=None, pre=None):
        if not self.o.get("stamps"): return
        i = self.nstamp if idx is None else idx
        if idx is None: self.nstamp += 1
        assert i < 32
        e = self.e
        if pre is not None:
            e("s_mov_b64 %s, %s" % (s(S_STT, 2), s(pre, 2)))
        else:
            e("%s %s" % ("s_memtime" if self.o.get("stamps") == 2 else "s_memrealtime", s(S_STT, 2)))
        e("s_waitcnt lgkmcnt(0)")
        e("v_mov_b32 v254, %s" % s(S_STT)); e("v_mov_b32 v255, %s" % s(S_STT + 1))
        e("s_lshl_b32 %s, s2, 2" % s(S_STC)); e("s_add_u32 %s, %s, %s" % (s(S_STC), s(S_STC), s(S_W)))
        e("s_lshl_b32 %s, %s, 8" % (s(S_STC), s(S_STC)))
        e("s_add_u32 %s, %s, 0x%x" % (s(S_STC), s(S_STC), WS_ST + i * 8))
        e("v_mov_b32 v253, %s" % s(S_STC))
        e("s_mov_b64 exec, 1")
        self.vm("buffer_store_dwordx2 v[254:255], v253, %s, 0 offen" % s(S_WS, 4), "stamp")
        e("s_mov_b64 exec, -1")

    def reduce4(self, x, tmp, op="v_add_f32"):
        e = self.e
        e("v_mov_b32 %s, %s" % (v(tmp), v(x)))
        e("v_permlane16_swap_b32 %s, %s" % (v(x), v(tmp)))
        e("%s %s, %s, %s" % (op, v(x), v(x), v(tmp)))
        e("v_mov_b32 %s, %s" % (v(tmp), v(x)))
        e("v_permlane32_swap_b32 %s, %s" % (v(x), v(tmp)))
        e("%s %s, %s, %s" % (op, v(x), v(x), v(tmp)))

    def nonce_issue(self, vr):
        self.e("v_mov_b32 %s, 0" % v(vr + 2))
        self.vm("buffer_load_dwordx2 %s, %s, %s, 0 offen sc1" % (v(vr, 2), v(vr + 2), s(S_DBG, 4)), "nonce")
    def nonce_get(self, vr):
        e = self.e
        self.vm_wait("nonce")
        l0 = self.newlabel("NL"); l1 = self.newlabel("ND")
        e("v_readfirstlane_b32 %s, %s" % (s(S_NONCE), v(vr)))
        e("v_readfirstlane_b32 %s, %s" % (s(S_NONCE + 1), v(vr + 1)))
        e("s_cmp_lg_u32 %s, 0" % s(S_NONCE))
        e("s_cbranch_scc1 %s" % l1)
        e("s_mov_b32 s44, 0")
        self.label(l0)
        e("buffer_load_dwordx2 %s, %s, %s, 0 offen sc1" % (v(vr, 2), v(vr + 2), s(S_DBG, 4)))
        e("s_waitcnt vmcnt(0)")
        e("v_readfirstlane_b32 %s, %s" % (s(S_NONCE), v(vr)))
        e("v_readfirstlane_b32 %s, %s" % (s(S_NONCE + 1), v(vr + 1)))
        e("s_add_u32 s44, s44, 1")
        e("s_cmp_gt_u32 s44, 20000")
        e("s_cbranch_scc1 %s" % l1)
        e("s_cmp_eq_u32 %s, 0" % s(S_NONCE))
        e("s_cbranch_scc1 %s" % l0)
        self.label(l1)
    def flag_set(self, phase, sidx, vt, checkwave=True):
        e = self.e
        l = self.newlabel("FS")
        if checkwave: e("s_cmp_lg_u32 %s, 0" % s(S_W)); e("s_cbranch_scc1 %s" % l)
        e("s_lshl_b32 s44, %s, 6" % s(sidx)); e("s_add_u32 s44, s44, 0x%x" % (WS_FLAGS + phase * 16384))
        e("v_mov_b32 %s, %s" % (v(vt), s(S_NONCE))); e("v_mov_b32 %s, %s" % (v(vt + 1), s(S_NONCE + 1)))
        e("v_mov_b32 %s, s44" % v(vt + 2))
        e("s_mov_b64 exec, 1")
        e("buffer_store_dwordx2 %s, %s, %s, 0 offen%s" % (v(vt, 2), v(vt + 2), s(S_WS, 4), "" if (self.o.get("fast") and phase in (1, 2, 3)) else " sc1"))
        e("s_mov_b64 exec, -1")
        self.label(l)
    def flag_poll(self, vaddr, vt, nloads=1, stride=0):
        e = self.e
        l0 = self.newlabel("PL"); l1 = self.newlabel("PD")
        e("s_mov_b32 s44, 0")
        self.label(l0)
        for k in range(nloads):
            e("buffer_load_dwordx2 %s, %s, %s, 0 offen offset:%d sc1" % (v(vt + 2 * k, 2), v(vaddr), s(S_WS, 4), k * stride))
        e("s_waitcnt vmcnt(0)")
        for k in range(nloads):
            e("v_cmp_eq_u32 %s, %s, %s" % (s(46 + 0, 2), s(S_NONCE), v(vt + 2 * k)))
            e("v_cmp_eq_u32 %s, %s, %s" % (s(48 + 0, 2), s(S_NONCE + 1), v(vt + 2 * k + 1)))
            e("s_and_b64 s[46:47], s[46:47], s[48:49]")
            if k == 0: e("s_mov_b64 s[50:51], s[46:47]")
            else: e("s_and_b64 s[50:51], s[50:51], s[46:47]")
        e("s_cmp_eq_u64 s[50:51], -1")
        e("s_cbranch_scc1 %s" % l1)
        e("s_add_u32 s44, s44, 1")
        e("s_cmp_gt_u32 s44, 20000")
        e("s_cbranch_scc0 %s" % l0)
        e("s_mov_b32 %s, 1" % s(S_TMO))
        self.label(l1)

    def srd(self, d, src, size):
        e = self.e
        e("s_mov_b32 %s, %s" % (s(d), s(src))); e("s_and_b32 %s, %s, 0xffff" % (s(d + 1), s(src + 1)))
        e("s_mov_b32 %s, 0x%x" % (s(d + 2), size)); e("s_mov_b32 %s, 0x20000" % s(d + 3))
    def prologue(self):
        e = self.e
        if self.o.get("stamps"): e("s_memrealtime s[96:97]")
        e("s_cmp_ge_u32 s2, 256")
        e("s_cbranch_scc1 L_end")
        e("s_load_dwordx16 s[64:79], s[0:1], 0")
        e("s_load_dwordx2 s[80:81], s[0:1], 64")
        e("v_and_b32 %s, 63, v0" % v(V_L))
        e("v_lshrrev_b32 v4, 6, v0")
        e("v_and_b32 %s, 15, %s" % (v(V_C), v(V_L)))
        e("v_lshrrev_b32 %s, 4, %s" % (v(V_G), v(V_L)))
        e("v_readfirstlane_b32 %s, v4" % s(S_W))
        e("s_and_b32 s3, s2, 7")
        e("s_lshr_b32 s41, s2, 3")
        e("s_lshr_b32 %s, s3, 1" % s(S_M1)); e("s_lshl_b32 %s, %s, 2" % (s(S_M1), s(S_M1)))
        e("s_lshr_b32 s62, s41, 3"); e("s_add_u32 %s, %s, s62" % (s(S_M1), s(S_M1)))
        e("s_and_b32 %s, s3, 1" % s(S_N1)); e("s_lshl_b32 %s, %s, 3" % (s(S_N1), s(S_N1)))
        e("s_and_b32 s62, s41, 7"); e("s_add_u32 %s, %s, s62" % (s(S_N1), s(S_N1)))
        e("s_lshl_b32 %s, s3, 1" % s(S_M3)); e("s_lshr_b32 s62, s41, 4"); e("s_add_u32 %s, %s, s62" % (s(S_M3), s(S_M3)))
        e("s_and_b32 %s, s41, 15" % s(S_J3))
        e("s_mov_b32 %s, 0" % s(S_TMO))
        e("v_and_b32 v4, 1, %s" % v(V_G))
        e("v_cmp_eq_u32 %s, 1, v4" % s(S_ODD, 2))
    def prologue2(self):
        e = self.e
        self.srd(S_WO, 68, 640 * 640 * 2)
        self.srd(S_W1, 72, 640 * 1536 * 2)
        self.srd(S_W2, 74, 1536 * 640 * 2)
        self.srd(S_OUT, 76, 2048 * 640 * 2)

    def x_dma_setup(self, VX, t0, t1):
        e = self.e
        e("v_lshrrev_b32 %s, 3, %s" % (v(t0), v(V_L)))
        e("v_lshrrev_b32 %s, 1, %s" % (v(t1), v(t0)))
        e("v_xor_b32 %s, %s, %s" % (v(t1), v(t1), v(V_L))); e("v_and_b32 %s, 7, %s" % (v(t1), v(t1)))
        e("s_lshl_b32 s44, %s, 7" % s(S_M1)); e("s_lshl_b32 s45, %s, 5" % s(S_W)); e("s_add_u32 s44, s44, s45")
        e("v_add_u32 %s, s44, %s" % (v(t0), v(t0)))
        e("v_mul_u32_u24 %s, 1280, %s" % (v(t0), v(t0)))
        e("v_lshl_add_u32 %s, %s, 4, %s" % (v(VX), v(t1), v(t0)))
        e("v_xor_b32 %s, 4, %s" % (v(t1), v(t1)))
        e("v_lshl_add_u32 %s, %s, 4, %s" % (v(VX + 1), v(t1), v(t0)))
        e("v_add_u32 %s, %d, %s" % (v(VX + 1), 8 * 1280, v(VX + 1)))
    def x_frag_addr(self, VA, t0, base_const):
        e = self.e
        e("v_lshrrev_b32 %s, 1, %s" % (v(t0), v(V_C)))
        e("v_xor_b32 %s, %s, %s" % (v(t0), v(t0), v(V_G)))
        e("v_lshlrev_b32 %s, 4, %s" % (v(t0), v(t0)))
        e("v_lshl_add_u32 %s, %s, 7, %s" % (v(VA), v(V_C), v(t0)))
        e("v_xor_b32 %s, 64, %s" % (v(VA + 1), v(VA)))

    def p1_helper(self):
        e = self.e
        self.c("helper workgroup: LayerNorm statistics of x for token block m1")
        save = list(self.vmq); self.vmq = []
        VX, VA, T = 12, 14, 208
        self.x_dma_setup(VX, T, T + 1)
        self.x_frag_addr(VA, T, None)
        e("s_lshl_b32 s47, %s, 15" % s(S_W))
        e("v_add_u32 %s, s47, %s" % (v(VA), v(VA))); e("v_add_u32 %s, s47, %s" % (v(VA + 1), v(VA + 1)))
        def issue(sg):
            for i in range(4):
                e("s_add_u32 m0, s47, 0x%x" % ((sg % 8) * 4096 + i * 1024))
                e("s_mov_b32 %s, %d" % (s(S_SOFF), sg * 128 + (i >> 1) * 16 * 1280))
                self.vm("buffer_load_dwordx4 %s, %s, %s offen lds" % (v(VX + (i & 1)), s(S_X, 4), s(S_SOFF)), ("hx", sg))
        for sg in range(8): issue(sg)
        self.nonce_issue(16)
        for i in range(4): e("v_mov_b32 %s, 0x3f803f80" % v(20 + i))
        for i in range(16): e("v_mov_b32 %s, 0" % v(32 + i))
        for st in range(20):
            sg = st // 2
            if st % 2 == 0: self.vm_wait(("hx", sg))
            b = (st % 2) * 8
            for tt in range(2):
                e("ds_read_b128 %s, %s offset:%d" % (a(b + tt * 4, 4), v(VA + (st & 1)), (sg % 8) * 4096 + tt * 2048))
            e("s_waitcnt lgkmcnt(0)")
            if st % 2 == 1 and sg < 2: issue(sg + 8)
            for tt in range(2):
                e("%s %s, %s, %s, %s" % (M, v(32 + tt * 4, 4), a(b + tt * 4, 4), a(b + tt * 4, 4), v(32 + tt * 4, 4)))
                e("%s %s, %s, %s, %s" % (M, v(40 + tt * 4, 4), v(20, 4), a(b + tt * 4, 4), v(40 + tt * 4, 4)))
        self.nonce_get(16)
        e("v_and_b32 %s, 3, %s" % (v(T), v(V_C)))
        e("v_lshrrev_b32 %s, 2, %s" % (v(T + 1), v(V_C)))
        e("v_cmp_eq_u32 s[46:47], %s, %s" % (v(T + 1), v(V_G)))
        for tt in range(2):
            d = 32 + tt * 4
            for i in range(1, 4):
                e("v_cmp_eq_u32 vcc, %d, %s" % (i, v(T)))
                e("v_cndmask_b32 %s, %s, %s, vcc" % (v(d), v(d), v(d + i)))
            e("v_cndmask_b32 %s, 0, %s, s[46:47]" % (v(d), v(d)))
            self.reduce4(d, T + 2)
            sm = 40 + tt * 4
            e("v_mul_f32 %s, 0x%x, %s" % (v(sm), f2u(1.0 / 640), v(sm)))
            e("v_mul_f32 %s, 0x%x, %s" % (v(d), f2u(1.0 / 640), v(d)))
            e("v_fma_f32 %s, -%s, %s, %s" % (v(d), v(sm), v(sm), v(d)))
            e("v_max_f32 %s, 0, %s" % (v(d), v(d)))
            e("v_add_f32 %s, 0x%x, %s" % (v(d), f2u(1e-5), v(d)))
            e("v_rsq_f32 %s, %s" % (v(d), v(d)))
            o4 = 48 + tt * 4
            e("v_mov_b32 %s, %s" % (v(o4), v(sm))); e("v_mov_b32 %s, %s" % (v(o4 + 1), v(d)))
            e("v_mov_b32 %s, %s" % (v(o4 + 2), s(S_NONCE))); e("v_mov_b32 %s, %s" % (v(o4 + 3), s(S_NONCE + 1)))
        e("s_lshl_b32 s44, %s, 7" % s(S_M1)); e("s_lshl_b32 s45, %s, 5" % s(S_W)); e("s_add_u32 s44, s44, s45")
        e("v_add_u32 %s, s44, %s" % (v(T), v(V_C)))
        e("v_lshlrev_b32 %s, 4, %s" % (v(T), v(T)))
        e("v_add_u32 %s, 0x%x, %s" % (v(T), WS_STAT, v(T)))
        e("s_mov_b64 exec, 0xffff")
        for tt in range(2):
            e("buffer_store_dwordx4 %s, %s, %s, 0 offen offset:%d sc1" % (v(48 + tt * 4, 4), v(T), s(S_WS, 4), tt * 256))
        e("s_mov_b64 exec, -1")
        e("s_waitcnt vmcnt(0)")
        self.vmq = save

    def p1(self):
        e = self.e; o = self.o
        VT = 4
        VXA = 8
        VX = 10
        VWO = 12
        VPK = 13
        VONE = 20
        VCS = 24
        ACC = 32
        VST = 96
        VN = 112
        VPA = 124
        PKF = 116
        TMP = 208
        t0, t1, t2, t3 = TMP, TMP + 1, TMP + 2, TMP + 3
        acc = lambda i, tt: ACC + (i * 4 + tt) * 4
        PK_OFF = 131072
        CS_OFF = 131072 + 24576
        lab_h = self.newlabel("HELP"); lab_j = self.newlabel("P1J")
        self.c("P1: address setup (no pointers needed yet)")
        self.x_dma_setup(VX, t0, t1)
        e("s_lshr_b32 s44, %s, 1" % s(S_W)); e("s_lshl_b32 s44, s44, 3")
        e("v_and_b32 %s, 1, %s" % (v(t0), v(V_G))); e("v_and_b32 %s, 2, %s" % (v(t1), v(V_G)))
        e("v_lshl_or_b32 %s, %s, 1, %s" % (v(t0), v(t1), v(t0))); e("v_or_b32 %s, s44, %s" % (v(t0), v(t0)))
        e("v_xor_b32 %s, %s, %s" % (v(t0), v(t0), v(V_C)))
        e("s_lshl_b32 s45, %s, 2" % s(S_W)); e("v_add_u32 %s, s45, %s" % (v(t1), v(V_G)))
        e("v_mul_u32_u24 %s, 3840, %s" % (v(t1), v(t1)))
        e("v_lshl_add_u32 %s, %s, 4, %s" % (v(t1), v(t0), v(t1)))
        e("s_lshl_b32 s44, %s, 8" % s(S_N1)); e("v_add_u32 %s, s44, %s" % (v(VWO), v(t1)))
        e("s_lshl_b32 s47, %s, 10" % s(S_W))
        e("s_lshl_b32 s48, %s, 12" % s(S_W))
        e("s_waitcnt lgkmcnt(0)")
        self.srd(S_X, 64, 2048 * 640 * 2)
        self.srd(S_WQ, 66, 640 * 1920 * 2)
        self.srd(S_WS, 80, WS_SIZE)
        self.srd(S_DBG, 78, 256)
        l = self.newlabel("NP")
        e("s_lshl_b32 s44, s2, 2"); e("s_or_b32 s44, s44, %s" % s(S_W))
        e("s_cmp_lg_u32 s44, 0"); e("s_cbranch_scc1 %s" % l)
        e("s_memrealtime s[44:45]")
        e("s_waitcnt lgkmcnt(0)")
        e("s_or_b32 s44, s44, 1")
        e("v_mov_b32 v204, s44"); e("v_mov_b32 v205, s45"); e("v_mov_b32 v206, 0")
        e("s_mov_b64 exec, 1")
        e("buffer_store_dwordx2 v[204:205], v206, %s, 0 offen sc1" % s(S_DBG, 4))
        e("s_mov_b64 exec, -1")
        self.label(l)
        self.stamp(pre=96)
        self.stamp()
        e("s_cmp_eq_u32 %s, 15" % s(S_N1)); e("s_cbranch_scc1 %s" % lab_h)
        def dma_ops(st):
            ops = []
            sl = ((st // 2) % 4) * 32768
            for h in range(2):
                if o.get("xnoW") and st >= 2: continue
                ops.append((["s_add_u32 m0, s47, 0x%x" % (sl + (st & 1) * 8192 + h * 4096), "s_mov_b32 %s, 0x%x" % (s(S_SOFF), (32 * st + 16 * h) * 3840)],
                            "buffer_load_dwordx4 %s, %s, %s offen lds" % (v(VWO), s(S_WQ, 4), s(S_SOFF))))
            for i in range(2):
                if o.get("xnoX") and st >= 2: continue
                ii = (st & 1) * 2 + i
                ops.append((["s_add_u32 m0, s48, 0x%x" % (sl + 16384 + ii * 1024), "s_mov_b32 %s, %d" % (s(S_SOFF), (st // 2) * 128 + (ii >> 1) * 16 * 1280)],
                            "buffer_load_dwordx4 %s, %s, %s offen lds" % (v(VX + (ii & 1)), s(S_X, 4), s(S_SOFF))))
            return ops
        def issue_now(st):
            for su, ld in dma_ops(st):
                for x in su: e(x)
                self.vm(ld, ("st", st))
        issue_now(0)
        if o.get("pf1", 1):
            e("s_and_b32 s44, %s, 3" % s(S_M1)); e("s_mul_i32 s44, s44, %d" % (160 * 3840)); e("s_lshl_b32 s45, %s, 8" % s(S_N1)); e("s_add_u32 s44, s44, s45")
            e("s_lshl_b32 s45, %s, 6" % s(S_W)); e("v_add_u32 %s, s45, %s" % (v(t0), v(V_L)))
            e("v_lshrrev_b32 %s, 1, %s" % (v(t1), v(t0))); e("v_mul_u32_u24 %s, 3840, %s" % (v(t1), v(t1)))
            e("v_and_b32 %s, 1, %s" % (v(t2), v(t0))); e("v_lshl_add_u32 %s, %s, 7, %s" % (v(t1), v(t2), v(t1)))
            self.vm("buffer_load_dword v190, %s, %s, s44 offen" % (v(t1), s(S_WQ, 4)), "touch")
            lt = self.newlabel("TX"); lj = self.newlabel("TJ")
            e("s_cmp_lg_u32 %s, 0" % s(S_W)); e("s_cbranch_scc1 %s" % lt)
            e("v_add_u32 %s, %d, %s" % (v(t1), 128 * 3840, v(t1)))
            e("buffer_load_dword v191, %s, %s, s44 offen" % (v(t1), s(S_WQ, 4)))
            e("s_branch %s" % lj)
            self.label(lt)
            e("v_subrev_u32 %s, 64, %s" % (v(t0), v(t0))); e("v_min_u32 %s, 159, %s" % (v(t0), v(t0)))
            e("v_mul_u32_u24 %s, 6554, %s" % (v(t1), v(t0))); e("v_lshrrev_b32 %s, 16, %s" % (v(t1), v(t1)))
            e("v_mul_u32_u24 %s, 10, %s" % (v(t2), v(t1))); e("v_sub_u32 %s, %s, %s" % (v(t2), v(t0), v(t2)))
            e("s_and_b32 s44, %s, 7" % s(S_N1)); e("s_lshl_b32 s44, s44, 4"); e("s_lshl_b32 s45, %s, 7" % s(S_M1)); e("s_add_u32 s44, s44, s45")
            e("v_add_u32 %s, s44, %s" % (v(t1), v(t1))); e("v_mul_u32_u24 %s, 1280, %s" % (v(t1), v(t1)))
            e("v_lshl_add_u32 %s, %s, 7, %s" % (v(t1), v(t2), v(t1)))
            e("buffer_load_dword v187, %s, %s, 0 offen" % (v(t1), s(S_X, 4)))
            self.label(lj)
            self.vmq.append("touch")
        for st in range(1, 3): issue_now(st)
        if o.get("cpf", 1):
            e("s_getpc_b64 s[44:45]")
            self.label("L_pc")
            e("s_mov_b32 s50, L_end-L_pc")
            e("v_lshlrev_b32 %s, 7, %s" % (v(t0), v(V_L)))
            e("s_lshl_b32 s46, %s, 14" % s(S_W)); e("v_add_u32 %s, s46, %s" % (v(t0), v(t0)))
            for k in range(2):
                e("v_min_u32 %s, s50, %s" % (v(t1), v(t0)))
                self.vm("global_load_dword v%d, %s, s[44:45]" % (188 + k, v(t1)), "touch")
                if k == 0: e("v_add_u32 %s, 8192, %s" % (v(t0), v(t0)))
        self.stamp()
        self.prologue2()
        self.c("W tile / x fragment read addresses")
        e("v_lshrrev_b32 %s, 2, %s" % (v(t0), v(V_C)))
        e("v_and_b32 %s, 3, %s" % (v(t1), v(V_L)))
        e("v_and_b32 %s, 1, %s" % (v(t2), v(t0))); e("v_and_b32 %s, 2, %s" % (v(t3), v(t0)))
        e("v_lshl_or_b32 %s, %s, 1, %s" % (v(t2), v(t3), v(t2)))
        e("v_and_b32 %s, 1, %s" % (v(t3), v(V_G))); e("v_lshl_or_b32 %s, %s, 3, %s" % (v(t2), v(t3), v(t2)))
        e("v_lshl_add_u32 %s, %s, 3, %s" % (v(t0), v(V_G), v(t0))); e("v_lshlrev_b32 %s, 8, %s" % (v(t0), v(t0)))
        e("s_lshr_b32 s50, %s, 1" % s(S_W)); e("s_and_b32 s45, %s, 1" % s(S_W)); e("s_lshl_b32 s45, s45, 1")
        for i in range(4):
            if i % 2 == 0:
                e("s_xor_b32 s44, s50, %d" % (i >> 1)); e("s_add_u32 s44, s44, s45"); e("s_lshl_b32 s44, s44, 2")
                e("v_add_u32 %s, s44, %s" % (v(t3), v(t1))); e("v_xor_b32 %s, %s, %s" % (v(t3), v(t3), v(t2)))
                e("v_lshl_add_u32 %s, %s, 4, %s" % (v(t3 + 1), v(t3), v(t0)))
            e("v_and_b32 %s, 1, %s" % (v(t3), v(t1)))
            if i & 1: e("v_xor_b32 %s, 1, %s" % (v(t3), v(t3)))
            e("v_lshl_add_u32 %s, %s, 3, %s" % (v(VT + i), v(t3), v(t3 + 1)))
        self.x_frag_addr(VXA, t0, None)
        e("s_lshl_b32 s44, s50, 13"); e("s_add_u32 s44, s44, 16384")
        e("v_add_u32 %s, s44, %s" % (v(VXA), v(VXA))); e("v_add_u32 %s, s44, %s" % (v(VXA + 1), v(VXA + 1)))
        issue_now(3)
        for i in range(4): e("v_mov_b32 %s, 0x3f803f80" % v(VONE + i))
        self.c("pack set-up")
        PS = []
        pe = PS.append
        pe("s_mul_i32 s49, %s, 15" % s(S_M1)); pe("s_add_u32 s49, s49, %s" % s(S_N1))
        pe("s_cmp_lt_u32 s49, 80")
        pe("s_cselect_b32 s64, %s, %s" % (s(S_WO), s(S_W1))); pe("s_cselect_b32 s65, %s, %s" % (s(S_WO + 1), s(S_W1 + 1)))
        pe("s_cselect_b32 s66, %s, %s" % (s(S_WO + 2), s(S_W1 + 2))); pe("s_mov_b32 s67, 0x20000")
        pe("s_mov_b32 s72, 1280"); pe("s_cselect_b32 s72, s72, 3072")
        pe("s_cselect_b32 s73, 19, 23")
        pe("s_cselect_b32 s74, 2, 3")
        pe("s_cselect_b32 s75, 0, 80")
        pe("s_mov_b32 s76, 320"); pe("s_cselect_b32 s76, s76, 384")
        pe("s_cselect_b32 s77, 5, 6")
        pe("s_mov_b32 s78, 20")
        pe("s_mov_b32 s79, 0x%x" % WS_PW3); pe("s_cselect_b32 s79, s79, 0x%x" % WS_PW4)
        pe("s_sub_u32 s50, s49, s75"); pe("s_lshr_b32 s51, s50, s74")
        pe("s_lshl_b32 s52, 1, s74"); pe("s_sub_u32 s52, s52, 1"); pe("s_and_b32 s52, s50, s52")
        for i3 in range(3):
            pe("s_lshl_b32 s54, %s, 6" % s(S_W)); pe("s_add_u32 s54, s54, %d" % (256 * i3))
            pe("v_add_u32 %s, s54, %s" % (v(t0), v(V_L)))
            pe("v_mul_u32_u24 %s, 2731, %s" % (v(136 + i3), v(t0))); pe("v_lshrrev_b32 %s, 16, %s" % (v(136 + i3), v(136 + i3)))
            pe("v_mul_u32_u24 %s, 24, %s" % (v(t2), v(136 + i3))); pe("v_sub_u32 %s, %s, %s" % (v(139 + i3), v(t0), v(t2)))
        pe("v_lshrrev_b32 %s, 2, %s" % (v(t1), v(V_C))); pe("v_lshl_add_u32 %s, %s, 3, %s" % (v(t1), v(V_G), v(t1))); pe("v_mul_u32_u24 %s, 384, %s" % (v(t1), v(t1)))
        pe("v_and_b32 %s, 3, %s" % (v(t0), v(V_L)))
        pe("v_lshl_add_u32 v142, %s, 4, %s" % (v(t0), v(t1))); pe("v_lshl_add_u32 v143, %s, 3, %s" % (v(t0), v(t1)))
        pe("v_lshlrev_b32 v144, 4, %s" % v(V_L))
        pe("s_lshr_b32 s60, %s, 1" % s(S_W))
        pe("s_and_b32 s61, %s, 1" % s(S_W)); pe("s_mul_i32 s61, s61, 3")
        def pack_setup(blk, valid_s):
            pe("s_mul_i32 s53, s51, s72"); pe("s_lshl_b32 s53, s53, 5"); pe("s_mul_i32 s54, s52, s76"); pe("s_add_u32 s53, s53, s54")
            for i3 in range(3):
                pe("v_min_u32 %s, s73, %s" % (v(t2), v(139 + i3)))
                pe("v_mul_lo_u32 %s, %s, s72" % (v(t1), v(136 + i3)))
                pe("v_lshl_add_u32 %s, %s, 4, %s" % (v(t1), v(t2), v(t1)))
                pe("v_add_u32 %s, s53, %s" % (v(VPK + 3 * blk + i3), v(t1)))
            pe("s_lshl_b32 s57, s52, 1"); pe("s_add_u32 s57, s57, s60"); pe("s_mul_i32 s57, s57, s78"); pe("s_add_u32 s57, s57, s51")
            pe("s_mul_i32 s57, s57, s77"); pe("s_lshl_b32 s57, s57, 10"); pe("s_add_u32 s57, s57, s79")
            if valid_s is not None:
                pe("s_cmp_lt_u32 s49, %d" % valid_s); pe("s_cselect_b32 s57, s57, 0x%x" % BIGOFF)
            pe("s_mul_i32 s58, s60, s77"); pe("s_lshl_b32 s58, s58, 5"); pe("s_add_u32 s58, s58, %d" % (PK_OFF + blk * 12288))
            for i3 in range(3):
                pe("s_add_u32 s56, s61, %d" % i3)
                pe("s_lshr_b32 s54, s56, 1"); pe("s_lshl_b32 s54, s54, 6"); pe("s_and_b32 s55, s56, 1"); pe("s_lshl_b32 s55, s55, 3")
                pe("s_add_u32 s54, s54, s55"); pe("s_add_u32 s54, s54, s58")
                pe("s_lshl_b32 s55, s77, 3"); pe("s_add_u32 s55, s55, s56"); pe("s_cmp_eq_u32 s55, 44")
                pe("s_cselect_b64 s[68:69], -1, 0")
                pe("v_cndmask_b32 %s, v142, v143, s[68:69]" % v(t0))
                pe("v_add_u32 %s, s54, %s" % (v(VPA + 3 * blk + i3), v(t0)))
                pe("s_lshl_b32 s54, s56, 10"); pe("s_add_u32 s54, s54, s57"); pe("s_cmp_lt_u32 s56, s77"); pe("s_cselect_b32 s54, s54, 0x%x" % BIGOFF)
                pe("v_add_u32 %s, s54, v144" % v(VPA + 6 + 3 * blk + i3))
        pack_setup(0, None)
        for x in ("s_mov_b32 s72, 1280", "s_mov_b32 s73, 19", "s_mov_b32 s76, 320", "s_mov_b32 s77, 5", "s_mov_b32 s78, 48", "s_mov_b32 s79, 0x%x" % WS_PW5,
                  "s_lshr_b32 s51, s49, 2", "s_and_b32 s52, s49, 3"): pe(x)
        pack_setup(1, 192)
        self.stamp()
        self.c("P1 main loop")
        NS = 20
        def reads(st):
            b = (st % 2) * 32; sl = ((st // 2) % 2) * 32768
            pre = []
            if st % 8 == 4:
                pre = ["v_add_u32 %s, 0x10000, %s" % (v(r), v(r)) for r in (VT, VT + 1, VT + 2, VT + 3, VXA, VXA + 1)]
            elif st % 8 == 0 and st > 0:
                pre = ["v_subrev_u32 %s, 0x10000, %s" % (v(r), v(r)) for r in (VT, VT + 1, VT + 2, VT + 3, VXA, VXA + 1)]
            r = []
            for i in range(4):
                r.append("ds_read_b64_tr_b16 %s, %s offset:%d" % (a(b + i * 4, 2), v(VT + i), sl + (st & 1) * 8192))
                r.append("ds_read_b64_tr_b16 %s, %s offset:%d" % (a(b + i * 4 + 2, 2), v(VT + i), sl + (st & 1) * 8192 + 1024))
            for tt in range(4):
                r.append("ds_read_b128 %s, %s offset:%d" % (a(b + 16 + tt * 4, 4), v(VXA + (st & 1)), sl + tt * 2048))
            return pre, r
        self.vm_wait(("st", 1))
        e("s_barrier")
        pre, r = reads(0)
        for x in pre + r: e(x)
        pending_dma = [(su, ld, ("st", s2)) for s2 in range(4, 8) for su, ld in dma_ops(s2)]
        groups = []; cur = []
        for x in PS:
            cur.append(x)
            if len(cur) >= 6 and not x.startswith(("s_cmp", "s_cselect", "s_mov")): groups.append(cur); cur = []
        if cur: groups.append(cur)
        if o.get("xnopk"): groups = []
        for st in range(NS):
            b = (st % 2) * 32
            e("s_waitcnt lgkmcnt(0)")
            nxt = st + 1
            if nxt < NS and nxt % 2 == 0:
                if ("st", nxt + 1) in self.vmq: self.vm_wait(("st", nxt + 1))
                e("s_barrier")
                if o.get("fine"): self.stamp()
                for s2 in (nxt + 6, nxt + 7):
                    if s2 < NS: pending_dma += [(su, ld, ("st", s2)) for su, ld in dma_ops(s2)]
            if st == 7 and not o.get("xnopk"):
                pk = []
                for blk in range(2):
                    for i3 in range(3):
                        pk.append((["s_add_u32 m0, s47, 0x%x" % (PK_OFF + blk * 12288 + i3 * 4096), "s_nop 0"],
                                   "buffer_load_dwordx4 %s, %s, 0 offen lds" % (v(VPK + 3 * blk + i3), s(64 if blk == 0 else S_W2, 4)), "pk"))
                pending_dma = pk + pending_dma
            if st == 7 and not o.get('xnocs'): assert len(groups) <= 5, len(groups)
            if st == 7 and o.get('xnocs'):
                for gr in groups:
                    for x in gr: e(x)
                groups = []
            pre, r = reads(nxt) if nxt < NS else ([], [])
            pk_rd = st - 13 if 13 <= st < 19 and not o.get("xnopk") else None
            pk_st = st - 14 if 14 <= st < 20 and not o.get("xnopk") else None
            if pk_rd is not None:
                f = PKF + (st % 2) * 4
                r = r + ["ds_read_b64_tr_b16 %s, %s" % (v(f, 2), v(VPA + pk_rd)),
                         "ds_read_b64_tr_b16 %s, %s offset:%d" % (v(f + 2, 2), v(VPA + pk_rd), 4 * 384)]
            mf = []
            for i in range(4):
                for tt in range(4):
                    mf.append("%s %s, %s, %s, %s" % (M, v(acc(i, tt), 4), a(b + i * 4, 4), a(b + 16 + tt * 4, 4), v(acc(i, tt), 4) if st else "0"))
                if i < 2 and not o.get("xnocs"): mf.append("%s %s, %s, %s, %s" % (M, v(VCS + i * 4, 4), a(b + i * 4, 4), v(VONE, 4), v(VCS + i * 4, 4) if st else "0"))
            for x in pre: e(x)
            dpos = (1, 5, 10, 14) if st >= 4 else (0, 2, 4, 7, 9, 11, 13, 15)
            for n, m in enumerate(mf):
                if st >= 1 and n in (3, 6, 8, 12, 15, 17) and groups and not (n in dpos):
                    for x in groups.pop(0): e(x)
                dm = None
                if n in dpos and pending_dma:
                    dm = pending_dma.pop(0)
                    for x in dm[0]: e(x)
                e(m)
                if n < len(r): e(r[n])
                if dm: self.vm(dm[1], dm[2])
                if n == 8 and pk_st is not None:
                    f = PKF + ((st - 1) % 2) * 4
                    self.vm("buffer_store_dwordx4 %s, %s, %s, 0 offen sc1" % (v(f, 4), v(VPA + 6 + pk_st), s(S_WS, 4)), "pkst")
                if n == len(mf) - 2 and st == 15: self.nonce_issue(VN)
                if n == len(mf) - 2 and st == 17:
                    e("s_lshl_b32 s44, %s, 7" % s(S_M1)); e("s_lshr_b32 s45, %s, 1" % s(S_W)); e("s_lshl_b32 s45, s45, 6"); e("s_add_u32 s44, s44, s45")
                    e("v_add_u32 %s, s44, %s" % (v(t0), v(V_C))); e("v_lshlrev_b32 %s, 4, %s" % (v(t0), v(t0)))
                    e("v_add_u32 %s, 0x%x, %s" % (v(19), WS_STAT, v(t0)))
                    for tt in range(4):
                        self.vm("buffer_load_dwordx4 %s, %s, %s, 0 offen offset:%d sc1" % (v(VST + tt * 4, 4), v(19), s(S_WS, 4), tt * 256), "stat")
            assert st < NS - 1 or not pending_dma
        self.stamp()
        self.c("P1 epilogue")
        e("s_lshr_b32 s44, %s, 1" % s(S_W)); e("s_and_b32 s45, %s, 1" % s(S_W)); e("s_lshl_b32 s45, s45, 1")
        e("s_add_u32 s46, s44, s45")
        e("s_xor_b32 s44, s44, 1"); e("s_add_u32 s50, s44, s45")
        e("s_lshl_b32 s51, s46, 7"); e("s_add_u32 s51, s51, 0x%x" % CS_OFF)
        e("v_lshlrev_b32 %s, 4, %s" % (v(t0), v(V_G)))
        e("v_add_u32 %s, s51, %s" % (v(t1), v(t0)))
        e("v_cmp_eq_u32 vcc, 0, %s" % v(V_C))
        e("s_and_saveexec_b64 s[52:53], vcc")
        e("ds_write_b128 %s, %s" % (v(t1), v(VCS, 4)))
        e("ds_write_b128 %s, %s offset:64" % (v(t1), v(VCS + 4, 4)))
        e("s_mov_b64 exec, s[52:53]")
        e("s_mov_b32 s61, s46")
        self.nonce_get(VN)
        self.vm_wait("stat")
        l0 = self.newlabel("SR"); l1 = self.newlabel("SD")
        e("s_mov_b32 s44, 0")
        self.label(l0)
        e("s_mov_b64 s[52:53], -1")
        for tt in range(4):
            e("v_cmp_eq_u32 s[54:55], %s, %s" % (s(S_NONCE), v(VST + tt * 4 + 2)))
            e("v_cmp_eq_u32 s[56:57], %s, %s" % (s(S_NONCE + 1), v(VST + tt * 4 + 3)))
            e("s_and_b64 s[52:53], s[52:53], s[54:55]"); e("s_and_b64 s[52:53], s[52:53], s[56:57]")
        e("s_cmp_eq_u64 s[52:53], -1"); e("s_cbranch_scc1 %s" % l1)
        e("s_add_u32 s44, s44, 1"); e("s_cmp_gt_u32 s44, 20000"); e("s_cbranch_scc1 %s" % l1)
        for tt in range(4):
            e("buffer_load_dwordx4 %s, %s, %s, 0 offen offset:%d sc1" % (v(VST + tt * 4, 4), v(19), s(S_WS, 4), tt * 256))
        e("s_waitcnt vmcnt(0)")
        e("s_branch %s" % l0)
        self.label(l1)
        e("s_waitcnt lgkmcnt(0)")
        e("s_barrier")
        CSV = 146
        e("s_lshl_b32 s52, s50, 7"); e("s_add_u32 s52, s52, 0x%x" % CS_OFF)
        e("v_add_u32 %s, s52, %s" % (v(t1), v(t0)))
        e("ds_read_b128 %s, %s" % (v(CSV + 8, 4), v(t1)))
        e("ds_read_b128 %s, %s offset:64" % (v(CSV + 12, 4), v(t1)))
        for i in range(8): e("v_mov_b32 %s, %s" % (v(CSV + i), v(VCS + i)))
        qs = math.log2(math.e) / math.sqrt(20.0)
        e("s_cmp_lt_u32 %s, 5" % s(S_N1)); e("s_mov_b32 s53, 0x3f800000"); e("s_cselect_b32 s53, 0x%x, s53" % f2u(qs))
        for tt in range(4):
            e("v_mul_f32 %s, s53, %s" % (v(VST + tt * 4 + 1), v(VST + tt * 4 + 1)))
            e("v_xor_b32 %s, 0x80000000, %s" % (v(VST + tt * 4), v(VST + tt * 4)))
        e("v_lshlrev_b32 %s, 11, %s" % (v(t2), v(V_G))); e("v_add_u32 %s, %s, %s" % (v(t2), v(t2), v(V_C))); e("v_lshlrev_b32 %s, 4, %s" % (v(t2), v(t2)))
        e("s_lshl_b32 s54, %s, 7" % s(S_M1)); e("s_lshr_b32 s55, %s, 1" % s(S_W)); e("s_lshl_b32 s55, s55, 6"); e("s_add_u32 s54, s54, s55")
        e("s_lshl_b32 s55, %s, 4" % s(S_N1))
        for q, sp in ((0, 61), (1, 50)):
            e("s_lshl_b32 s56, %s, 2" % s(sp)); e("s_add_u32 s56, s56, s55"); e("s_lshl_b32 s56, s56, 11"); e("s_add_u32 s56, s56, s54")
            e("s_lshl_b32 s56, s56, 4"); e("s_add_u32 %s, s56, 0x%x" % (s(58 + q), WS_QKV))
        e("s_waitcnt lgkmcnt(0)")
        OUTR = 188
        n = 0
        for q in range(2):
            for tt in range(4):
                nm = VST + tt * 4
                P = []
                for hf in range(2):
                    i = 2 * q + hf; A_ = acc(i, tt)
                    for h in range(2):
                        e("v_pk_fma_f32 %s, %s, %s, %s op_sel_hi:[1,0,1]" % (v(A_ + 2 * h, 2), v(CSV + i * 4 + 2 * h, 2), v(nm, 2), v(A_ + 2 * h, 2)))
                    for h in range(2):
                        e("v_pk_mul_f32 %s, %s, %s op_sel:[0,1] op_sel_hi:[1,1]" % (v(A_ + 2 * h, 2), v(A_ + 2 * h, 2), v(nm, 2)))
                    e("v_cvt_pk_bf16_f32 %s, %s, %s" % (v(A_), v(A_), v(A_ + 1)))
                    e("v_cvt_pk_bf16_f32 %s, %s, %s" % (v(A_ + 1), v(A_ + 2), v(A_ + 3)))
                    P.append(A_)
                O4 = OUTR + (n % 4) * 4
                e("v_cndmask_b32 %s, %s, %s, %s" % (v(O4), v(P[0]), v(P[1]), s(S_ODD, 2)))
                e("v_cndmask_b32 %s, %s, %s, %s" % (v(O4 + 1), v(P[0] + 1), v(P[1] + 1), s(S_ODD, 2)))
                e("v_cndmask_b32 %s, %s, %s, %s" % (v(O4 + 2), v(P[1]), v(P[0]), s(S_ODD, 2)))
                e("v_cndmask_b32 %s, %s, %s, %s" % (v(O4 + 3), v(P[1] + 1), v(P[0] + 1), s(S_ODD, 2)))
                self.vm("buffer_store_dwordx4 %s, %s, %s, %s offen offset:%d sc1" % (v(O4, 4), v(t2), s(S_WS, 4), s(58 + q), tt * 256), "qkvst")
                n += 1
        e("s_branch %s" % lab_j)
        self.label(lab_h)
        self.prologue2()
        self.p1_helper()
        self.label(lab_j)
        self.stamp()
        e("s_barrier")
        e("s_lshl_b32 s89, %s, 4" % s(S_M1)); e("s_add_u32 s89, s89, %s" % s(S_N1))
        self.vmq = []

    def wait_all(self, phase, vt, barrier=True, allwaves=False):
        e = self.e
        l = self.newlabel("WA")
        if not allwaves:
            e("s_cmp_lg_u32 %s, 0" % s(S_W)); e("s_cbranch_scc1 %s" % l)
        e("v_lshlrev_b32 %s, 8, %s" % (v(vt), v(V_L)))
        if phase: e("v_add_u32 %s, 0x%x, %s" % (v(vt), WS_FLAGS + phase * 16384, v(vt)))
        self.flag_poll(vt, vt + 2, nloads=4, stride=64)
        self.label(l)
        if barrier: e("s_barrier")
    def poll_group(self, phase, vt):
        e = self.e
        e("s_lshl_b32 s52, %s, 10" % s(S_M3)); e("s_add_u32 s52, s52, 0x%x" % (WS_FLAGS + phase * 16384))
        e("v_lshlrev_b32 %s, 6, %s" % (v(vt), v(V_C)))
        e("v_add_u32 %s, s52, %s" % (v(vt), v(vt)))
        self.flag_poll(vt, vt + 2)
    def job4(self, sbase, blk, pos, tag, vl16=4):
        return (["s_add_u32 m0, %s, 0x%x" % (s(S_W1K), pos * 1024), "s_add_u32 %s, %s, 0x%x" % (s(S_SOFF), s(sbase), blk * 1024)],
                "buffer_load_dwordx4 %s, %s, %s offen sc1 lds" % (v(vl16), s(S_WS, 4), s(S_SOFF)), tag)
    def emit_job(self, j):
        for x in j[0]: self.e(x)
        self.vm(j[1], j[2])
    def dma3(self, sbase, blk0, pos0, njobs, tag, vl16=4):
        e = self.e
        e("s_add_u32 s49, %s, %s" % (s(sbase), s(S_W3)))
        for k in range(njobs):
            e("s_add_u32 m0, %s, 0x%x" % (s(S_W3), (pos0 + 3 * k) * 1024))
            e("s_add_u32 %s, s49, 0x%x" % (s(S_SOFF), (blk0 + 3 * k) * 1024))
            self.vm("buffer_load_dwordx4 %s, %s, %s offen sc1 lds" % (v(vl16), s(S_WS, 4), s(S_SOFF)), tag)
    def group_flag_idx(self):
        self.e("s_lshl_b32 s52, %s, 4" % s(S_M3)); self.e("s_add_u32 s52, s52, %s" % s(S_J3))

    def p2(self):
        e = self.e; o = self.o
        KB, VB, BB, QB, OB = 0, 30720, 62080, 69632, 150 * 1024
        T = 200
        t0, t1, t2, t3 = T, T + 1, T + 2, T + 3
        VL16 = 4
        VKA = 5
        VVA = 8
        VMF, VML = 12, 16
        VQ = 20
        OA = 36
        SB = [56, 124]
        NEG = f2u(-1e30)
        self.c("P2 set-up")
        e("v_lshlrev_b32 %s, 4, %s" % (v(VL16), v(V_L)))
        e("s_lshl_b32 %s, %s, 10" % (s(S_W1K), s(S_W))); e("s_sub_u32 %s, %s, 1024" % (s(S_W3), s(S_W1K)))
        e("s_lshr_b32 %s, %s, 1" % (s(S_NQ), s(S_J3)))
        for sb, sk, sz, base in ((S_B3, S_NQ, 102400, WS_PW3), (S_B4, S_J3, 122880, WS_PW4), (S_B5, S_NQ, 245760, WS_PW5)):
            e("s_mul_i32 %s, %s, %d" % (s(sb), s(sk), sz)); e("s_add_u32 %s, %s, 0x%x" % (s(sb), s(sb), base)); e("s_add_u32 %s, %s, %s" % (s(sb), s(sb), s(S_W1K)))
        e("s_lshl_b32 %s, %s, 3" % (s(S_TI), s(S_M3))); e("s_and_b32 s52, %s, 1" % s(S_J3)); e("s_lshl_b32 s52, s52, 2")
        e("s_add_u32 %s, %s, s52" % (s(S_TI), s(S_TI))); e("s_add_u32 %s, %s, %s" % (s(S_TI), s(S_TI), s(S_W)))
        e("s_lshl_b32 s52, %s, 7" % s(S_M3)); e("s_sub_i32 s52, 256, s52")
        e("v_mov_b32 %s, 0xf149" % v(t0 + 4))
        e("v_mov_b32 %s, 0" % v(t0 + 9)); e("v_mov_b32 %s, 0x3f80" % v(t0 + 10)); e("v_mov_b32 %s, 0" % v(t0 + 11))
        e("v_cmp_gt_i32 vcc, s52, v0")
        e("v_cndmask_b32 %s, 0, %s, vcc" % (v(t0 + 8), v(t0 + 4)))
        e("v_lshlrev_b32 %s, 4, v0" % v(t1)); e("v_add_u32 %s, %d, %s" % (v(t1), BB, v(t1)))
        e("ds_write_b128 %s, %s" % (v(t1), v(t0 + 8, 4)))
        e("v_add_u32 %s, 256, v0" % v(t2))
        e("v_cmp_gt_i32 vcc, s52, %s" % v(t2))
        e("v_cndmask_b32 %s, 0, %s, vcc" % (v(t0 + 12), v(t0 + 4)))
        e("v_mov_b32 %s, 0" % v(t0 + 13)); e("v_mov_b32 %s, 0x3f80" % v(t0 + 14)); e("v_mov_b32 %s, 0" % v(t0 + 15))
        e("v_cmp_gt_u32 vcc, 160, v0")
        e("s_and_saveexec_b64 s[54:55], vcc")
        e("ds_write_b128 %s, %s offset:4096" % (v(t1), v(t0 + 12, 4)))
        e("s_mov_b64 exec, s[54:55]")
        e("s_mul_i32 s55, %s, 5" % s(S_J3))
        e("s_lshl_b32 s56, %s, 7" % s(S_M3)); e("s_sub_i32 s56, s56, 256")
        e("s_cmp_ge_u32 %s, 2" % s(S_W))
        e("s_cselect_b32 s57, -2, 4")
        e("s_cselect_b32 s70, 26624, 0")
        e("s_cselect_b32 s71, 128, 0")
        e("s_add_i32 s57, s57, %s" % s(S_W))
        for k, (reg, add) in enumerate(((S_W, 0), (57, 0), (S_W, 2))):
            e("s_add_i32 s58, %s, %d" % (s(reg), add)); e("s_lshl_b32 s58, s58, 6"); e("s_add_i32 s58, s58, s56"); e("s_cmp_lt_i32 s58, 0")
            e("s_cselect_b32 %s, 0x%x, 0" % (s(64 + k), BIGOFF))
        e("s_add_u32 s65, s65, s70")
        e("s_lshl_b32 s56, s56, 4"); e("s_add_u32 s56, s56, %s" % s(S_W1K))
        e("s_add_u32 s58, s55, 80"); e("s_lshl_b32 s58, s58, 15"); e("s_add_u32 s58, s58, 0x%x" % WS_QKV); e("s_add_u32 s68, s58, s56")
        e("s_add_u32 s69, s68, 0x%x" % (80 << 15))
        e("s_lshr_b32 s58, %s, 1" % s(S_W)); e("s_add_u32 s58, s58, s55"); e("s_lshl_b32 s58, s58, 15"); e("s_lshl_b32 s59, %s, 11" % s(S_M3)); e("s_add_u32 s58, s58, s59")
        e("s_and_b32 s59, %s, 1" % s(S_W)); e("s_lshl_b32 s59, s59, 10"); e("s_add_u32 s58, s58, s59"); e("s_add_u32 s72, s58, 0x%x" % WS_QKV)
        e("v_lshrrev_b32 %s, 3, %s" % (v(t0), v(V_L))); e("v_and_b32 %s, 3, %s" % (v(t0), v(t0))); e("v_min_u32 %s, 2, %s" % (v(t0), v(t0)))
        e("v_lshrrev_b32 %s, 1, %s" % (v(t1), v(V_L))); e("v_and_b32 %s, 3, %s" % (v(t1), v(t1))); e("v_min_u32 %s, 2, %s" % (v(t1), v(t1)))
        e("v_and_b32 %s, 1, %s" % (v(t2), v(V_L))); e("v_lshlrev_b32 %s, 2, %s" % (v(t2), v(t2)))
        e("v_mul_u32_u24 %s, 80, %s" % (v(t0), v(t0))); e("v_add3_u32 %s, %s, %s, s55" % (v(t0), v(t0), v(t2))); e("v_lshrrev_b32 %s, 4, %s" % (v(t0), v(t0)))
        e("s_sub_i32 s58, %s, 2" % s(S_M3)); e("v_add_u32 %s, s58, %s" % (v(t1), v(t1))); e("v_max_i32 %s, 0, %s" % (v(t1), v(t1)))
        e("v_lshl_add_u32 %s, %s, 4, %s" % (v(t0), v(t1), v(t0))); e("v_lshlrev_b32 %s, 6, %s" % (v(T + 19), v(t0)))
        self.c("fragment addresses and masks")
        e("s_lshl_b32 s57, %s, 5" % s(S_W)); e("v_add_u32 %s, s57, %s" % (v(t0), v(V_C))); e("v_lshlrev_b32 %s, 4, %s" % (v(t0), v(t0)))
        e("v_cmp_eq_u32 s[58:59], 3, %s" % v(V_G)); e("v_cmp_eq_u32 s[60:61], 2, %s" % v(V_G))
        e("v_mul_u32_u24 %s, 6144, %s" % (v(t1), v(V_G)))
        e("v_mov_b32 %s, %d" % (v(t2), BB))
        e("v_cndmask_b32 %s, %s, %s, s[58:59]" % (v(VKA), v(t1), v(t2)))
        e("v_add_u32 %s, %d, %s" % (v(t3), 3 * 6144, v(t1)))
        e("v_mov_b32 %s, %d" % (v(t0 + 4), 2 * 6144))
        e("v_cndmask_b32 %s, %s, %s, s[60:61]" % (v(t3), v(t3), v(t0 + 4)))
        e("v_cndmask_b32 %s, %s, %s, s[58:59]" % (v(VKA + 1), v(t3), v(t2)))
        e("v_add_u32 %s, %s, %s" % (v(VKA), v(VKA), v(t0))); e("v_add_u32 %s, %s, %s" % (v(VKA + 1), v(VKA + 1), v(t0)))
        VQA = 52
        e("v_lshlrev_b32 %s, 11, %s" % (v(t1), v(V_G)))
        e("v_cndmask_b32 %s, %s, 0, s[58:59]" % (v(VQA), v(t1)))
        e("v_add_u32 %s, %d, %s" % (v(t3), 3 * 2048, v(t1))); e("v_mov_b32 %s, %d" % (v(t0 + 4), 2 * 2048))
        e("v_cndmask_b32 %s, %s, %s, s[60:61]" % (v(t3), v(t3), v(t0 + 4)))
        e("v_cndmask_b32 %s, %s, 0, s[58:59]" % (v(VQA + 1), v(t3)))
        e("v_add_u32 %s, %d, %s" % (v(t3), QB, v(t0)))
        for h in range(2): e("v_add_u32 %s, %s, %s" % (v(VQA + h), v(VQA + h), v(t3)))
        e("v_lshrrev_b32 %s, 2, %s" % (v(t0), v(V_C))); e("v_lshl_add_u32 %s, %s, 2, %s" % (v(t0), v(V_G), v(t0)))
        e("v_add_u32 %s, s57, %s" % (v(t0), v(t0))); e("v_lshlrev_b32 %s, 4, %s" % (v(t0), v(t0)))
        e("v_and_b32 %s, 3, %s" % (v(t1), v(V_L)))
        for h in range(2):
            e("v_add_u32 %s, %d, %s" % (v(t2), 5 * h, v(t1)))
            e("v_lshrrev_b32 %s, 1, %s" % (v(t3), v(t2))); e("v_mul_u32_u24 %s, 6272, %s" % (v(t3), v(t3)))
            e("v_and_b32 %s, 1, %s" % (v(t2), v(t2))); e("v_lshl_add_u32 %s, %s, 3, %s" % (v(t3), v(t2), v(t3)))
            e("v_add_u32 %s, %s, %s" % (v(VVA + 2 * h), v(t3), v(t0)))
            e("v_add_u32 %s, %d, %s" % (v(VVA + 2 * h), VB, v(VVA + 2 * h)))
            X = 5 * h + 4
            e("v_and_b32 %s, 1, %s" % (v(t2), v(t1))); e("v_cmp_eq_u32 vcc, 1, %s" % v(t2))
            e("v_mov_b32 %s, %d" % (v(t3), VB + (X >> 1) * 6272 + (X & 1) * 8)); e("v_mov_b32 %s, %d" % (v(t0 + 4), BB + 8))
            e("v_cndmask_b32 %s, %s, %s, vcc" % (v(t3), v(t3), v(t0 + 4)))
            e("v_add_u32 %s, %s, %s" % (v(VVA + 2 * h + 1), v(t3), v(t0)))
        e("v_lshlrev_b32 %s, 2, %s" % (v(t0), v(V_G))); e("v_mov_b32 %s, 0x%x" % (v(t1), NEG))
        for i in range(4):
            e("v_add_u32 %s, %d, %s" % (v(t2), i, v(t0)))
            e("v_cmp_gt_u32 vcc, %s, %s" % (v(t2), v(V_C)))
            e("v_cndmask_b32 %s, %s, 0, vcc" % (v(VMF + i), v(t1)))
            e("v_cndmask_b32 %s, 0, %s, vcc" % (v(VML + i), v(t1)))
        VOW = 54
        e("s_mul_i32 %s, %s, 2560" % (s(S_OST), s(S_W))); e("s_add_u32 %s, %s, %d" % (s(S_OST), s(S_OST), OB))
        e("v_mul_u32_u24 %s, 80, %s" % (v(VOW), v(V_C))); e("v_lshl_add_u32 %s, %s, 3, %s" % (v(VOW), v(V_G), v(VOW))); e("v_add_u32 %s, %s, %s" % (v(VOW), s(S_OST), v(VOW)))
        e("s_waitcnt vmcnt(0) lgkmcnt(0)")
        e("s_barrier")
        self.flag_set(0, 89, T + 20)
        self.stamp()
        lw = self.newlabel("WD")
        e("s_cmp_lg_u32 %s, 0" % s(S_W)); e("s_cbranch_scc1 %s" % lw)
        self.flag_poll(T + 19, T + 22)
        self.label(lw)
        e("s_barrier")
        self.stamp()
        self.vmq = []
        def kvjob(base_s, ldsb, pitch, u, pat, tag):
            g = u * 32768 + (0, 4096, 32768 + 2048)[pat]
            l = ldsb + u * pitch + (0, 4096, pitch + 2048)[pat]
            e("s_add_u32 m0, %s, %d" % (s(S_W1K), l))
            if pat == 1 and pitch != 6144: e("s_add_u32 m0, m0, s71")
            e("s_add_u32 %s, %s, %s" % (s(S_SOFF), s(base_s), s(64 + pat)))
            if g: e("s_add_u32 %s, %s, %d" % (s(S_SOFF), s(S_SOFF), g))
            self.vm("buffer_load_dwordx4 %s, %s, %s offen sc1 lds" % (v(VL16), s(S_WS, 4), s(S_SOFF)), tag)
        def halfjob(base_s, ldsb, pitch, u, tag):
            e("s_cmp_ge_u32 %s, 2" % s(S_W))
            e("s_cselect_b32 s58, %d, %d" % (156 * 1024 - 2048, 0) if False else "s_mov_b32 s58, %d" % (ldsb + u * pitch + 4096))
            e("s_cselect_b32 s58, %d, s58" % (76 * 1024))
            e("s_add_u32 m0, %s, s58" % s(S_W1K))
            e("s_cselect_b32 s58, 0x%x, s65" % BIGOFF if False else "s_cmp_ge_u32 %s, 2" % s(S_W))
            e("s_cselect_b32 s58, 0x%x, s65" % BIGOFF)
            e("s_add_u32 %s, %s, s58" % (s(S_SOFF), s(base_s))); e("s_add_u32 %s, %s, %d" % (s(S_SOFF), s(S_SOFF), u * 32768 + 4096))
            self.vm("buffer_load_dwordx4 %s, %s, %s offen sc1 lds" % (v(VL16), s(S_WS, 4), s(S_SOFF)), tag)
        def qjob(u0, tag):
            e("s_add_u32 m0, %s, %d" % (s(S_W1K), QB + u0 * 2048))
            if u0 == 4:
                e("s_cmp_ge_u32 %s, 2" % s(S_W)); e("s_cselect_b32 s58, 0x%x, 0" % BIGOFF); e("s_add_u32 %s, s72, s58" % s(S_SOFF))
                e("s_add_u32 %s, %s, %d" % (s(S_SOFF), s(S_SOFF), u0 * 32768))
            else:
                e("s_add_u32 %s, s72, %d" % (s(S_SOFF), u0 * 32768))
            self.vm("buffer_load_dwordx4 %s, %s, %s offen sc1 lds" % (v(VL16), s(S_WS, 4), s(S_SOFF)), tag)
        for u in (0, 2):
            for pat in range(3): kvjob(68, KB, 6144, u, pat, "kq")
            qjob(u, "kq")
        qjob(4, "kq")
        for u in (0, 2):
            for pat in range(3): kvjob(69, VB, 6272, u, pat, "rest")
        for base_s, ldsb, pitch in ((68, KB, 6144), (69, VB, 6272)):
            kvjob(base_s, ldsb, pitch, 4, 0, "rest"); halfjob(base_s, ldsb, pitch, 4, "rest")
        lw = self.newlabel("FP")
        e("v_lshlrev_b32 %s, 8, %s" % (v(T + 20), v(V_L)))
        e("s_cmp_lg_u32 %s, 0" % s(S_W)); e("s_cbranch_scc1 %s" % lw)
        for k in range(4):
            e("buffer_load_dwordx2 %s, %s, %s, 0 offen offset:%d sc1" % (v(T + 22 + 2 * k, 2), v(T + 20), s(S_WS, 4), k * 64))
        e("s_waitcnt vmcnt(14)")
        e("s_branch %s_j" % lw)
        self.label(lw)
        self.vm_wait("kq")
        self.label(lw + "_j")
        e("s_waitcnt lgkmcnt(0)")
        e("s_barrier")
        self.stamp()
        self.c("fragment loads")
        KF = [0, 72]; VF = [144, 0]
        def k_reads(h): return ["ds_read_b128 %s, %s offset:%d" % (a(KF[h] + B * 4, 4), v(VKA + h), B * 256) for B in range(18)]
        def v_reads(h):
            r = []
            for p in range(9):
                for dt in range(2):
                    d = VF[h] + (p * 2 + dt) * 4
                    r.append("ds_read_b64_tr_b16 %s, %s offset:%d" % (a(d, 2), v(VVA + 2 * h + dt), p * 512))
                    r.append("ds_read_b64_tr_b16 %s, %s offset:%d" % (a(d + 2, 2), v(VVA + 2 * h + dt), p * 512 + 256))
            return r
        for h in range(2):
            for qs in range(2):
                e("ds_read_b128 %s, %s offset:%d" % (v(VQ + (h * 2 + qs) * 4, 4), v(VQA + h), qs * 256))
        for x in k_reads(0)[:11]: e(x)
        e("v_cmp_eq_u32 s[58:59], 3, %s" % v(V_G)); e("v_cmp_eq_u32 s[60:61], 2, %s" % v(V_G))
        e("s_waitcnt lgkmcnt(11)")
        e("v_mov_b32 %s, 0x3f80" % v(t1))
        for h in range(2):
            for qs in range(2):
                q = VQ + (h * 2 + qs) * 4
                z = (2, 3) if h == 0 else (0, 1)
                for i in z: e("v_cndmask_b32 %s, %s, 0, s[60:61]" % (v(q + i), v(q + i)))
                e("v_cndmask_b32 %s, %s, %s, s[58:59]" % (v(q), v(q), v(t1)))
                for i in range(1, 4): e("v_cndmask_b32 %s, %s, 0, s[58:59]" % (v(q + i), v(q + i)))
        e("s_waitcnt lgkmcnt(8)")
        for x in k_reads(0)[11:]: e(x)
        tasks = [(0, 0), (0, 1), (1, 0), (1, 1)]
        def A(ti):
            h, qs = tasks[ti]; S = SB[ti % 2]; r = []
            for b in range(17):
                C = v(VMF, 4) if b == 0 else (v(VML, 4) if b == 16 else "0")
                r.append("%s %s, %s, %s, %s" % (M, v(S + b * 4, 4), a(KF[h] + (qs + b) * 4, 4), v(VQ + (h * 2 + qs) * 4, 4), C))
            return r
        MX = T + 8
        def Bst(ti):
            S = SB[ti % 2]
            vals = [S + i for i in range(68)]
            ins = []
            for c4 in range(4):
                ins.append("v_max3_f32 %s, %s, %s, %s" % (v(MX + c4), v(vals[3 * c4]), v(vals[3 * c4 + 1]), v(vals[3 * c4 + 2])))
            k = 12; ch = 0
            while k < 68:
                ins.append("v_max3_f32 %s, %s, %s, %s" % (v(MX + ch), v(MX + ch), v(vals[k]), v(vals[k + 1]))); k += 2; ch = (ch + 1) % 4
            groups = [ins[i:i + 2] for i in range(0, len(ins), 2)]
            tail = ["v_max3_f32 %s, %s, %s, %s" % (v(MX), v(MX), v(MX + 1), v(MX + 2)), "v_max_f32 %s, %s, %s" % (v(MX), v(MX), v(MX + 3)),
                    "v_mov_b32 %s, %s" % (v(MX + 1), v(MX)), "s_nop 0", "v_permlane16_swap_b32 %s, %s" % (v(MX), v(MX + 1)), "v_max_f32 %s, %s, %s" % (v(MX), v(MX), v(MX + 1)),
                    "v_mov_b32 %s, %s" % (v(MX + 1), v(MX)), "s_nop 0", "v_permlane32_swap_b32 %s, %s" % (v(MX), v(MX + 1)), "v_max_f32 %s, %s, %s" % (v(MX + 4), v(MX), v(MX + 1))]
            return groups, tail
        def Cst(ti):
            h, qs = tasks[ti]; S = SB[ti % 2]
            def adds(b):
                q = S + b * 4
                return ["v_pk_add_f32 %s, %s, %s op_sel_hi:[1,0] neg_lo:[0,1] neg_hi:[0,1]" % (v(q + 2 * hh, 2), v(q + 2 * hh, 2), v(MX + 4, 2)) for hh in range(2)]
            def cvts(b):
                q = S + b * 4; B = qs + b; r = []
                if B % 2 == 0:
                    r.append("v_cvt_pk_bf16_f32 %s, %s, %s" % (v(q), v(q), v(q + 1)))
                    r.append("v_cvt_pk_bf16_f32 %s, %s, %s" % (v(q + 1), v(q + 2), v(q + 3)))
                    if B == 16 and qs == 0: r += ["v_mov_b32 %s, 0" % v(q + 2), "v_mov_b32 %s, 0" % v(q + 3)]
                elif b == 0:
                    r.append("v_cvt_pk_bf16_f32 %s, %s, %s" % (v(q + 3), v(q + 2), v(q + 3)))
                    r.append("v_cvt_pk_bf16_f32 %s, %s, %s" % (v(q + 2), v(q), v(q + 1)))
                    r += ["v_mov_b32 %s, 0" % v(q), "v_mov_b32 %s, 0" % v(q + 1)]
                else:
                    r.append("v_cvt_pk_bf16_f32 %s, %s, %s" % (v(q - 2), v(q), v(q + 1)))
                    r.append("v_cvt_pk_bf16_f32 %s, %s, %s" % (v(q - 1), v(q + 2), v(q + 3)))
                return r
            head = adds(0)
            groups = []
            for b in range(17):
                q = S + b * 4
                groups.append(["v_exp_f32 %s, %s" % (v(q + i), v(q + i)) for i in range(4)] + (adds(b + 1) if b < 16 else []) + cvts(b))
            return head, groups
        def pfrag(ti, p):
            h, qs = tasks[ti]; S = SB[ti % 2]
            if qs == 0: return S + (2 * p) * 4
            return S + (0 if p == 0 else (2 * p - 1)) * 4
        def D(ti):
            h, qs = tasks[ti]; r = []
            for p in range(9):
                for dt in range(2):
                    d = OA + (ti % 2) * 8 + dt * 4
                    r.append("%s %s, %s, %s, %s" % (M, v(d, 4), a(VF[h] + (p * 2 + dt) * 4, 4), v(pfrag(ti, p), 4), v(d, 4) if p else "0"))
            return r
        def E(ti):
            h, qs = tasks[ti]; d = OA + (ti % 2) * 8; L = T + 14; r = []
            r += ["v_mov_b32 %s, %s" % (v(L), v(d + 4)), "v_mov_b32 %s, %s" % (v(L + 1), v(d + 4)),
                  "v_permlane16_swap_b32 %s, %s" % (v(L), v(L + 1)), "v_rcp_f32 %s, %s" % (v(L + 2), v(L + 1))]
            for hh in range(2):
                r.append("v_pk_mul_f32 %s, %s, %s op_sel_hi:[1,0]" % (v(d + 2 * hh, 2), v(d + 2 * hh, 2), v(L + 2, 2)))
                r.append("v_pk_mul_f32 %s, %s, %s op_sel_hi:[1,0]" % (v(d + 4 + 2 * hh, 2), v(d + 4 + 2 * hh, 2), v(L + 2, 2)))
            r += ["v_cvt_pk_bf16_f32 %s, %s, %s" % (v(d), v(d), v(d + 1)), "v_cvt_pk_bf16_f32 %s, %s, %s" % (v(d + 1), v(d + 2), v(d + 3)),
                  "v_cvt_pk_bf16_f32 %s, %s, %s" % (v(d + 4), v(d + 4), v(d + 5)), "v_cvt_pk_bf16_f32 %s, %s, %s" % (v(d + 5), v(d + 6), v(d + 7)),
                  "ds_write_b64 %s, %s offset:%d" % (v(VOW), v(d, 2), qs * 1280 + h * 40),
                  "s_mov_b64 exec, 0xffff",
                  "ds_write_b64 %s, %s offset:%d" % (v(VOW), v(d + 4, 2), qs * 1280 + h * 40 + 32),
                  "s_mov_b64 exec, -1"]
            return r
        def stage(ti, mB, mC, lds, jobs, mid=None):
            groups, tail = Bst(ti)
            mB = list(mB); mC = list(mC); lds = list(lds); jobs = list(jobs); njobs = len(jobs)
            for gi, gr in enumerate(groups):
                if mB: e(mB.pop(0))
                for x in gr: e(x)
            for x in mB: e(x)
            for x in tail: e(x)
            if mid: mid()
            head, cg = Cst(ti)
            for x in head: e(x)
            per = (len(lds) + 16) // 17
            for b, gr in enumerate(cg):
                if mC: e(mC.pop(0))
                jb = None
                if jobs and (b * njobs) // 17 != ((b + 1) * njobs) // 17:
                    jb = jobs.pop(0)
                    for x in jb[0]: e(x)
                for x in gr[:4]: e(x)
                if lds: e("s_waitcnt lgkmcnt(%d)" % (15 - per))
                for _ in range(per):
                    if lds: e(lds.pop(0))
                for x in gr[4:]: e(x)
                if jb: self.vm(jb[1], jb[2])
            for x in mC: e(x)
            for x in lds: e(x)
            for jb in jobs: self.emit_job(jb)
        W0 = ["s_waitcnt lgkmcnt(0)"]
        def chunked(r):
            out = []
            return list(r)
        wo_a = [self.job4(S_B3, 4 * k, 80 + 4 * k, "w3a") for k in range(17)]
        wo_b = [self.job4(S_B3, 68 + 4 * k, 4 * k, "w3b") for k in range(8)]
        w1_a = [self.job4(S_B4, 4 * k, 32 + 4 * k, "w4a") for k in range(12)]
        def touch(sbase, first_blk, n8k, who, nshare):
            r = []
            for k in range((n8k + 3) // 4):
                su = ["s_mul_i32 s58, %s, %d" % (s(who), n8k * 8192), "s_add_u32 s58, s58, %s" % s(sbase), "s_mul_i32 s59, %s, 7168" % s(S_W),
                      "s_add_u32 s58, s58, s59", "s_add_u32 %s, s58, %d" % (s(S_SOFF), first_blk * 1024 + k * 32768)]
                r.append((su, "buffer_load_dword v%d, v198, %s, %s offen" % (192 + (self.ntouch + k) % 6, s(S_WS, 4), s(S_SOFF)), "touch"))
            self.ntouch += (n8k + 3) // 4
            return r
        e("v_lshlrev_b32 v198, 7, %s" % v(V_L))
        e("s_and_b32 s73, %s, 1" % s(S_M3))
        e("s_lshl_b32 s74, s73, 1"); e("s_and_b32 s58, %s, 1" % s(S_J3)); e("s_add_u32 s74, s74, s58")
        tch = (touch(S_B4, 0, 8, 73, 2) + touch(S_B3, 68, 1, 74, 4)) if o.get("pf2", 1) else []
        e("s_waitcnt lgkmcnt(0)")
        for x in A(0): e(x)
        if o.get("fine2"): self.stamp()
        def sync2():
            lw = self.newlabel("S2")
            if o.get("fine2"): self.stamp()
            e("s_waitcnt vmcnt(0)")
            e("s_cmp_lg_u32 %s, 0" % s(S_W)); e("s_cbranch_scc1 %s" % lw)
            e("s_mov_b64 s[50:51], -1")
            for k in range(4):
                e("v_cmp_eq_u32 s[46:47], %s, %s" % (s(S_NONCE), v(T + 22 + 2 * k))); e("v_cmp_eq_u32 s[48:49], %s, %s" % (s(S_NONCE + 1), v(T + 23 + 2 * k)))
                e("s_and_b64 s[50:51], s[50:51], s[46:47]"); e("s_and_b64 s[50:51], s[50:51], s[48:49]")
            e("s_cmp_eq_u64 s[50:51], -1"); e("s_cbranch_scc1 %s" % lw)
            self.flag_poll(T + 20, T + 22, nloads=4, stride=64)
            self.label(lw)
            e("s_barrier")
            if o.get("fine2"): self.stamp()
        stage(0, A(1), [], chunked(v_reads(0)) + chunked(k_reads(1)), wo_a[:8], mid=sync2)
        e("s_waitcnt lgkmcnt(0)")
        if o.get("fine2"): self.stamp()
        stage(1, D(0)[:17], D(0)[17:] + A(2)[:16], chunked(v_reads(1)), wo_a[8:])
        for x in A(2)[16:]: e(x)
        e("s_waitcnt lgkmcnt(0)")
        e("s_barrier")
        if o.get("fine2"): self.stamp()
        for x in E(0): e(x)
        stage(2, D(1)[:17], D(1)[17:] + A(3)[:16], [], wo_b + w1_a[:1])
        for x in A(3)[16:]: e(x)
        for x in E(1): e(x)
        if o.get("fine2"): self.stamp()
        stage(3, D(2)[:17], D(2)[17:], [], w1_a[1:8])
        self.p3_jobs = w1_a[8:]
        for x in E(2): e(x)
        for x in D(3): e(x)
        for x in E(3): e(x)
        self.stamp()
        self.c("o: staging -> fragment-major global")
        e("v_mul_u32_u24 %s, 80, %s" % (v(t0), v(V_C))); e("v_add_u32 %s, %s, %s" % (v(t0), s(S_OST), v(t0)))
        e("v_lshl_add_u32 %s, %s, 4, %s" % (v(t1), v(V_G), v(t0)))
        e("v_mul_u32_u24 %s, 1280, %s" % (v(t2), v(V_G))); e("v_add_u32 %s, %s, %s" % (v(t2), v(t2), v(t0)))
        e("v_min_u32 %s, %d, %s" % (v(t2), OB + 4 * 2560 - 80, v(t2)))
        e("s_waitcnt lgkmcnt(0)")
        R = 56
        e("ds_read_b128 %s, %s" % (v(R, 4), v(t1)))
        e("ds_read_b128 %s, %s offset:1280" % (v(R + 4, 4), v(t1)))
        e("ds_read_b128 %s, %s offset:64" % (v(R + 8, 4), v(t2)))
        e("s_mul_i32 s55, %s, 5" % s(S_J3))
        e("s_lshl_b32 s58, %s, 3" % s(S_M3)); e("s_lshl_b32 s59, %s, 1" % s(S_W)); e("s_add_u32 s58, s58, s59"); e("s_mul_i32 s58, s58, 20480")
        e("s_add_u32 s58, s58, 0x%x" % WS_O)
        e("v_add_u32 %s, s55, %s" % (v(t0), v(V_G)))
        e("v_lshrrev_b32 %s, 2, %s" % (v(t1), v(t0))); e("v_lshlrev_b32 %s, 10, %s" % (v(t1), v(t1)))
        e("v_and_b32 %s, 3, %s" % (v(t0), v(t0))); e("v_lshl_add_u32 %s, %s, 8, %s" % (v(t1), v(t0), v(t1)))
        e("v_lshl_add_u32 %s, %s, 4, %s" % (v(t1), v(V_C), v(t1)))
        e("s_add_u32 s59, s55, 4"); e("s_lshr_b32 s60, s59, 2"); e("s_lshl_b32 s60, s60, 10"); e("s_and_b32 s59, s59, 3"); e("s_lshl_b32 s59, s59, 8"); e("s_add_u32 s60, s60, s59")
        e("v_mul_u32_u24 %s, 20480, %s" % (v(t3), v(V_G))); e("v_lshl_add_u32 %s, %s, 4, %s" % (v(t3), v(V_C), v(t3))); e("v_add_u32 %s, s60, %s" % (v(t3), v(t3)))
        e("s_waitcnt lgkmcnt(0)")
        self.vm("buffer_store_dwordx4 %s, %s, %s, s58 offen sc1" % (v(R, 4), v(t1), s(S_WS, 4)), "ost")
        e("s_add_u32 s59, s58, 20480")
        self.vm("buffer_store_dwordx4 %s, %s, %s, s59 offen sc1" % (v(R + 4, 4), v(t1), s(S_WS, 4)), "ost")
        e("s_mov_b64 exec, 0xffffffff")
        self.vm("buffer_store_dwordx4 %s, %s, %s, s58 offen sc1" % (v(R + 8, 4), v(t3), s(S_WS, 4)), "ost")
        e("s_mov_b64 exec, -1")

    def handoff(self, phase, jobs, late=()):
        e = self.e
        l2 = self.newlabel("H2")
        for j in jobs: self.emit_job(j)
        e("s_waitcnt vmcnt(%d)" % len(jobs))
        e("s_barrier")
        self.stamp()
        e("s_cmp_lg_u32 %s, 0" % s(S_W)); e("s_cbranch_scc1 %s" % l2)
        self.group_flag_idx()
        self.flag_set(phase, 52, 212, checkwave=False)
        self.poll_group(phase, 212)
        self.label(l2)
        e("s_waitcnt vmcnt(0)")
        e("s_barrier")
        for j in late: self.emit_job(j)
        self.stamp()

    def gemm_small(self, NS, VL16, ACC, pos, bfrag, btag, RING, T, hooks, slots):
        e = self.e
        VA = T + 16
        def rd(st):
            r = []
            for t in range(5):
                off = pos(st * 5 + t) * 1024
                r.append("ds_read_b128 %s, %s offset:%d" % (a(RING + ((st % 3) * 5 + t) * 4, 4), v(VA + off // 65536), off % 65536))
            return r
        for x in rd(0) + rd(1): e(x)
        for st in range(NS):
            if st in hooks: hooks[st]()
            self.vm_wait(btag(st), " lgkmcnt(%d)" % (5 if st + 1 < NS else 0))
            nx = rd(st + 2) if st + 2 < NS else []
            jobs = list(slots(st))
            for t in range(5):
                jb = None
                if jobs and t in (0, 2, 4):
                    jb = jobs.pop(0)
                    for x in jb[0]: e(x)
                e("%s %s, %s, %s, %s" % (M, v(ACC + t * 4, 4), a(RING + ((st % 3) * 5 + t) * 4, 4), a(bfrag(st), 4), v(ACC + t * 4, 4)))
                if t < len(nx): e(nx[t])
                if jb: self.vm(jb[1], jb[2])
            for jb in jobs: self.emit_job(jb)

    def frag_job(self, dst, sreg, idx, tag, VL16=4):
        su = []
        if idx % 4 == 0 and idx > 0: su = ["s_add_u32 %s, %s, 4096" % (s(sreg), s(sreg))]
        return (su, "buffer_load_dwordx4 %s, %s, %s, %s offen offset:%d sc1" % (a(dst, 4), v(VL16), s(S_WS, 4), s(sreg), (idx % 4) * 1024), tag)

    def p3(self):
        e = self.e; o = self.o
        VL16 = 4; T = 200; t0, t1, t2, t3 = T, T + 1, T + 2, T + 3
        XR = 8
        ACC = 32
        HR = 240
        self.c("P2 -> P3 hand-off")
        VA = T + 16
        e("v_mov_b32 %s, %s" % (v(VA), v(VL16))); e("v_add_u32 %s, 0x10000, %s" % (v(VA + 1), v(VL16))); e("v_add_u32 %s, 0x20000, %s" % (v(VA + 2), v(VL16)))
        for i in range(20): e("v_mov_b32 %s, 0" % v(ACC + i))
        e("s_lshl_b32 s54, %s, 4" % s(S_TI)); e("v_add_u32 %s, s54, %s" % (v(t0), v(V_C))); e("v_mul_u32_u24 %s, 1280, %s" % (v(t0), v(t0)))
        e("s_mul_i32 s54, %s, 160" % s(S_NQ))
        e("v_lshl_add_u32 %s, %s, 4, %s" % (v(t1), v(V_G), v(t0))); e("v_add_u32 %s, s54, %s" % (v(20), v(t1)))
        e("v_lshl_add_u32 %s, %s, 3, %s" % (v(t1), v(V_G), v(t0))); e("v_add_u32 %s, s54, %s" % (v(21), v(t1)))
        e("s_waitcnt lgkmcnt(0)")
        e("s_barrier")
        self.handoff(1, self.p3_jobs)
        self.c("P3 main")
        e("s_mul_i32 s54, %s, 20480" % s(S_TI)); e("s_add_u32 s54, s54, 0x%x" % WS_O)
        fj = [self.frag_job(st * 4, 54, st, ("of", st)) for st in range(20)]
        LA = 10
        for st in range(LA): self.emit_job(fj[st])
        xr = [([], "buffer_load_dwordx4 %s, v20, %s, 0 offen" % (v(XR, 4), s(S_X, 4)), "xr"),
              ([], "buffer_load_dwordx4 %s, v20, %s, 0 offen offset:64" % (v(XR + 4, 4), s(S_X, 4)), "xr"),
              ([], "buffer_load_dwordx2 %s, v21, %s, 0 offen offset:128" % (v(XR + 8, 2), s(S_X, 4)), "xr")]
        def slots(st):
            r = []
            if st + LA < 20: r.append(fj[st + LA])
            if 12 <= st < 15: r.append(xr[st - 12])
            return r
        self.gemm_small(20, VL16, ACC, lambda i: 80 + i if i < 68 else i - 68, lambda st: st * 4, lambda st: ("of", st), 80, T, {}, slots)
        self.stamp()
        self.c("P3 epilogue")
        SUM, SQ = T + 4, T + 6
        e("v_mov_b32 %s, 0" % v(SUM)); e("v_mov_b32 %s, 0" % v(SUM + 1)); e("v_mov_b32 %s, 0" % v(SQ)); e("v_mov_b32 %s, 0" % v(SQ + 1))
        e("s_mul_i32 s54, %s, 20480" % s(S_TI)); e("s_add_u32 s54, s54, 0x%x" % WS_H)
        e("s_mul_i32 s55, %s, 10" % s(S_NQ))
        def uaddr(dst, ureg):
            e("v_lshrrev_b32 %s, 2, %s" % (v(t2), v(ureg))); e("v_lshlrev_b32 %s, 10, %s" % (v(t2), v(t2)))
            e("v_and_b32 %s, 3, %s" % (v(t3), v(ureg))); e("v_lshl_add_u32 %s, %s, 8, %s" % (v(t2), v(t3), v(t2)))
            e("v_lshl_add_u32 %s, %s, 4, %s" % (v(dst), v(V_C), v(t2)))
        for p in range(2):
            e("v_add_u32 %s, s55, %s" % (v(t0), v(V_G)))
            if p: e("v_add_u32 %s, 4, %s" % (v(t0), v(t0)))
            uaddr(22 + p, t0)
        e("v_lshrrev_b32 %s, 1, %s" % (v(t0), v(V_G))); e("v_add_u32 %s, s55, %s" % (v(t0), v(t0))); e("v_add_u32 %s, 8, %s" % (v(t0), v(t0)))
        uaddr(24, t0)
        e("v_and_b32 %s, 1, %s" % (v(t0), v(V_G))); e("v_lshl_add_u32 %s, %s, 3, %s" % (v(24), v(t0), v(24)))
        self.vm_wait("xr")
        for t in range(5):
            A_ = ACC + t * 4
            xs = (XR + (t >> 1) * 4 + (t & 1) * 2) if t < 4 else XR + 8
            for hh in range(2):
                e("v_lshlrev_b32 %s, 16, %s" % (v(t0), v(xs + hh))); e("v_and_b32 %s, 0xffff0000, %s" % (v(t1), v(xs + hh)))
                e("v_pk_add_f32 %s, %s, %s" % (v(A_ + 2 * hh, 2), v(A_ + 2 * hh, 2), v(t0, 2)))
                hd = (HR + (t >> 1) * 4 + (t & 1) * 2 + hh) if t < 4 else HR + 8 + hh
                e("v_cvt_pk_bf16_f32 %s, %s, %s" % (v(hd), v(A_ + 2 * hh), v(A_ + 2 * hh + 1)))
            if t == 1: self.vm("buffer_store_dwordx4 %s, v22, %s, s54 offen sc1" % (v(HR, 4), s(S_WS, 4)), "hst")
            if t == 3: self.vm("buffer_store_dwordx4 %s, v23, %s, s54 offen sc1" % (v(HR + 4, 4), s(S_WS, 4)), "hst")
            if t == 4: self.vm("buffer_store_dwordx2 %s, v24, %s, s54 offen sc1" % (v(HR + 8, 2), s(S_WS, 4)), "hst")
        for t in range(5):
            A_ = ACC + t * 4
            for hh in range(2):
                e("v_pk_add_f32 %s, %s, %s" % (v(SUM, 2), v(SUM, 2), v(A_ + 2 * hh, 2)))
                e("v_pk_fma_f32 %s, %s, %s, %s" % (v(SQ, 2), v(A_ + 2 * hh, 2), v(A_ + 2 * hh, 2), v(SQ, 2)))
        e("v_add_f32 %s, %s, %s" % (v(SUM), v(SUM), v(SUM + 1))); e("v_add_f32 %s, %s, %s" % (v(SUM + 1), v(SQ), v(SQ + 1)))
        self.reduce4(SUM, t0); self.reduce4(SUM + 1, t0)
        e("s_lshl_b32 s54, %s, 4" % s(S_TI)); e("v_add_u32 %s, s54, %s" % (v(t0), v(V_C))); e("v_lshlrev_b32 %s, 6, %s" % (v(t0), v(t0)))
        e("s_lshl_b32 s54, %s, 3" % s(S_NQ)); e("s_add_u32 s54, s54, 0x%x" % WS_HS)
        e("s_mov_b64 exec, 0xffff")
        self.vm("buffer_store_dwordx2 %s, %s, %s, s54 offen sc1" % (v(SUM, 2), v(t0), s(S_WS, 4)), "hst")
        e("s_mov_b64 exec, -1")

    def p4(self):
        e = self.e; o = self.o
        VL16 = 4; T = 200; t0, t1, t2, t3 = T, T + 1, T + 2, T + 3
        ACC = 32
        CSA = 80
        CSV = 88
        VONE = 112
        VST = 116
        CS_OFF = 158 * 1024
        RING = 160
        pos = lambda i: 32 + i if i < 48 else 80 + (i - 48)
        self.c("P3 -> P4 hand-off")
        for i in range(4): e("v_mov_b32 %s, 0x3f803f80" % v(VONE + i))
        for i in range(8): e("v_mov_b32 %s, 0" % v(CSA + i))
        for i in range(48): e("v_mov_b32 %s, 0" % v(ACC + i))
        e("s_barrier")
        self.handoff(2, [self.job4(S_B4, 48 + 4 * k, 80 + 4 * k, "w4b") for k in range(18)])
        self.c("P4 main")
        e("s_lshl_b32 s54, %s, 3" % s(S_M3)); e("s_lshl_b32 s55, %s, 1" % s(S_W)); e("s_add_u32 s54, s54, s55")
        e("s_mov_b32 s88, s54")
        e("s_mul_i32 s55, s54, 20480"); e("s_add_u32 s55, s55, 0x%x" % WS_H); e("s_add_u32 s56, s55, 20480")
        fj = [[self.frag_job((st * 2 + tt) * 4, 55 + tt, st, ("hf", st)) for tt in range(2)] for st in range(20)]
        LA = 5
        for st in range(LA):
            for j in fj[st]: self.emit_job(j)
        e("s_lshl_b32 s57, s54, 4"); e("v_add_u32 %s, s57, %s" % (v(t0), v(V_C))); e("v_lshlrev_b32 %s, 6, %s" % (v(t0), v(t0)))
        e("v_lshl_add_u32 %s, %s, 4, %s" % (v(t0), v(V_G), v(t0))); e("v_add_u32 %s, 0x%x, %s" % (v(25), WS_HS, v(t0)))
        e("s_add_u32 s58, %s, 4" % s(S_W)); e("s_cmp_ge_u32 s58, 6"); e("s_cselect_b32 s57, 6, 0"); e("s_sub_u32 s58, s58, s57")
        e("v_add_u32 %s, %s, %s" % (v(t0), s(S_W1K), v(VL16)))
        e("s_lshl_b32 s57, s58, 10"); e("v_add_u32 %s, s57, %s" % (v(t1), v(VL16)))
        e("v_add_u32 %s, 0x10000, %s" % (v(t2), v(t0))); e("v_add_u32 %s, 0x10000, %s" % (v(t3), v(t1)))
        e("v_add_u32 %s, 0x20000, %s" % (v(t0 + 4), v(t0))); e("v_add_u32 %s, 0x20000, %s" % (v(t0 + 5), v(t1)))
        def csrd(st):
            off = pos(st * 6) * 1024
            return ["ds_read_b128 %s, %s offset:%d" % (a(RING + ((st % 4) * 2 + q) * 4, 4), v(t0 + 2 * (off // 65536) + q), off % 65536) for q in range(2)]
        for st in range(3):
            for x in csrd(st): e(x)
        for st in range(20):
            nx = csrd(st + 3) if st + 3 < 20 else []
            for x in nx: e(x)
            e("s_waitcnt lgkmcnt(%d)" % (2 * min(3, 19 - st)))
            for q in range(2):
                e("%s %s, %s, %s, %s" % (M, v(CSA + q * 4, 4), a(RING + ((st % 4) * 2 + q) * 4, 4), v(VONE, 4), v(CSA + q * 4, 4)))
            if st % 2 == 1 and st // 2 < 8: self.emit_job(self.job4(S_B5, 4 * (st // 2), 4 * (st // 2), "w5a"))
        e("v_lshlrev_b32 %s, 4, %s" % (v(t2), v(V_G)))
        e("s_lshl_b32 s57, %s, 6" % s(S_W)); e("s_add_u32 s57, s57, %d" % CS_OFF); e("v_add_u32 %s, s57, %s" % (v(t0), v(t2)))
        e("s_lshl_b32 s57, s58, 6"); e("s_add_u32 s57, s57, %d" % CS_OFF); e("v_add_u32 %s, s57, %s" % (v(t1), v(t2)))
        e("v_add_u32 %s, %d, %s" % (v(26), CS_OFF, v(t2)))
        VA = T + 16
        e("v_mov_b32 %s, %s" % (v(VA), v(VL16))); e("v_add_u32 %s, 0x10000, %s" % (v(VA + 1), v(VL16))); e("v_add_u32 %s, 0x20000, %s" % (v(VA + 2), v(VL16)))
        def rd(st):
            r = []
            for t in range(6):
                off = pos(st * 6 + t) * 1024
                r.append("ds_read_b128 %s, %s offset:%d" % (a(RING + ((st % 2) * 6 + t) * 4, 4), v(VA + off // 65536), off % 65536))
            return r
        e("v_cmp_eq_u32 vcc, 0, %s" % v(V_C))
        for x in rd(0): e(x)
        e("s_and_saveexec_b64 s[58:59], vcc")
        e("ds_write_b128 %s, %s" % (v(t0), v(CSA, 4)))
        e("ds_write_b128 %s, %s" % (v(t1), v(CSA + 4, 4)))
        e("s_mov_b64 exec, s[58:59]")
        w5b = [self.job4(S_B5, 32 + 4 * k, 32 + 4 * k, "w5b") for k in range(12)]
        hs = [([], "buffer_load_dwordx4 %s, v25, %s, 0 offen offset:%d sc1" % (v(VST + tt * 4, 4), s(S_WS, 4), tt * 1024), "hs") for tt in range(2)]
        for st in range(20):
            if st == 10:
                e("s_barrier")
                for t in range(6): e("ds_read_b128 %s, %s offset:%d" % (v(CSV + t * 4, 4), v(26), t * 64))
            self.vm_wait(("hf", st), " lgkmcnt(0)")
            nx = rd(st + 1) if st + 1 < 20 else []
            jobs = list(fj[st + LA]) if st + LA < 20 else []
            if st == 15: jobs += hs
            if st in (2, 4, 6) and o.get("pf3", 0):
                k = (st - 2) // 2
                if k < 2:
                    jobs.append((["s_mul_i32 s58, s74, 40960", "s_add_u32 s58, s58, %s" % s(S_B5), "s_mul_i32 s59, %s, 7168" % s(S_W), "s_add_u32 s58, s58, s59",
                                  "s_add_u32 %s, s58, %d" % (s(S_SOFF), 80 * 1024 + k * 32768)],
                                 "buffer_load_dword v%d, v198, %s, %s offen" % (192 + k, s(S_WS, 4), s(S_SOFF)), "touch"))
            if st >= 10:
                jobs += w5b[:2] if st >= 15 or st in (11, 13) else w5b[:1]
                w5b = w5b[2:] if (st >= 15 or st in (11, 13)) else w5b[1:]
            k = 0; n = 0
            for t in range(6):
                for tt in range(2):
                    d = ACC + (t * 2 + tt) * 4
                    jb = None
                    if jobs and n % 3 == 0:
                        jb = jobs.pop(0)
                        for x in jb[0]: e(x)
                    e("%s %s, %s, %s, %s" % (M, v(d, 4), a(RING + ((st % 2) * 6 + t) * 4, 4), a((st * 2 + tt) * 4, 4), v(d, 4)))
                    if tt == 0 and k < len(nx): e(nx[k]); k += 1
                    if jb: self.vm(jb[1], jb[2])
                    n += 1
            for jb in jobs: self.emit_job(jb)
        assert not w5b
        self.stamp()
        e("s_barrier")
        self.c("P4 epilogue (remaining resident part of W2 streams in underneath)")
        w5c = [self.job4(S_B5, 80 + 4 * k, 80 + 4 * k, "w5c") for k in range(20)]
        self.p5_jobs = w5c[12:]; w5c = w5c[:12]
        self.vm_wait("hs")
        NM = [T + 4, T + 6]
        for tt in range(2):
            q = VST + tt * 4
            e("v_add_f32 %s, %s, %s" % (v(q), v(q), v(q + 2))); e("v_add_f32 %s, %s, %s" % (v(q + 1), v(q + 1), v(q + 3)))
            self.reduce4(q, t0); self.reduce4(q + 1, t0)
            e("v_mul_f32 %s, 0x%x, %s" % (v(NM[tt]), f2u(-1.0 / 640), v(q)))
            e("v_mul_f32 %s, 0x%x, %s" % (v(q + 1), f2u(1.0 / 640), v(q + 1)))
            e("v_fma_f32 %s, -%s, %s, %s" % (v(q + 1), v(NM[tt]), v(NM[tt]), v(q + 1)))
            e("v_max_f32 %s, 0, %s" % (v(q + 1), v(q + 1))); e("v_add_f32 %s, 0x%x, %s" % (v(q + 1), f2u(1e-5), v(q + 1)))
            e("v_rsq_f32 %s, %s" % (v(NM[tt] + 1), v(q + 1)))
        e("s_mul_i32 s54, s88, 49152"); e("s_mul_i32 s55, %s, 3072" % s(S_J3)); e("s_add_u32 s54, s54, s55"); e("s_add_u32 s54, s54, 0x%x" % WS_H1)
        e("s_add_u32 s55, s54, 49152")
        e("s_mov_b32 s56, 0x%x" % f2u(-math.log2(math.e))); e("s_mov_b32 s57, s56")
        n = 0
        for tt in range(2):
            for p in range(3):
                O4 = 124 + (n % 4) * 4
                zs = []
                for hf in range(2):
                    t = 2 * p + hf; A_ = ACC + (t * 2 + tt) * 4
                    for hh in range(2): zs.append((A_ + 2 * hh, CSV + t * 4 + 2 * hh, O4 + hf * 2 + hh))
                E_ = [T + 8, T + 10, T + 12, T + 14]
                for k, (z, c_, od) in enumerate(zs): e("v_pk_fma_f32 %s, %s, %s, %s op_sel_hi:[1,0,1]" % (v(z, 2), v(c_, 2), v(NM[tt], 2), v(z, 2)))
                for k, (z, c_, od) in enumerate(zs): e("v_pk_mul_f32 %s, %s, %s op_sel:[0,1] op_sel_hi:[1,1]" % (v(z, 2), v(z, 2), v(NM[tt], 2)))
                for k, (z, c_, od) in enumerate(zs): e("v_pk_mul_f32 %s, %s, s[56:57]" % (v(E_[k], 2), v(z, 2)))
                for k in range(4): e("v_exp_f32 %s, %s" % (v(E_[k]), v(E_[k]))); e("v_exp_f32 %s, %s" % (v(E_[k] + 1), v(E_[k] + 1)))
                for k in range(4): e("v_pk_add_f32 %s, %s, 1.0 op_sel_hi:[1,0]" % (v(E_[k], 2), v(E_[k], 2)))
                for k in range(4): e("v_rcp_f32 %s, %s" % (v(E_[k]), v(E_[k]))); e("v_rcp_f32 %s, %s" % (v(E_[k] + 1), v(E_[k] + 1)))
                for k, (z, c_, od) in enumerate(zs): e("v_pk_mul_f32 %s, %s, %s" % (v(z, 2), v(z, 2), v(E_[k], 2)))
                for k, (z, c_, od) in enumerate(zs): e("v_cvt_pk_bf16_f32 %s, %s, %s" % (v(od), v(z), v(z + 1)))
                for _ in range(2):
                    if w5c: self.emit_job(w5c.pop(0))
                self.vm("buffer_store_dwordx4 %s, %s, %s, %s offen offset:%d sc1" % (v(O4, 4), v(VL16), s(S_WS, 4), s(54 + tt), p * 1024), "h1st")
                n += 1
        assert not w5c

    def p5(self):
        e = self.e; o = self.o
        VL16 = 4; T = 200; t0, t1, t2, t3 = T, T + 1, T + 2, T + 3
        ACC = 32; HR = 240
        self.c("P4 -> P5 hand-off")
        for i in range(20): e("v_mov_b32 %s, 0" % v(ACC + i))
        self.handoff(3, self.p5_jobs)
        self.c("P5 main")
        e("s_mul_i32 s54, %s, 49152" % s(S_TI)); e("s_add_u32 s54, s54, 0x%x" % WS_H1)
        fj = [self.frag_job(st * 4, 54, st, ("f1", st)) for st in range(48)]
        LA = 12
        for st in range(LA): self.emit_job(fj[st])
        bA = [self.job4(S_B5, 160 + 4 * k, 4 * k, "b5a") for k in range(10)]
        bB = [self.job4(S_B5, 200 + 4 * k, 40 + 4 * k, "b5b") for k in range(10)]
        def slots(st):
            r = []
            if st + LA < 48: r.append(fj[st + LA])
            if 9 <= st < 19: r.append(bA[st - 9])
            if 19 <= st < 29: r.append(bB[st - 19])
            return r
        def bar(): e("s_barrier")
        def landed(tag):
            def fn():
                self.vm_wait(tag); e("s_barrier")
            return fn
        hooks = {9: bar, 19: bar, 30: landed("b5a"), 38: landed("b5b")}
        self.gemm_small(48, VL16, ACC, lambda i: i % 160, lambda st: st * 4, lambda st: ("f1", st), 192, T, hooks, slots)
        self.stamp()
        self.c("P5 epilogue")
        for t in range(5):
            A_ = ACC + t * 4
            for hh in range(2):
                hd = (HR + (t >> 1) * 4 + (t & 1) * 2 + hh) if t < 4 else HR + 8 + hh
                e("v_lshlrev_b32 %s, 16, %s" % (v(t0), v(hd))); e("v_and_b32 %s, 0xffff0000, %s" % (v(t1), v(hd)))
                e("v_pk_add_f32 %s, %s, %s" % (v(A_ + 2 * hh, 2), v(A_ + 2 * hh, 2), v(t0, 2)))
                od = (64 + (t >> 1) * 4 + (t & 1) * 2 + hh) if t < 4 else 72 + hh
                e("v_cvt_pk_bf16_f32 %s, %s, %s" % (v(od), v(A_ + 2 * hh), v(A_ + 2 * hh + 1)))
            if t == 1: e("buffer_store_dwordx4 v[64:67], v20, %s, 0 offen" % s(S_OUT, 4))
            if t == 3: e("buffer_store_dwordx4 v[68:71], v20, %s, 0 offen offset:64" % s(S_OUT, 4))
        e("buffer_store_dwordx2 v[72:73], v21, %s, 0 offen offset:128" % s(S_OUT, 4))
        self.stamp()

    def finish(self):
        self.label("L_end")
        self.e("s_endpgm")

def build(opts):
    g = Gen(opts)
    g.prologue()
    stop = opts.get("stop", 5)
    g.p1()
    if stop >= 2: g.p2()
    if stop >= 3: g.p3()
    if stop >= 4: g.p4()
    if stop >= 5: g.p5()
    g.e("s_waitcnt vmcnt(0)")
    g.finish()
    body = g.finalize(2 if opts.get('nocheck') else True)
    hdr = open("cdna_kernels/%s.s.ref" % NAME).read().split("\n")
    head = [l for l in hdr if l.startswith(";") and ("Kernarg" in l or "offset" in l)]
    txt = "\n".join(head) + "\n; @launch grid=(256,1,1) block=(256,1,1) lds=163840\n"
    txt += '.amdgcn_target "amdgcn-amd-amdhsa--gfx950"\n.text\n.globl %s_kernel\n.p2align 8\n.type %s_kernel,@function\n%s_kernel:\n' % (NAME, NAME, NAME)
    txt += body + "\n"
    txt = txt.replace("CODE_Q", "16384")
    txt += """.section .rodata,"a"
.p2align 6
.amdhsa_kernel %s_kernel
  .amdhsa_next_free_vgpr 512
  .amdhsa_next_free_sgpr 100
  .amdhsa_accum_offset 256
  .amdhsa_group_segment_fixed_size 0
  .amdhsa_kernarg_size 72
  .amdhsa_user_sgpr_count 2
  .amdhsa_user_sgpr_kernarg_segment_ptr 1
  .amdhsa_system_sgpr_workgroup_id_x 1
  .amdhsa_float_denorm_mode_32 3
.end_amdhsa_kernel
""" % NAME
    return txt, g

if __name__ == "__main__":
    opts = {}
    out = sys.argv[1]
    for x in sys.argv[2:]:
        if "=" in x:
            k, val = x.split("="); opts[k] = int(val)
        else: opts[x] = 1
    txt, g = build(opts)
    open(out, "w").write(txt)
    print("lines", len(txt.split("\n")), "bytes", len(txt), "nops", g.nops)
```

```python
import sys, math, struct
from asmlib import Asm, v, a, s

NAME = 'sequential_preLN__sliding_block__dense_activation_silu__prompt'
M = "v_mfma_f32_16x16x32_bf16"

WS_FLAGS = 0x0
WS_STAT = 0x20000
WS_HS = 0x40000
WS_QKV = 0x100000
WS_O = 0x900000
WS_H = 0xC00000
WS_H1 = 0xF00000
WS_PW3 = 0x1500000
WS_PW4 = 0x1600000
WS_PW5 = 0x1800000
WS_ST = 0x1A00000
WS_SIZE = 0x1B00000
BIGOFF = 0x7F000000

def f2u(x):
    return struct.unpack("<I", struct.pack("<f", x))[0]

S_X, S_WQ, S_WO, S_W1, S_W2, S_OUT, S_WS, S_DBG = 4, 8, 12, 16, 20, 24, 28, 32
S_W = 36
S_M1, S_N1, S_M3, S_J3 = 37, 38, 39, 40
S_NONCE = 42
S_SOFF = 62
S_TMO = 63
S_STC = 80
S_STT = 82
S_ODD = 84
S_TI, S_NQ = 86, 87
S_B3, S_B4, S_B5 = 90, 91, 92
S_W1K, S_W3 = 93, 94
S_OST = 95
S_XCC, S_FAST = 98, 99

V_L, V_C, V_G = 1, 2, 3

class Gen(Asm):
    def __init__(self, opts):
        super().__init__()
        self.o = opts
        self.vmq = []
        self.nlab = 0
        self.nstamp = 0
        self.ntouch = 0
    def vm(self, text, tag=None):
        if tag in (("ost", "hst", "h1st") if self.o.get("fasth1", 1) else ("ost", "hst")) and self.o.get("fastp", 1):
            self.dual(text)
            self.vmq.append(tag); return
        self.e(text); self.vmq.append(tag)
    def dual(self, text):
        l1 = self.newlabel("DF"); l2 = self.newlabel("DJ")
        self.e("s_cmp_lg_u32 %s, 0" % s(S_FAST)); self.e("s_cbranch_scc1 %s" % l1)
        self.e(text); self.e("s_branch %s" % l2)
        self.label(l1)
        self.e(text.replace(" sc1", ""))
        self.label(l2)
    def vm_n(self, tag):
        idx = max(i for i, t in enumerate(self.vmq) if t == tag)
        n = len(self.vmq) - 1 - idx
        assert n <= 63, (tag, n)
        return n
    def vm_wait(self, tag, extra=""):
        self.e("s_waitcnt vmcnt(%d)%s" % (self.vm_n(tag), extra))
    def newlabel(self, p="L"):
        self.nlab += 1
        return "%s_%d" % (p, self.nlab)
    def stamp(self, idx=None, pre=None):
        if not self.o.get("stamps"): return
        i = self.nstamp if idx is None else idx
        if idx is None: self.nstamp += 1
        assert i < 32
        e = self.e
        if pre is not None:
            e("s_mov_b64 %s, %s" % (s(S_STT, 2), s(pre, 2)))
        else:
            e("%s %s" % ("s_memtime" if self.o.get("stamps") == 2 else "s_memrealtime", s(S_STT, 2)))
        e("s_waitcnt lgkmcnt(0)")
        e("v_mov_b32 v254, %s" % s(S_STT)); e("v_mov_b32 v255, %s" % s(S_STT + 1))
        e("s_lshl_b32 %s, s2, 2" % s(S_STC)); e("s_add_u32 %s, %s, %s" % (s(S_STC), s(S_STC), s(S_W)))
        e("s_lshl_b32 %s, %s, 8" % (s(S_STC), s(S_STC)))
        e("s_add_u32 %s, %s, 0x%x" % (s(S_STC), s(S_STC), WS_ST + i * 8))
        e("v_mov_b32 v253, %s" % s(S_STC))
        e("s_mov_b64 exec, 1")
        self.vm("buffer_store_dwordx2 v[254:255], v253, %s, 0 offen" % s(S_WS, 4), "stamp")
        e("s_mov_b64 exec, -1")

    def reduce4(self, x, tmp, op="v_add_f32"):
        e = self.e
        e("v_mov_b32 %s, %s" % (v(tmp), v(x)))
        e("v_permlane16_swap_b32 %s, %s" % (v(x), v(tmp)))
        e("%s %s, %s, %s" % (op, v(x), v(x), v(tmp)))
        e("v_mov_b32 %s, %s" % (v(tmp), v(x)))
        e("v_permlane32_swap_b32 %s, %s" % (v(x), v(tmp)))
        e("%s %s, %s, %s" % (op, v(x), v(x), v(tmp)))

    def nonce_issue(self, vr):
        self.e("v_mov_b32 %s, 0" % v(vr + 2))
        self.vm("buffer_load_dwordx2 %s, %s, %s, 0 offen sc1" % (v(vr, 2), v(vr + 2), s(S_DBG, 4)), "nonce")
    def nonce_get(self, vr):
        e = self.e
        self.vm_wait("nonce")
        l0 = self.newlabel("NL"); l1 = self.newlabel("ND")
        e("v_readfirstlane_b32 %s, %s" % (s(S_NONCE), v(vr)))
        e("v_readfirstlane_b32 %s, %s" % (s(S_NONCE + 1), v(vr + 1)))
        e("s_cmp_lg_u32 %s, 0" % s(S_NONCE))
        e("s_cbranch_scc1 %s" % l1)
        e("s_mov_b32 s44, 0")
        self.label(l0)
        e("buffer_load_dwordx2 %s, %s, %s, 0 offen sc1" % (v(vr, 2), v(vr + 2), s(S_DBG, 4)))
        e("s_waitcnt vmcnt(0)")
        e("v_readfirstlane_b32 %s, %s" % (s(S_NONCE), v(vr)))
        e("v_readfirstlane_b32 %s, %s" % (s(S_NONCE + 1), v(vr + 1)))
        e("s_add_u32 s44, s44, 1")
        e("s_cmp_gt_u32 s44, 20000")
        e("s_cbranch_scc1 %s" % l1)
        e("s_cmp_eq_u32 %s, 0" % s(S_NONCE))
        e("s_cbranch_scc1 %s" % l0)
        self.label(l1)
    def flag_set(self, phase, sidx, vt, checkwave=True):
        e = self.e
        l = self.newlabel("FS")
        if checkwave: e("s_cmp_lg_u32 %s, 0" % s(S_W)); e("s_cbranch_scc1 %s" % l)
        e("s_lshl_b32 s44, %s, 6" % s(sidx)); e("s_add_u32 s44, s44, 0x%x" % (WS_FLAGS + phase * 16384))
        e("v_mov_b32 %s, %s" % (v(vt), s(S_NONCE))); e("v_mov_b32 %s, %s" % (v(vt + 1), s(S_NONCE + 1)))
        if phase == 0:
            e("v_mov_b32 %s, %s" % (v(vt + 2), s(S_XCC))); e("v_mov_b32 %s, 0" % v(vt + 3)); e("v_mov_b32 %s, s44" % v(vt + 4))
            e("s_mov_b64 exec, 1")
            e("buffer_store_dwordx4 %s, %s, %s, 0 offen sc1" % (v(vt, 4), v(vt + 4), s(S_WS, 4)))
            e("s_mov_b64 exec, -1")
        else:
            e("v_mov_b32 %s, s44" % v(vt + 2))
            e("s_mov_b64 exec, 1")
            txt = "buffer_store_dwordx2 %s, %s, %s, 0 offen sc1" % (v(vt, 2), v(vt + 2), s(S_WS, 4))
            if self.o.get("fastp", 1): self.dual(txt)
            else: e(txt)
            e("s_mov_b64 exec, -1")
        self.label(l)
    def flag_poll(self, vaddr, vt, nloads=1, stride=0):
        e = self.e
        l0 = self.newlabel("PL"); l1 = self.newlabel("PD")
        e("s_mov_b32 s44, 0")
        self.label(l0)
        for k in range(nloads):
            e("buffer_load_dwordx2 %s, %s, %s, 0 offen offset:%d sc1" % (v(vt + 2 * k, 2), v(vaddr), s(S_WS, 4), k * stride))
        e("s_waitcnt vmcnt(0)")
        for k in range(nloads):
            e("v_cmp_eq_u32 %s, %s, %s" % (s(46 + 0, 2), s(S_NONCE), v(vt + 2 * k)))
            e("v_cmp_eq_u32 %s, %s, %s" % (s(48 + 0, 2), s(S_NONCE + 1), v(vt + 2 * k + 1)))
            e("s_and_b64 s[46:47], s[46:47], s[48:49]")
            if k == 0: e("s_mov_b64 s[50:51], s[46:47]")
            else: e("s_and_b64 s[50:51], s[50:51], s[46:47]")
        e("s_cmp_eq_u64 s[50:51], -1")
        e("s_cbranch_scc1 %s" % l1)
        e("s_add_u32 s44, s44, 1")
        e("s_cmp_gt_u32 s44, 20000")
        e("s_cbranch_scc0 %s" % l0)
        e("s_mov_b32 %s, 1" % s(S_TMO))
        self.label(l1)

    def srd(self, d, src, size):
        e = self.e
        e("s_mov_b32 %s, %s" % (s(d), s(src))); e("s_and_b32 %s, %s, 0xffff" % (s(d + 1), s(src + 1)))
        e("s_mov_b32 %s, 0x%x" % (s(d + 2), size)); e("s_mov_b32 %s, 0x20000" % s(d + 3))
    def prologue(self):
        e = self.e
        if self.o.get("stamps"): e("s_memrealtime s[96:97]")
        e("s_cmp_ge_u32 s2, 256")
        e("s_cbranch_scc1 L_end")
        e("s_load_dwordx16 s[64:79], s[0:1], 0")
        e("s_load_dwordx2 s[80:81], s[0:1], 64")
        e("v_and_b32 %s, 63, v0" % v(V_L))
        e("v_lshrrev_b32 v4, 6, v0")
        e("v_and_b32 %s, 15, %s" % (v(V_C), v(V_L)))
        e("v_lshrrev_b32 %s, 4, %s" % (v(V_G), v(V_L)))
        e("v_readfirstlane_b32 %s, v4" % s(S_W))
        e("s_and_b32 s3, s2, 7")
        e("s_lshr_b32 s41, s2, 3")
        e("s_lshr_b32 %s, s3, 1" % s(S_M1)); e("s_lshl_b32 %s, %s, 2" % (s(S_M1), s(S_M1)))
        e("s_lshr_b32 s62, s41, 3"); e("s_add_u32 %s, %s, s62" % (s(S_M1), s(S_M1)))
        e("s_and_b32 %s, s3, 1" % s(S_N1)); e("s_lshl_b32 %s, %s, 3" % (s(S_N1), s(S_N1)))
        e("s_and_b32 s62, s41, 7"); e("s_add_u32 %s, %s, s62" % (s(S_N1), s(S_N1)))
        e("s_lshl_b32 %s, s3, 1" % s(S_M3)); e("s_lshr_b32 s62, s41, 4"); e("s_add_u32 %s, %s, s62" % (s(S_M3), s(S_M3)))
        e("s_and_b32 %s, s41, 15" % s(S_J3))
        e("s_mov_b32 %s, 0" % s(S_TMO))
        e("s_getreg_b32 %s, hwreg(HW_REG_XCC_ID, 0, 4)" % s(S_XCC))
        e("s_mov_b32 %s, 0" % s(S_FAST))
        e("v_and_b32 v4, 1, %s" % v(V_G))
        e("v_cmp_eq_u32 %s, 1, v4" % s(S_ODD, 2))
    def prologue2(self):
        e = self.e
        self.srd(S_WO, 68, 640 * 640 * 2)
        self.srd(S_W1, 72, 640 * 1536 * 2)
        self.srd(S_W2, 74, 1536 * 640 * 2)
        self.srd(S_OUT, 76, 2048 * 640 * 2)

    def x_dma_setup(self, VX, t0, t1):
        e = self.e
        e("v_lshrrev_b32 %s, 3, %s" % (v(t0), v(V_L)))
        e("v_lshrrev_b32 %s, 1, %s" % (v(t1), v(t0)))
        e("v_xor_b32 %s, %s, %s" % (v(t1), v(t1), v(V_L))); e("v_and_b32 %s, 7, %s" % (v(t1), v(t1)))
        e("s_lshl_b32 s44, %s, 7" % s(S_M1)); e("s_lshl_b32 s45, %s, 5" % s(S_W)); e("s_add_u32 s44, s44, s45")
        e("v_add_u32 %s, s44, %s" % (v(t0), v(t0)))
        e("v_mul_u32_u24 %s, 1280, %s" % (v(t0), v(t0)))
        e("v_lshl_add_u32 %s, %s, 4, %s" % (v(VX), v(t1), v(t0)))
        e("v_xor_b32 %s, 4, %s" % (v(t1), v(t1)))
        e("v_lshl_add_u32 %s, %s, 4, %s" % (v(VX + 1), v(t1), v(t0)))
        e("v_add_u32 %s, %d, %s" % (v(VX + 1), 8 * 1280, v(VX + 1)))
    def x_frag_addr(self, VA, t0, base_const):
        e = self.e
        e("v_lshrrev_b32 %s, 1, %s" % (v(t0), v(V_C)))
        e("v_xor_b32 %s, %s, %s" % (v(t0), v(t0), v(V_G)))
        e("v_lshlrev_b32 %s, 4, %s" % (v(t0), v(t0)))
        e("v_lshl_add_u32 %s, %s, 7, %s" % (v(VA), v(V_C), v(t0)))
        e("v_xor_b32 %s, 64, %s" % (v(VA + 1), v(VA)))

    def p1_helper(self):
        e = self.e
        self.c("helper workgroup: LayerNorm statistics of x for token block m1")
        save = list(self.vmq); self.vmq = []
        VX, VA, T = 12, 14, 208
        self.x_dma_setup(VX, T, T + 1)
        self.x_frag_addr(VA, T, None)
        e("s_lshl_b32 s47, %s, 15" % s(S_W))
        e("v_add_u32 %s, s47, %s" % (v(VA), v(VA))); e("v_add_u32 %s, s47, %s" % (v(VA + 1), v(VA + 1)))
        def issue(sg):
            for i in range(4):
                e("s_add_u32 m0, s47, 0x%x" % ((sg % 8) * 4096 + i * 1024))
                e("s_mov_b32 %s, %d" % (s(S_SOFF), sg * 128 + (i >> 1) * 16 * 1280))
                self.vm("buffer_load_dwordx4 %s, %s, %s offen lds" % (v(VX + (i & 1)), s(S_X, 4), s(S_SOFF)), ("hx", sg))
        for sg in range(8): issue(sg)
        self.nonce_issue(16)
        for i in range(4): e("v_mov_b32 %s, 0x3f803f80" % v(20 + i))
        for i in range(16): e("v_mov_b32 %s, 0" % v(32 + i))
        for st in range(20):
            sg = st // 2
            if st % 2 == 0: self.vm_wait(("hx", sg))
            b = (st % 2) * 8
            for tt in range(2):
                e("ds_read_b128 %s, %s offset:%d" % (a(b + tt * 4, 4), v(VA + (st & 1)), (sg % 8) * 4096 + tt * 2048))
            e("s_waitcnt lgkmcnt(0)")
            if st % 2 == 1 and sg < 2: issue(sg + 8)
            for tt in range(2):
                e("%s %s, %s, %s, %s" % (M, v(32 + tt * 4, 4), a(b + tt * 4, 4), a(b + tt * 4, 4), v(32 + tt * 4, 4)))
                e("%s %s, %s, %s, %s" % (M, v(40 + tt * 4, 4), v(20, 4), a(b + tt * 4, 4), v(40 + tt * 4, 4)))
        self.nonce_get(16)
        e("v_and_b32 %s, 3, %s" % (v(T), v(V_C)))
        e("v_lshrrev_b32 %s, 2, %s" % (v(T + 1), v(V_C)))
        e("v_cmp_eq_u32 s[46:47], %s, %s" % (v(T + 1), v(V_G)))
        for tt in range(2):
            d = 32 + tt * 4
            for i in range(1, 4):
                e("v_cmp_eq_u32 vcc, %d, %s" % (i, v(T)))
                e("v_cndmask_b32 %s, %s, %s, vcc" % (v(d), v(d), v(d + i)))
            e("v_cndmask_b32 %s, 0, %s, s[46:47]" % (v(d), v(d)))
            self.reduce4(d, T + 2)
            sm = 40 + tt * 4
            e("v_mul_f32 %s, 0x%x, %s" % (v(sm), f2u(1.0 / 640), v(sm)))
            e("v_mul_f32 %s, 0x%x, %s" % (v(d), f2u(1.0 / 640), v(d)))
            e("v_fma_f32 %s, -%s, %s, %s" % (v(d), v(sm), v(sm), v(d)))
            e("v_max_f32 %s, 0, %s" % (v(d), v(d)))
            e("v_add_f32 %s, 0x%x, %s" % (v(d), f2u(1e-5), v(d)))
            e("v_rsq_f32 %s, %s" % (v(d), v(d)))
            o4 = 48 + tt * 4
            e("v_mov_b32 %s, %s" % (v(o4), v(sm))); e("v_mov_b32 %s, %s" % (v(o4 + 1), v(d)))
            e("v_mov_b32 %s, %s" % (v(o4 + 2), s(S_NONCE))); e("v_mov_b32 %s, %s" % (v(o4 + 3), s(S_NONCE + 1)))
        e("s_lshl_b32 s44, %s, 7" % s(S_M1)); e("s_lshl_b32 s45, %s, 5" % s(S_W)); e("s_add_u32 s44, s44, s45")
        e("v_add_u32 %s, s44, %s" % (v(T), v(V_C)))
        e("v_lshlrev_b32 %s, 4, %s" % (v(T), v(T)))
        e("v_add_u32 %s, 0x%x, %s" % (v(T), WS_STAT, v(T)))
        e("s_mov_b64 exec, 0xffff")
        for tt in range(2):
            e("buffer_store_dwordx4 %s, %s, %s, 0 offen offset:%d sc1" % (v(48 + tt * 4, 4), v(T), s(S_WS, 4), tt * 256))
        e("s_mov_b64 exec, -1")
        e("s_waitcnt vmcnt(0)")
        self.vmq = save

    def p1(self):
        e = self.e; o = self.o
        VT = 4
        VXA = 8
        VX = 10
        VWO = 12
        VPK = 13
        VONE = 20
        VCS = 24
        ACC = 32
        VST = 96
        VN = 112
        VPA = 124
        PKF = 116
        TMP = 208
        t0, t1, t2, t3 = TMP, TMP + 1, TMP + 2, TMP + 3
        acc = lambda i, tt: ACC + (i * 4 + tt) * 4
        PK_OFF = 131072
        CS_OFF = 131072 + 24576
        lab_h = self.newlabel("HELP"); lab_j = self.newlabel("P1J")
        self.c("P1: address setup (no pointers needed yet)")
        self.x_dma_setup(VX, t0, t1)
        e("s_lshr_b32 s44, %s, 1" % s(S_W)); e("s_lshl_b32 s44, s44, 3")
        e("v_and_b32 %s, 1, %s" % (v(t0), v(V_G))); e("v_and_b32 %s, 2, %s" % (v(t1), v(V_G)))
        e("v_lshl_or_b32 %s, %s, 1, %s" % (v(t0), v(t1), v(t0))); e("v_or_b32 %s, s44, %s" % (v(t0), v(t0)))
        e("v_xor_b32 %s, %s, %s" % (v(t0), v(t0), v(V_C)))
        e("s_lshl_b32 s45, %s, 2" % s(S_W)); e("v_add_u32 %s, s45, %s" % (v(t1), v(V_G)))
        e("v_mul_u32_u24 %s, 3840, %s" % (v(t1), v(t1)))
        e("v_lshl_add_u32 %s, %s, 4, %s" % (v(t1), v(t0), v(t1)))
        e("s_lshl_b32 s44, %s, 8" % s(S_N1)); e("v_add_u32 %s, s44, %s" % (v(VWO), v(t1)))
        e("s_lshl_b32 s47, %s, 10" % s(S_W))
        e("s_lshl_b32 s48, %s, 12" % s(S_W))
        e("s_waitcnt lgkmcnt(0)")
        self.srd(S_X, 64, 2048 * 640 * 2)
        self.srd(S_WQ, 66, 640 * 1920 * 2)
        self.srd(S_WS, 80, WS_SIZE)
        self.srd(S_DBG, 78, 256)
        l = self.newlabel("NP")
        e("s_lshl_b32 s44, s2, 2"); e("s_or_b32 s44, s44, %s" % s(S_W))
        e("s_cmp_lg_u32 s44, 0"); e("s_cbranch_scc1 %s" % l)
        e("s_memrealtime s[44:45]")
        e("s_waitcnt lgkmcnt(0)")
        e("s_or_b32 s44, s44, 1")
        e("v_mov_b32 v204, s44"); e("v_mov_b32 v205, s45"); e("v_mov_b32 v206, 0")
        e("s_mov_b64 exec, 1")
        e("buffer_store_dwordx2 v[204:205], v206, %s, 0 offen sc1" % s(S_DBG, 4))
        e("s_mov_b64 exec, -1")
        self.label(l)
        self.stamp(pre=96)
        self.stamp()
        e("s_cmp_eq_u32 %s, 15" % s(S_N1)); e("s_cbranch_scc1 %s" % lab_h)
        def dma_ops(st):
            ops = []
            sl = ((st // 2) % 4) * 32768
            for h in range(2):
                if o.get("xnoW") and st >= 2: continue
                ops.append((["s_add_u32 m0, s47, 0x%x" % (sl + (st & 1) * 8192 + h * 4096), "s_mov_b32 %s, 0x%x" % (s(S_SOFF), (32 * st + 16 * h) * 3840)],
                            "buffer_load_dwordx4 %s, %s, %s offen lds" % (v(VWO), s(S_WQ, 4), s(S_SOFF))))
            for i in range(2):
                if o.get("xnoX") and st >= 2: continue
                ii = (st & 1) * 2 + i
                ops.append((["s_add_u32 m0, s48, 0x%x" % (sl + 16384 + ii * 1024), "s_mov_b32 %s, %d" % (s(S_SOFF), (st // 2) * 128 + (ii >> 1) * 16 * 1280)],
                            "buffer_load_dwordx4 %s, %s, %s offen lds" % (v(VX + (ii & 1)), s(S_X, 4), s(S_SOFF))))
            return ops
        def issue_now(st):
            for su, ld in dma_ops(st):
                for x in su: e(x)
                self.vm(ld, ("st", st))
        issue_now(0)
        if o.get("pf1", 1):
            e("s_and_b32 s44, %s, 3" % s(S_M1)); e("s_mul_i32 s44, s44, %d" % (160 * 3840)); e("s_lshl_b32 s45, %s, 8" % s(S_N1)); e("s_add_u32 s44, s44, s45")
            e("s_lshl_b32 s45, %s, 6" % s(S_W)); e("v_add_u32 %s, s45, %s" % (v(t0), v(V_L)))
            e("v_lshrrev_b32 %s, 1, %s" % (v(t1), v(t0))); e("v_mul_u32_u24 %s, 3840, %s" % (v(t1), v(t1)))
            e("v_and_b32 %s, 1, %s" % (v(t2), v(t0))); e("v_lshl_add_u32 %s, %s, 7, %s" % (v(t1), v(t2), v(t1)))
            self.vm("buffer_load_dword v190, %s, %s, s44 offen" % (v(t1), s(S_WQ, 4)), "touch")
            lt = self.newlabel("TX"); lj = self.newlabel("TJ")
            e("s_cmp_lg_u32 %s, 0" % s(S_W)); e("s_cbranch_scc1 %s" % lt)
            e("v_add_u32 %s, %d, %s" % (v(t1), 128 * 3840, v(t1)))
            e("buffer_load_dword v191, %s, %s, s44 offen" % (v(t1), s(S_WQ, 4)))
            e("s_branch %s" % lj)
            self.label(lt)
            e("v_subrev_u32 %s, 64, %s" % (v(t0), v(t0))); e("v_min_u32 %s, 159, %s" % (v(t0), v(t0)))
            e("v_mul_u32_u24 %s, 6554, %s" % (v(t1), v(t0))); e("v_lshrrev_b32 %s, 16, %s" % (v(t1), v(t1)))
            e("v_mul_u32_u24 %s, 10, %s" % (v(t2), v(t1))); e("v_sub_u32 %s, %s, %s" % (v(t2), v(t0), v(t2)))
            e("s_and_b32 s44, %s, 7" % s(S_N1)); e("s_lshl_b32 s44, s44, 4"); e("s_lshl_b32 s45, %s, 7" % s(S_M1)); e("s_add_u32 s44, s44, s45")
            e("v_add_u32 %s, s44, %s" % (v(t1), v(t1))); e("v_mul_u32_u24 %s, 1280, %s" % (v(t1), v(t1)))
            e("v_lshl_add_u32 %s, %s, 7, %s" % (v(t1), v(t2), v(t1)))
            e("buffer_load_dword v187, %s, %s, 0 offen" % (v(t1), s(S_X, 4)))
            self.label(lj)
            self.vmq.append("touch")
        for st in range(1, 3): issue_now(st)
        if o.get("cpf", 1):
            e("s_getpc_b64 s[44:45]")
            self.label("L_pc")
            e("s_mov_b32 s50, L_end-L_pc")
            e("v_lshlrev_b32 %s, 7, %s" % (v(t0), v(V_L)))
            e("s_lshl_b32 s46, %s, 14" % s(S_W)); e("v_add_u32 %s, s46, %s" % (v(t0), v(t0)))
            for k in range(2):
                e("v_min_u32 %s, s50, %s" % (v(t1), v(t0)))
                self.vm("global_load_dword v%d, %s, s[44:45]" % (188 + k, v(t1)), "touch")
                if k == 0: e("v_add_u32 %s, 8192, %s" % (v(t0), v(t0)))
        self.stamp()
        self.prologue2()
        self.c("W tile / x fragment read addresses")
        e("v_lshrrev_b32 %s, 2, %s" % (v(t0), v(V_C)))
        e("v_and_b32 %s, 3, %s" % (v(t1), v(V_L)))
        e("v_and_b32 %s, 1, %s" % (v(t2), v(t0))); e("v_and_b32 %s, 2, %s" % (v(t3), v(t0)))
        e("v_lshl_or_b32 %s, %s, 1, %s" % (v(t2), v(t3), v(t2)))
        e("v_and_b32 %s, 1, %s" % (v(t3), v(V_G))); e("v_lshl_or_b32 %s, %s, 3, %s" % (v(t2), v(t3), v(t2)))
        e("v_lshl_add_u32 %s, %s, 3, %s" % (v(t0), v(V_G), v(t0))); e("v_lshlrev_b32 %s, 8, %s" % (v(t0), v(t0)))
        e("s_lshr_b32 s50, %s, 1" % s(S_W)); e("s_and_b32 s45, %s, 1" % s(S_W)); e("s_lshl_b32 s45, s45, 1")
        for i in range(4):
            if i % 2 == 0:
                e("s_xor_b32 s44, s50, %d" % (i >> 1)); e("s_add_u32 s44, s44, s45"); e("s_lshl_b32 s44, s44, 2")
                e("v_add_u32 %s, s44, %s" % (v(t3), v(t1))); e("v_xor_b32 %s, %s, %s" % (v(t3), v(t3), v(t2)))
                e("v_lshl_add_u32 %s, %s, 4, %s" % (v(t3 + 1), v(t3), v(t0)))
            e("v_and_b32 %s, 1, %s" % (v(t3), v(t1)))
            if i & 1: e("v_xor_b32 %s, 1, %s" % (v(t3), v(t3)))
            e("v_lshl_add_u32 %s, %s, 3, %s" % (v(VT + i), v(t3), v(t3 + 1)))
        self.x_frag_addr(VXA, t0, None)
        e("s_lshl_b32 s44, s50, 13"); e("s_add_u32 s44, s44, 16384")
        e("v_add_u32 %s, s44, %s" % (v(VXA), v(VXA))); e("v_add_u32 %s, s44, %s" % (v(VXA + 1), v(VXA + 1)))
        issue_now(3)
        for i in range(4): e("v_mov_b32 %s, 0x3f803f80" % v(VONE + i))
        self.c("pack set-up")
        PS = []
        pe = PS.append
        pe("s_mul_i32 s49, %s, 15" % s(S_M1)); pe("s_add_u32 s49, s49, %s" % s(S_N1))
        pe("s_cmp_lt_u32 s49, 80")
        pe("s_cselect_b32 s64, %s, %s" % (s(S_WO), s(S_W1))); pe("s_cselect_b32 s65, %s, %s" % (s(S_WO + 1), s(S_W1 + 1)))
        pe("s_cselect_b32 s66, %s, %s" % (s(S_WO + 2), s(S_W1 + 2))); pe("s_mov_b32 s67, 0x20000")
        pe("s_mov_b32 s72, 1280"); pe("s_cselect_b32 s72, s72, 3072")
        pe("s_cselect_b32 s73, 19, 23")
        pe("s_cselect_b32 s74, 2, 3")
        pe("s_cselect_b32 s75, 0, 80")
        pe("s_mov_b32 s76, 320"); pe("s_cselect_b32 s76, s76, 384")
        pe("s_cselect_b32 s77, 5, 6")
        pe("s_mov_b32 s78, 20")
        pe("s_mov_b32 s79, 0x%x" % WS_PW3); pe("s_cselect_b32 s79, s79, 0x%x" % WS_PW4)
        pe("s_sub_u32 s50, s49, s75"); pe("s_lshr_b32 s51, s50, s74")
        pe("s_lshl_b32 s52, 1, s74"); pe("s_sub_u32 s52, s52, 1"); pe("s_and_b32 s52, s50, s52")
        for i3 in range(3):
            pe("s_lshl_b32 s54, %s, 6" % s(S_W)); pe("s_add_u32 s54, s54, %d" % (256 * i3))
            pe("v_add_u32 %s, s54, %s" % (v(t0), v(V_L)))
            pe("v_mul_u32_u24 %s, 2731, %s" % (v(136 + i3), v(t0))); pe("v_lshrrev_b32 %s, 16, %s" % (v(136 + i3), v(136 + i3)))
            pe("v_mul_u32_u24 %s, 24, %s" % (v(t2), v(136 + i3))); pe("v_sub_u32 %s, %s, %s" % (v(139 + i3), v(t0), v(t2)))
        pe("v_lshrrev_b32 %s, 2, %s" % (v(t1), v(V_C))); pe("v_lshl_add_u32 %s, %s, 3, %s" % (v(t1), v(V_G), v(t1))); pe("v_mul_u32_u24 %s, 384, %s" % (v(t1), v(t1)))
        pe("v_and_b32 %s, 3, %s" % (v(t0), v(V_L)))
        pe("v_lshl_add_u32 v142, %s, 4, %s" % (v(t0), v(t1))); pe("v_lshl_add_u32 v143, %s, 3, %s" % (v(t0), v(t1)))
        pe("v_lshlrev_b32 v144, 4, %s" % v(V_L))
        pe("s_lshr_b32 s60, %s, 1" % s(S_W))
        pe("s_and_b32 s61, %s, 1" % s(S_W)); pe("s_mul_i32 s61, s61, 3")
        def pack_setup(blk, valid_s):
            pe("s_mul_i32 s53, s51, s72"); pe("s_lshl_b32 s53, s53, 5"); pe("s_mul_i32 s54, s52, s76"); pe("s_add_u32 s53, s53, s54")
            for i3 in range(3):
                pe("v_min_u32 %s, s73, %s" % (v(t2), v(139 + i3)))
                pe("v_mul_lo_u32 %s, %s, s72" % (v(t1), v(136 + i3)))
                pe("v_lshl_add_u32 %s, %s, 4, %s" % (v(t1), v(t2), v(t1)))
                pe("v_add_u32 %s, s53, %s" % (v(VPK + 3 * blk + i3), v(t1)))
            pe("s_lshl_b32 s57, s52, 1"); pe("s_add_u32 s57, s57, s60"); pe("s_mul_i32 s57, s57, s78"); pe("s_add_u32 s57, s57, s51")
            pe("s_mul_i32 s57, s57, s77"); pe("s_lshl_b32 s57, s57, 10"); pe("s_add_u32 s57, s57, s79")
            if valid_s is not None:
                pe("s_cmp_lt_u32 s49, %d" % valid_s); pe("s_cselect_b32 s57, s57, 0x%x" % BIGOFF)
            pe("s_mul_i32 s58, s60, s77"); pe("s_lshl_b32 s58, s58, 5"); pe("s_add_u32 s58, s58, %d" % (PK_OFF + blk * 12288))
            for i3 in range(3):
                pe("s_add_u32 s56, s61, %d" % i3)
                pe("s_lshr_b32 s54, s56, 1"); pe("s_lshl_b32 s54, s54, 6"); pe("s_and_b32 s55, s56, 1"); pe("s_lshl_b32 s55, s55, 3")
                pe("s_add_u32 s54, s54, s55"); pe("s_add_u32 s54, s54, s58")
                pe("s_lshl_b32 s55, s77, 3"); pe("s_add_u32 s55, s55, s56"); pe("s_cmp_eq_u32 s55, 44")
                pe("s_cselect_b64 s[68:69], -1, 0")
                pe("v_cndmask_b32 %s, v142, v143, s[68:69]" % v(t0))
                pe("v_add_u32 %s, s54, %s" % (v(VPA + 3 * blk + i3), v(t0)))
                pe("s_lshl_b32 s54, s56, 10"); pe("s_add_u32 s54, s54, s57"); pe("s_cmp_lt_u32 s56, s77"); pe("s_cselect_b32 s54, s54, 0x%x" % BIGOFF)
                pe("v_add_u32 %s, s54, v144" % v(VPA + 6 + 3 * blk + i3))
        pack_setup(0, None)
        for x in ("s_mov_b32 s72, 1280", "s_mov_b32 s73, 19", "s_mov_b32 s76, 320", "s_mov_b32 s77, 5", "s_mov_b32 s78, 48", "s_mov_b32 s79, 0x%x" % WS_PW5,
                  "s_lshr_b32 s51, s49, 2", "s_and_b32 s52, s49, 3"): pe(x)
        pack_setup(1, 192)
        self.stamp()
        self.c("P1 main loop")
        NS = 20
        def reads(st):
            b = (st % 2) * 32; sl = ((st // 2) % 2) * 32768
            pre = []
            if st % 8 == 4:
                pre = ["v_add_u32 %s, 0x10000, %s" % (v(r), v(r)) for r in (VT, VT + 1, VT + 2, VT + 3, VXA, VXA + 1)]
            elif st % 8 == 0 and st > 0:
                pre = ["v_subrev_u32 %s, 0x10000, %s" % (v(r), v(r)) for r in (VT, VT + 1, VT + 2, VT + 3, VXA, VXA + 1)]
            r = []
            for i in range(4):
                r.append("ds_read_b64_tr_b16 %s, %s offset:%d" % (a(b + i * 4, 2), v(VT + i), sl + (st & 1) * 8192))
                r.append("ds_read_b64_tr_b16 %s, %s offset:%d" % (a(b + i * 4 + 2, 2), v(VT + i), sl + (st & 1) * 8192 + 1024))
            for tt in range(4):
                r.append("ds_read_b128 %s, %s offset:%d" % (a(b + 16 + tt * 4, 4), v(VXA + (st & 1)), sl + tt * 2048))
            return pre, r
        self.vm_wait(("st", 1))
        e("s_barrier")
        pre, r = reads(0)
        for x in pre + r: e(x)
        pending_dma = [(su, ld, ("st", s2)) for s2 in range(4, 8) for su, ld in dma_ops(s2)]
        groups = []; cur = []
        for x in PS:
            cur.append(x)
            if len(cur) >= 6 and not x.startswith(("s_cmp", "s_cselect", "s_mov")): groups.append(cur); cur = []
        if cur: groups.append(cur)
        if o.get("xnopk"): groups = []
        for st in range(NS):
            b = (st % 2) * 32
            e("s_waitcnt lgkmcnt(0)")
            nxt = st + 1
            if nxt < NS and nxt % 2 == 0:
                if ("st", nxt + 1) in self.vmq: self.vm_wait(("st", nxt + 1))
                e("s_barrier")
                if o.get("fine"): self.stamp()
                for s2 in (nxt + 6, nxt + 7):
                    if s2 < NS: pending_dma += [(su, ld, ("st", s2)) for su, ld in dma_ops(s2)]
            if st == 7 and not o.get("xnopk"):
                pk = []
                for blk in range(2):
                    for i3 in range(3):
                        pk.append((["s_add_u32 m0, s47, 0x%x" % (PK_OFF + blk * 12288 + i3 * 4096), "s_nop 0"],
                                   "buffer_load_dwordx4 %s, %s, 0 offen lds" % (v(VPK + 3 * blk + i3), s(64 if blk == 0 else S_W2, 4)), "pk"))
                pending_dma = pk + pending_dma
            if st == 7 and not o.get('xnocs'): assert len(groups) <= 5, len(groups)
            if st == 7 and o.get('xnocs'):
                for gr in groups:
                    for x in gr: e(x)
                groups = []
            pre, r = reads(nxt) if nxt < NS else ([], [])
            pk_rd = st - 13 if 13 <= st < 19 and not o.get("xnopk") else None
            pk_st = st - 14 if 14 <= st < 20 and not o.get("xnopk") else None
            if pk_rd is not None:
                f = PKF + (st % 2) * 4
                r = r + ["ds_read_b64_tr_b16 %s, %s" % (v(f, 2), v(VPA + pk_rd)),
                         "ds_read_b64_tr_b16 %s, %s offset:%d" % (v(f + 2, 2), v(VPA + pk_rd), 4 * 384)]
            mf = []
            for i in range(4):
                for tt in range(4):
                    mf.append("%s %s, %s, %s, %s" % (M, v(acc(i, tt), 4), a(b + i * 4, 4), a(b + 16 + tt * 4, 4), v(acc(i, tt), 4) if st else "0"))
                if i < 2 and not o.get("xnocs"): mf.append("%s %s, %s, %s, %s" % (M, v(VCS + i * 4, 4), a(b + i * 4, 4), v(VONE, 4), v(VCS + i * 4, 4) if st else "0"))
            for x in pre: e(x)
            dpos = (1, 5, 10, 14) if st >= 4 else (0, 2, 4, 7, 9, 11, 13, 15)
            for n, m in enumerate(mf):
                if st >= 1 and n in (3, 6, 8, 12, 15, 17) and groups and not (n in dpos):
                    for x in groups.pop(0): e(x)
                dm = None
                if n in dpos and pending_dma:
                    dm = pending_dma.pop(0)
                    for x in dm[0]: e(x)
                e(m)
                if n < len(r): e(r[n])
                if dm: self.vm(dm[1], dm[2])
                if n == 8 and pk_st is not None:
                    f = PKF + ((st - 1) % 2) * 4
                    self.vm("buffer_store_dwordx4 %s, %s, %s, 0 offen sc1" % (v(f, 4), v(VPA + 6 + pk_st), s(S_WS, 4)), "pkst")
                if n == len(mf) - 2 and st == 15: self.nonce_issue(VN)
                if n == len(mf) - 2 and st == 17:
                    e("s_lshl_b32 s44, %s, 7" % s(S_M1)); e("s_lshr_b32 s45, %s, 1" % s(S_W)); e("s_lshl_b32 s45, s45, 6"); e("s_add_u32 s44, s44, s45")
                    e("v_add_u32 %s, s44, %s" % (v(t0), v(V_C))); e("v_lshlrev_b32 %s, 4, %s" % (v(t0), v(t0)))
                    e("v_add_u32 %s, 0x%x, %s" % (v(19), WS_STAT, v(t0)))
                    for tt in range(4):
                        self.vm("buffer_load_dwordx4 %s, %s, %s, 0 offen offset:%d sc1" % (v(VST + tt * 4, 4), v(19), s(S_WS, 4), tt * 256), "stat")
            assert st < NS - 1 or not pending_dma
        self.stamp()
        self.c("P1 epilogue")
        e("s_lshr_b32 s44, %s, 1" % s(S_W)); e("s_and_b32 s45, %s, 1" % s(S_W)); e("s_lshl_b32 s45, s45, 1")
        e("s_add_u32 s46, s44, s45")
        e("s_xor_b32 s44, s44, 1"); e("s_add_u32 s50, s44, s45")
        e("s_lshl_b32 s51, s46, 7"); e("s_add_u32 s51, s51, 0x%x" % CS_OFF)
        e("v_lshlrev_b32 %s, 4, %s" % (v(t0), v(V_G)))
        e("v_add_u32 %s, s51, %s" % (v(t1), v(t0)))
        e("v_cmp_eq_u32 vcc, 0, %s" % v(V_C))
        e("s_and_saveexec_b64 s[52:53], vcc")
        e("ds_write_b128 %s, %s" % (v(t1), v(VCS, 4)))
        e("ds_write_b128 %s, %s offset:64" % (v(t1), v(VCS + 4, 4)))
        e("s_mov_b64 exec, s[52:53]")
        e("s_mov_b32 s61, s46")
        self.nonce_get(VN)
        self.vm_wait("stat")
        l0 = self.newlabel("SR"); l1 = self.newlabel("SD")
        e("s_mov_b32 s44, 0")
        self.label(l0)
        e("s_mov_b64 s[52:53], -1")
        for tt in range(4):
            e("v_cmp_eq_u32 s[54:55], %s, %s" % (s(S_NONCE), v(VST + tt * 4 + 2)))
            e("v_cmp_eq_u32 s[56:57], %s, %s" % (s(S_NONCE + 1), v(VST + tt * 4 + 3)))
            e("s_and_b64 s[52:53], s[52:53], s[54:55]"); e("s_and_b64 s[52:53], s[52:53], s[56:57]")
        e("s_cmp_eq_u64 s[52:53], -1"); e("s_cbranch_scc1 %s" % l1)
        e("s_add_u32 s44, s44, 1"); e("s_cmp_gt_u32 s44, 20000"); e("s_cbranch_scc1 %s" % l1)
        for tt in range(4):
            e("buffer_load_dwordx4 %s, %s, %s, 0 offen offset:%d sc1" % (v(VST + tt * 4, 4), v(19), s(S_WS, 4), tt * 256))
        e("s_waitcnt vmcnt(0)")
        e("s_branch %s" % l0)
        self.label(l1)
        e("s_waitcnt lgkmcnt(0)")
        e("s_barrier")
        CSV = 146
        e("s_lshl_b32 s52, s50, 7"); e("s_add_u32 s52, s52, 0x%x" % CS_OFF)
        e("v_add_u32 %s, s52, %s" % (v(t1), v(t0)))
        e("ds_read_b128 %s, %s" % (v(CSV + 8, 4), v(t1)))
        e("ds_read_b128 %s, %s offset:64" % (v(CSV + 12, 4), v(t1)))
        for i in range(8): e("v_mov_b32 %s, %s" % (v(CSV + i), v(VCS + i)))
        qs = math.log2(math.e) / math.sqrt(20.0)
        e("s_cmp_lt_u32 %s, 5" % s(S_N1)); e("s_mov_b32 s53, 0x3f800000"); e("s_cselect_b32 s53, 0x%x, s53" % f2u(qs))
        for tt in range(4):
            e("v_mul_f32 %s, s53, %s" % (v(VST + tt * 4 + 1), v(VST + tt * 4 + 1)))
            e("v_xor_b32 %s, 0x80000000, %s" % (v(VST + tt * 4), v(VST + tt * 4)))
        e("v_lshlrev_b32 %s, 11, %s" % (v(t2), v(V_G))); e("v_add_u32 %s, %s, %s" % (v(t2), v(t2), v(V_C))); e("v_lshlrev_b32 %s, 4, %s" % (v(t2), v(t2)))
        e("s_lshl_b32 s54, %s, 7" % s(S_M1)); e("s_lshr_b32 s55, %s, 1" % s(S_W)); e("s_lshl_b32 s55, s55, 6"); e("s_add_u32 s54, s54, s55")
        e("s_lshl_b32 s55, %s, 4" % s(S_N1))
        for q, sp in ((0, 61), (1, 50)):
            e("s_lshl_b32 s56, %s, 2" % s(sp)); e("s_add_u32 s56, s56, s55"); e("s_lshl_b32 s56, s56, 11"); e("s_add_u32 s56, s56, s54")
            e("s_lshl_b32 s56, s56, 4"); e("s_add_u32 %s, s56, 0x%x" % (s(58 + q), WS_QKV))
        e("s_waitcnt lgkmcnt(0)")
        OUTR = 188
        n = 0
        for q in range(2):
            for tt in range(4):
                nm = VST + tt * 4
                P = []
                for hf in range(2):
                    i = 2 * q + hf; A_ = acc(i, tt)
                    for h in range(2):
                        e("v_pk_fma_f32 %s, %s, %s, %s op_sel_hi:[1,0,1]" % (v(A_ + 2 * h, 2), v(CSV + i * 4 + 2 * h, 2), v(nm, 2), v(A_ + 2 * h, 2)))
                    for h in range(2):
                        e("v_pk_mul_f32 %s, %s, %s op_sel:[0,1] op_sel_hi:[1,1]" % (v(A_ + 2 * h, 2), v(A_ + 2 * h, 2), v(nm, 2)))
                    e("v_cvt_pk_bf16_f32 %s, %s, %s" % (v(A_), v(A_), v(A_ + 1)))
                    e("v_cvt_pk_bf16_f32 %s, %s, %s" % (v(A_ + 1), v(A_ + 2), v(A_ + 3)))
                    P.append(A_)
                O4 = OUTR + (n % 4) * 4
                e("v_cndmask_b32 %s, %s, %s, %s" % (v(O4), v(P[0]), v(P[1]), s(S_ODD, 2)))
                e("v_cndmask_b32 %s, %s, %s, %s" % (v(O4 + 1), v(P[0] + 1), v(P[1] + 1), s(S_ODD, 2)))
                e("v_cndmask_b32 %s, %s, %s, %s" % (v(O4 + 2), v(P[1]), v(P[0]), s(S_ODD, 2)))
                e("v_cndmask_b32 %s, %s, %s, %s" % (v(O4 + 3), v(P[1] + 1), v(P[0] + 1), s(S_ODD, 2)))
                self.vm("buffer_store_dwordx4 %s, %s, %s, %s offen offset:%d sc1" % (v(O4, 4), v(t2), s(S_WS, 4), s(58 + q), tt * 256), "qkvst")
                n += 1
        e("s_branch %s" % lab_j)
        self.label(lab_h)
        self.prologue2()
        self.p1_helper()
        self.label(lab_j)
        self.stamp()
        e("s_barrier")
        e("s_lshl_b32 s89, %s, 4" % s(S_M1)); e("s_add_u32 s89, s89, %s" % s(S_N1))
        self.vmq = []

    def wait_all(self, phase, vt, barrier=True, allwaves=False):
        e = self.e
        l = self.newlabel("WA")
        if not allwaves:
            e("s_cmp_lg_u32 %s, 0" % s(S_W)); e("s_cbranch_scc1 %s" % l)
        e("v_lshlrev_b32 %s, 8, %s" % (v(vt), v(V_L)))
        if phase: e("v_add_u32 %s, 0x%x, %s" % (v(vt), WS_FLAGS + phase * 16384, v(vt)))
        self.flag_poll(vt, vt + 2, nloads=4, stride=64)
        self.label(l)
        if barrier: e("s_barrier")
    def poll_group(self, phase, vt):
        e = self.e
        e("s_lshl_b32 s52, %s, 10" % s(S_M3)); e("s_add_u32 s52, s52, 0x%x" % (WS_FLAGS + phase * 16384))
        e("v_lshlrev_b32 %s, 6, %s" % (v(vt), v(V_C)))
        e("v_add_u32 %s, s52, %s" % (v(vt), v(vt)))
        self.flag_poll(vt, vt + 2)
    def job4(self, sbase, blk, pos, tag, vl16=4):
        return (["s_add_u32 m0, %s, 0x%x" % (s(S_W1K), pos * 1024), "s_add_u32 %s, %s, 0x%x" % (s(S_SOFF), s(sbase), blk * 1024)],
                "buffer_load_dwordx4 %s, %s, %s offen sc1 lds" % (v(vl16), s(S_WS, 4), s(S_SOFF)), tag)
    def emit_job(self, j):
        for x in j[0]: self.e(x)
        self.vm(j[1], j[2])
    def dma3(self, sbase, blk0, pos0, njobs, tag, vl16=4):
        e = self.e
        e("s_sub_u32 s49, %s, 1024" % s(sbase))
        for k in range(njobs):
            e("s_add_u32 m0, %s, 0x%x" % (s(S_W3), (pos0 + 3 * k) * 1024))
            e("s_add_u32 %s, s49, 0x%x" % (s(S_SOFF), (blk0 + 3 * k) * 1024))
            self.vm("buffer_load_dwordx4 %s, %s, %s offen sc1 lds" % (v(vl16), s(S_WS, 4), s(S_SOFF)), tag)
    def group_flag_idx(self):
        self.e("s_lshl_b32 s52, %s, 4" % s(S_M3)); self.e("s_add_u32 s52, s52, %s" % s(S_J3))

    def p2(self):
        e = self.e; o = self.o
        KB, VB, BB, QB, OB = 0, 30720, 62080, 69632, 150 * 1024
        T = 200
        t0, t1, t2, t3 = T, T + 1, T + 2, T + 3
        VL16 = 4
        VKA = 5
        VVA = 8
        VMF, VML = 12, 16
        VQ = 20
        OA = 36
        SB = [56, 124]
        NEG = f2u(-1e30)
        self.c("P2 set-up")
        e("v_lshlrev_b32 %s, 4, %s" % (v(VL16), v(V_L)))
        e("s_lshl_b32 %s, %s, 10" % (s(S_W1K), s(S_W))); e("s_sub_u32 %s, %s, 1024" % (s(S_W3), s(S_W1K)))
        e("s_lshr_b32 %s, %s, 1" % (s(S_NQ), s(S_J3)))
        for sb, sk, sz, base in ((S_B3, S_NQ, 102400, WS_PW3), (S_B4, S_J3, 122880, WS_PW4), (S_B5, S_NQ, 245760, WS_PW5)):
            e("s_mul_i32 %s, %s, %d" % (s(sb), s(sk), sz)); e("s_add_u32 %s, %s, 0x%x" % (s(sb), s(sb), base)); e("s_add_u32 %s, %s, %s" % (s(sb), s(sb), s(S_W1K)))
        e("s_lshl_b32 %s, %s, 3" % (s(S_TI), s(S_M3))); e("s_and_b32 s52, %s, 1" % s(S_J3)); e("s_lshl_b32 s52, s52, 2")
        e("s_add_u32 %s, %s, s52" % (s(S_TI), s(S_TI))); e("s_add_u32 %s, %s, %s" % (s(S_TI), s(S_TI), s(S_W)))
        e("s_lshl_b32 s52, %s, 7" % s(S_M3)); e("s_sub_i32 s52, 256, s52")
        e("v_mov_b32 %s, 0xf149" % v(t0 + 4))
        e("v_mov_b32 %s, 0" % v(t0 + 9)); e("v_mov_b32 %s, 0x3f80" % v(t0 + 10)); e("v_mov_b32 %s, 0" % v(t0 + 11))
        e("v_cmp_gt_i32 vcc, s52, v0")
        e("v_cndmask_b32 %s, 0, %s, vcc" % (v(t0 + 8), v(t0 + 4)))
        e("v_lshlrev_b32 %s, 4, v0" % v(t1)); e("v_add_u32 %s, %d, %s" % (v(t1), BB, v(t1)))
        e("ds_write_b128 %s, %s" % (v(t1), v(t0 + 8, 4)))
        e("v_add_u32 %s, 256, v0" % v(t2))
        e("v_cmp_gt_i32 vcc, s52, %s" % v(t2))
        e("v_cndmask_b32 %s, 0, %s, vcc" % (v(t0 + 12), v(t0 + 4)))
        e("v_mov_b32 %s, 0" % v(t0 + 13)); e("v_mov_b32 %s, 0x3f80" % v(t0 + 14)); e("v_mov_b32 %s, 0" % v(t0 + 15))
        e("v_cmp_gt_u32 vcc, 160, v0")
        e("s_and_saveexec_b64 s[54:55], vcc")
        e("ds_write_b128 %s, %s offset:4096" % (v(t1), v(t0 + 12, 4)))
        e("s_mov_b64 exec, s[54:55]")
        e("s_mul_i32 s55, %s, 5" % s(S_J3))
        e("s_lshl_b32 s56, %s, 7" % s(S_M3)); e("s_sub_i32 s56, s56, 256")
        e("s_cmp_ge_u32 %s, 2" % s(S_W))
        e("s_cselect_b32 s57, -2, 4")
        e("s_cselect_b32 s70, 26624, 0")
        e("s_cselect_b32 s71, 128, 0")
        e("s_add_i32 s57, s57, %s" % s(S_W))
        for k, (reg, add) in enumerate(((S_W, 0), (57, 0), (S_W, 2))):
            e("s_add_i32 s58, %s, %d" % (s(reg), add)); e("s_lshl_b32 s58, s58, 6"); e("s_add_i32 s58, s58, s56"); e("s_cmp_lt_i32 s58, 0")
            e("s_cselect_b32 %s, 0x%x, 0" % (s(64 + k), BIGOFF))
        e("s_add_u32 s65, s65, s70")
        e("s_lshl_b32 s56, s56, 4"); e("s_add_u32 s56, s56, %s" % s(S_W1K))
        e("s_add_u32 s58, s55, 80"); e("s_lshl_b32 s58, s58, 15"); e("s_add_u32 s58, s58, 0x%x" % WS_QKV); e("s_add_u32 s68, s58, s56")
        e("s_add_u32 s69, s68, 0x%x" % (80 << 15))
        e("s_lshr_b32 s58, %s, 1" % s(S_W)); e("s_add_u32 s58, s58, s55"); e("s_lshl_b32 s58, s58, 15"); e("s_lshl_b32 s59, %s, 11" % s(S_M3)); e("s_add_u32 s58, s58, s59")
        e("s_and_b32 s59, %s, 1" % s(S_W)); e("s_lshl_b32 s59, s59, 10"); e("s_add_u32 s58, s58, s59"); e("s_add_u32 s72, s58, 0x%x" % WS_QKV)
        e("v_lshrrev_b32 %s, 3, %s" % (v(t0), v(V_L))); e("v_and_b32 %s, 3, %s" % (v(t0), v(t0))); e("v_min_u32 %s, 2, %s" % (v(t0), v(t0)))
        e("v_lshrrev_b32 %s, 1, %s" % (v(t1), v(V_L))); e("v_and_b32 %s, 3, %s" % (v(t1), v(t1))); e("v_min_u32 %s, 2, %s" % (v(t1), v(t1)))
        e("v_and_b32 %s, 1, %s" % (v(t2), v(V_L))); e("v_lshlrev_b32 %s, 2, %s" % (v(t2), v(t2)))
        e("v_mul_u32_u24 %s, 80, %s" % (v(t0), v(t0))); e("v_add3_u32 %s, %s, %s, s55" % (v(t0), v(t0), v(t2))); e("v_lshrrev_b32 %s, 4, %s" % (v(t0), v(t0)))
        e("s_sub_i32 s58, %s, 2" % s(S_M3)); e("v_add_u32 %s, s58, %s" % (v(t1), v(t1))); e("v_max_i32 %s, 0, %s" % (v(t1), v(t1)))
        e("v_lshl_add_u32 %s, %s, 4, %s" % (v(t0), v(t1), v(t0))); e("v_lshlrev_b32 %s, 6, %s" % (v(T + 19), v(t0)))
        self.c("fragment addresses and masks")
        e("s_lshl_b32 s57, %s, 5" % s(S_W)); e("v_add_u32 %s, s57, %s" % (v(t0), v(V_C))); e("v_lshlrev_b32 %s, 4, %s" % (v(t0), v(t0)))
        e("v_cmp_eq_u32 s[58:59], 3, %s" % v(V_G)); e("v_cmp_eq_u32 s[60:61], 2, %s" % v(V_G))
        e("v_mul_u32_u24 %s, 6144, %s" % (v(t1), v(V_G)))
        e("v_mov_b32 %s, %d" % (v(t2), BB))
        e("v_cndmask_b32 %s, %s, %s, s[58:59]" % (v(VKA), v(t1), v(t2)))
        e("v_add_u32 %s, %d, %s" % (v(t3), 3 * 6144, v(t1)))
        e("v_mov_b32 %s, %d" % (v(t0 + 4), 2 * 6144))
        e("v_cndmask_b32 %s, %s, %s, s[60:61]" % (v(t3), v(t3), v(t0 + 4)))
        e("v_cndmask_b32 %s, %s, %s, s[58:59]" % (v(VKA + 1), v(t3), v(t2)))
        e("v_add_u32 %s, %s, %s" % (v(VKA), v(VKA), v(t0))); e("v_add_u32 %s, %s, %s" % (v(VKA + 1), v(VKA + 1), v(t0)))
        VQA = 52
        e("v_lshlrev_b32 %s, 11, %s" % (v(t1), v(V_G)))
        e("v_cndmask_b32 %s, %s, 0, s[58:59]" % (v(VQA), v(t1)))
        e("v_add_u32 %s, %d, %s" % (v(t3), 3 * 2048, v(t1))); e("v_mov_b32 %s, %d" % (v(t0 + 4), 2 * 2048))
        e("v_cndmask_b32 %s, %s, %s, s[60:61]" % (v(t3), v(t3), v(t0 + 4)))
        e("v_cndmask_b32 %s, %s, 0, s[58:59]" % (v(VQA + 1), v(t3)))
        e("v_add_u32 %s, %d, %s" % (v(t3), QB, v(t0)))
        for h in range(2): e("v_add_u32 %s, %s, %s" % (v(VQA + h), v(VQA + h), v(t3)))
        e("v_lshrrev_b32 %s, 2, %s" % (v(t0), v(V_C))); e("v_lshl_add_u32 %s, %s, 2, %s" % (v(t0), v(V_G), v(t0)))
        e("v_add_u32 %s, s57, %s" % (v(t0), v(t0))); e("v_lshlrev_b32 %s, 4, %s" % (v(t0), v(t0)))
        e("v_and_b32 %s, 3, %s" % (v(t1), v(V_L)))
        for h in range(2):
            e("v_add_u32 %s, %d, %s" % (v(t2), 5 * h, v(t1)))
            e("v_lshrrev_b32 %s, 1, %s" % (v(t3), v(t2))); e("v_mul_u32_u24 %s, 6272, %s" % (v(t3), v(t3)))
            e("v_and_b32 %s, 1, %s" % (v(t2), v(t2))); e("v_lshl_add_u32 %s, %s, 3, %s" % (v(t3), v(t2), v(t3)))
            e("v_add_u32 %s, %s, %s" % (v(VVA + 2 * h), v(t3), v(t0)))
            e("v_add_u32 %s, %d, %s" % (v(VVA + 2 * h), VB, v(VVA + 2 * h)))
            X = 5 * h + 4
            e("v_and_b32 %s, 1, %s" % (v(t2), v(t1))); e("v_cmp_eq_u32 vcc, 1, %s" % v(t2))
            e("v_mov_b32 %s, %d" % (v(t3), VB + (X >> 1) * 6272 + (X & 1) * 8)); e("v_mov_b32 %s, %d" % (v(t0 + 4), BB + 8))
            e("v_cndmask_b32 %s, %s, %s, vcc" % (v(t3), v(t3), v(t0 + 4)))
            e("v_add_u32 %s, %s, %s" % (v(VVA + 2 * h + 1), v(t3), v(t0)))
        e("v_lshlrev_b32 %s, 2, %s" % (v(t0), v(V_G))); e("v_mov_b32 %s, 0x%x" % (v(t1), NEG))
        for i in range(4):
            e("v_add_u32 %s, %d, %s" % (v(t2), i, v(t0)))
            e("v_cmp_gt_u32 vcc, %s, %s" % (v(t2), v(V_C)))
            e("v_cndmask_b32 %s, %s, 0, vcc" % (v(VMF + i), v(t1)))
            e("v_cndmask_b32 %s, 0, %s, vcc" % (v(VML + i), v(t1)))
        VOW = 54
        e("s_mul_i32 %s, %s, 2560" % (s(S_OST), s(S_W))); e("s_add_u32 %s, %s, %d" % (s(S_OST), s(S_OST), OB))
        e("v_mul_u32_u24 %s, 80, %s" % (v(VOW), v(V_C))); e("v_lshl_add_u32 %s, %s, 3, %s" % (v(VOW), v(V_G), v(VOW))); e("v_add_u32 %s, %s, %s" % (v(VOW), s(S_OST), v(VOW)))
        e("s_waitcnt vmcnt(0) lgkmcnt(0)")
        e("s_barrier")
        self.flag_set(0, 89, T + 20)
        self.stamp()
        lw = self.newlabel("WD")
        e("s_cmp_lg_u32 %s, 0" % s(S_W)); e("s_cbranch_scc1 %s" % lw)
        self.flag_poll(T + 19, T + 22)
        self.label(lw)
        e("s_barrier")
        self.stamp()
        self.vmq = []
        def kvjob(base_s, ldsb, pitch, u, pat, tag):
            g = u * 32768 + (0, 4096, 32768 + 2048)[pat]
            l = ldsb + u * pitch + (0, 4096, pitch + 2048)[pat]
            e("s_add_u32 m0, %s, %d" % (s(S_W1K), l))
            if pat == 1 and pitch != 6144: e("s_add_u32 m0, m0, s71")
            e("s_add_u32 %s, %s, %s" % (s(S_SOFF), s(base_s), s(64 + pat)))
            if g: e("s_add_u32 %s, %s, %d" % (s(S_SOFF), s(S_SOFF), g))
            self.vm("buffer_load_dwordx4 %s, %s, %s offen sc1 lds" % (v(VL16), s(S_WS, 4), s(S_SOFF)), tag)
        def halfjob(base_s, ldsb, pitch, u, tag):
            e("s_cmp_ge_u32 %s, 2" % s(S_W))
            e("s_cselect_b32 s58, %d, %d" % (156 * 1024 - 2048, 0) if False else "s_mov_b32 s58, %d" % (ldsb + u * pitch + 4096))
            e("s_cselect_b32 s58, %d, s58" % (76 * 1024))
            e("s_add_u32 m0, %s, s58" % s(S_W1K))
            e("s_cselect_b32 s58, 0x%x, s65" % BIGOFF if False else "s_cmp_ge_u32 %s, 2" % s(S_W))
            e("s_cselect_b32 s58, 0x%x, s65" % BIGOFF)
            e("s_add_u32 %s, %s, s58" % (s(S_SOFF), s(base_s))); e("s_add_u32 %s, %s, %d" % (s(S_SOFF), s(S_SOFF), u * 32768 + 4096))
            self.vm("buffer_load_dwordx4 %s, %s, %s offen sc1 lds" % (v(VL16), s(S_WS, 4), s(S_SOFF)), tag)
        def qjob(u0, tag):
            e("s_add_u32 m0, %s, %d" % (s(S_W1K), QB + u0 * 2048))
            if u0 == 4:
                e("s_cmp_ge_u32 %s, 2" % s(S_W)); e("s_cselect_b32 s58, 0x%x, 0" % BIGOFF); e("s_add_u32 %s, s72, s58" % s(S_SOFF))
                e("s_add_u32 %s, %s, %d" % (s(S_SOFF), s(S_SOFF), u0 * 32768))
            else:
                e("s_add_u32 %s, s72, %d" % (s(S_SOFF), u0 * 32768))
            self.vm("buffer_load_dwordx4 %s, %s, %s offen sc1 lds" % (v(VL16), s(S_WS, 4), s(S_SOFF)), tag)
        for u in (0, 2):
            for pat in range(3): kvjob(68, KB, 6144, u, pat, "kq")
            qjob(u, "kq")
        qjob(4, "kq")
        for u in (0, 2):
            for pat in range(3): kvjob(69, VB, 6272, u, pat, "rest")
        for base_s, ldsb, pitch in ((68, KB, 6144), (69, VB, 6272)):
            kvjob(base_s, ldsb, pitch, 4, 0, "rest"); halfjob(base_s, ldsb, pitch, 4, "rest")
        lw = self.newlabel("FP")
        e("v_lshlrev_b32 %s, 8, %s" % (v(T + 20), v(V_L)))
        e("s_lshr_b32 s58, %s, 1" % s(S_M3)); e("s_lshr_b32 s59, s58, 1"); e("s_lshl_b32 s59, s59, 6"); e("s_and_b32 s58, s58, 1"); e("s_lshl_b32 s58, s58, 3"); e("s_add_u32 s59, s59, s58")
        e("s_and_b32 s58, %s, 1" % s(S_M3)); e("s_lshl_b32 s58, s58, 5"); e("s_add_u32 s59, s59, s58")
        e("v_lshrrev_b32 %s, 3, %s" % (v(T + 18), v(V_C))); e("v_lshlrev_b32 %s, 4, %s" % (v(T + 18), v(T + 18)))
        e("v_and_b32 %s, 7, %s" % (v(T + 30), v(V_C))); e("v_add3_u32 %s, %s, %s, s59" % (v(T + 18), v(T + 18), v(T + 30)))
        e("v_lshlrev_b32 %s, 6, %s" % (v(T + 18), v(T + 18)))
        e("s_cmp_lg_u32 %s, 0" % s(S_W)); e("s_cbranch_scc1 %s" % lw)
        for k in range(4):
            e("buffer_load_dwordx2 %s, %s, %s, 0 offen offset:%d sc1" % (v(T + 22 + 2 * k, 2), v(T + 20), s(S_WS, 4), k * 64))
        e("buffer_load_dwordx4 %s, %s, %s, 0 offen sc1" % (v(T + 32, 4), v(T + 18), s(S_WS, 4)))
        e("s_waitcnt vmcnt(15)")
        e("s_branch %s_j" % lw)
        self.label(lw)
        self.vm_wait("kq")
        self.label(lw + "_j")
        e("s_waitcnt lgkmcnt(0)")
        e("s_barrier")
        self.stamp()
        self.c("fragment loads")
        KF = [0, 72]; VF = [144, 0]
        def k_reads(h): return ["ds_read_b128 %s, %s offset:%d" % (a(KF[h] + B * 4, 4), v(VKA + h), B * 256) for B in range(18)]
        def v_reads(h):
            r = []
            for p in range(9):
                for dt in range(2):
                    d = VF[h] + (p * 2 + dt) * 4
                    r.append("ds_read_b64_tr_b16 %s, %s offset:%d" % (a(d, 2), v(VVA + 2 * h + dt), p * 512))
                    r.append("ds_read_b64_tr_b16 %s, %s offset:%d" % (a(d + 2, 2), v(VVA + 2 * h + dt), p * 512 + 256))
            return r
        for h in range(2):
            for qs in range(2):
                e("ds_read_b128 %s, %s offset:%d" % (v(VQ + (h * 2 + qs) * 4, 4), v(VQA + h), qs * 256))
        for x in k_reads(0)[:11]: e(x)
        e("v_cmp_eq_u32 s[58:59], 3, %s" % v(V_G)); e("v_cmp_eq_u32 s[60:61], 2, %s" % v(V_G))
        e("s_waitcnt lgkmcnt(11)")
        e("v_mov_b32 %s, 0x3f80" % v(t1))
        for h in range(2):
            for qs in range(2):
                q = VQ + (h * 2 + qs) * 4
                z = (2, 3) if h == 0 else (0, 1)
                for i in z: e("v_cndmask_b32 %s, %s, 0, s[60:61]" % (v(q + i), v(q + i)))
                e("v_cndmask_b32 %s, %s, %s, s[58:59]" % (v(q), v(q), v(t1)))
                for i in range(1, 4): e("v_cndmask_b32 %s, %s, 0, s[58:59]" % (v(q + i), v(q + i)))
        e("s_waitcnt lgkmcnt(8)")
        for x in k_reads(0)[11:]: e(x)
        tasks = [(0, 0), (0, 1), (1, 0), (1, 1)]
        def A(ti):
            h, qs = tasks[ti]; S = SB[ti % 2]; r = []
            for b in range(17):
                C = v(VMF, 4) if b == 0 else (v(VML, 4) if b == 16 else "0")
                r.append("%s %s, %s, %s, %s" % (M, v(S + b * 4, 4), a(KF[h] + (qs + b) * 4, 4), v(VQ + (h * 2 + qs) * 4, 4), C))
            return r
        MX = T + 8
        def Bst(ti):
            S = SB[ti % 2]
            vals = [S + i for i in range(68)]
            ins = []
            for c4 in range(4):
                ins.append("v_max3_f32 %s, %s, %s, %s" % (v(MX + c4), v(vals[3 * c4]), v(vals[3 * c4 + 1]), v(vals[3 * c4 + 2])))
            k = 12; ch = 0
            while k < 68:
                ins.append("v_max3_f32 %s, %s, %s, %s" % (v(MX + ch), v(MX + ch), v(vals[k]), v(vals[k + 1]))); k += 2; ch = (ch + 1) % 4
            groups = [ins[i:i + 2] for i in range(0, len(ins), 2)]
            tail = ["v_max3_f32 %s, %s, %s, %s" % (v(MX), v(MX), v(MX + 1), v(MX + 2)), "v_max_f32 %s, %s, %s" % (v(MX), v(MX), v(MX + 3)),
                    "v_mov_b32 %s, %s" % (v(MX + 1), v(MX)), "s_nop 0", "v_permlane16_swap_b32 %s, %s" % (v(MX), v(MX + 1)), "v_max_f32 %s, %s, %s" % (v(MX), v(MX), v(MX + 1)),
                    "v_mov_b32 %s, %s" % (v(MX + 1), v(MX)), "s_nop 0", "v_permlane32_swap_b32 %s, %s" % (v(MX), v(MX + 1)), "v_max_f32 %s, %s, %s" % (v(MX + 4), v(MX), v(MX + 1))]
            return groups, tail
        def Cst(ti):
            h, qs = tasks[ti]; S = SB[ti % 2]
            def adds(b):
                q = S + b * 4
                return ["v_pk_add_f32 %s, %s, %s op_sel_hi:[1,0] neg_lo:[0,1] neg_hi:[0,1]" % (v(q + 2 * hh, 2), v(q + 2 * hh, 2), v(MX + 4, 2)) for hh in range(2)]
            def cvts(b):
                q = S + b * 4; B = qs + b; r = []
                if B % 2 == 0:
                    r.append("v_cvt_pk_bf16_f32 %s, %s, %s" % (v(q), v(q), v(q + 1)))
                    r.append("v_cvt_pk_bf16_f32 %s, %s, %s" % (v(q + 1), v(q + 2), v(q + 3)))
                    if B == 16 and qs == 0: r += ["v_mov_b32 %s, 0" % v(q + 2), "v_mov_b32 %s, 0" % v(q + 3)]
                elif b == 0:
                    r.append("v_cvt_pk_bf16_f32 %s, %s, %s" % (v(q + 3), v(q + 2), v(q + 3)))
                    r.append("v_cvt_pk_bf16_f32 %s, %s, %s" % (v(q + 2), v(q), v(q + 1)))
                    r += ["v_mov_b32 %s, 0" % v(q), "v_mov_b32 %s, 0" % v(q + 1)]
                else:
                    r.append("v_cvt_pk_bf16_f32 %s, %s, %s" % (v(q - 2), v(q), v(q + 1)))
                    r.append("v_cvt_pk_bf16_f32 %s, %s, %s" % (v(q - 1), v(q + 2), v(q + 3)))
                return r
            head = adds(0)
            groups = []
            for b in range(17):
                q = S + b * 4
                groups.append(["v_exp_f32 %s, %s" % (v(q + i), v(q + i)) for i in range(4)] + (adds(b + 1) if b < 16 else []) + cvts(b))
            return head, groups
        def pfrag(ti, p):
            h, qs = tasks[ti]; S = SB[ti % 2]
            if qs == 0: return S + (2 * p) * 4
            return S + (0 if p == 0 else (2 * p - 1)) * 4
        def D(ti):
            h, qs = tasks[ti]; r = []
            for p in range(9):
                for dt in range(2):
                    d = OA + (ti % 2) * 8 + dt * 4
                    r.append("%s %s, %s, %s, %s" % (M, v(d, 4), a(VF[h] + (p * 2 + dt) * 4, 4), v(pfrag(ti, p), 4), v(d, 4) if p else "0"))
            return r
        def E(ti):
            h, qs = tasks[ti]; d = OA + (ti % 2) * 8; L = T + 14; r = []
            r += ["v_mov_b32 %s, %s" % (v(L), v(d + 4)), "v_mov_b32 %s, %s" % (v(L + 1), v(d + 4)),
                  "v_permlane16_swap_b32 %s, %s" % (v(L), v(L + 1)), "v_rcp_f32 %s, %s" % (v(L + 2), v(L + 1))]
            for hh in range(2):
                r.append("v_pk_mul_f32 %s, %s, %s op_sel_hi:[1,0]" % (v(d + 2 * hh, 2), v(d + 2 * hh, 2), v(L + 2, 2)))
                r.append("v_pk_mul_f32 %s, %s, %s op_sel_hi:[1,0]" % (v(d + 4 + 2 * hh, 2), v(d + 4 + 2 * hh, 2), v(L + 2, 2)))
            r += ["v_cvt_pk_bf16_f32 %s, %s, %s" % (v(d), v(d), v(d + 1)), "v_cvt_pk_bf16_f32 %s, %s, %s" % (v(d + 1), v(d + 2), v(d + 3)),
                  "v_cvt_pk_bf16_f32 %s, %s, %s" % (v(d + 4), v(d + 4), v(d + 5)), "v_cvt_pk_bf16_f32 %s, %s, %s" % (v(d + 5), v(d + 6), v(d + 7)),
                  "ds_write_b64 %s, %s offset:%d" % (v(VOW), v(d, 2), qs * 1280 + h * 40),
                  "s_mov_b64 exec, 0xffff",
                  "ds_write_b64 %s, %s offset:%d" % (v(VOW), v(d + 4, 2), qs * 1280 + h * 40 + 32),
                  "s_mov_b64 exec, -1"]
            return r
        def stage(ti, mB, mC, lds, jobs, mid=None):
            groups, tail = Bst(ti)
            mB = list(mB); mC = list(mC); lds = list(lds); jobs = list(jobs); njobs = len(jobs)
            for gi, gr in enumerate(groups):
                if mB: e(mB.pop(0))
                for x in gr: e(x)
            for x in mB: e(x)
            for x in tail: e(x)
            if mid: mid()
            head, cg = Cst(ti)
            for x in head: e(x)
            per = (len(lds) + 16) // 17
            for b, gr in enumerate(cg):
                if mC: e(mC.pop(0))
                jb = None
                if jobs and (b * njobs) // 17 != ((b + 1) * njobs) // 17:
                    jb = jobs.pop(0)
                    for x in jb[0]: e(x)
                for x in gr[:4]: e(x)
                if lds: e("s_waitcnt lgkmcnt(%d)" % (15 - per))
                for _ in range(per):
                    if lds: e(lds.pop(0))
                for x in gr[4:]: e(x)
                if jb: self.vm(jb[1], jb[2])
            for x in mC: e(x)
            for x in lds: e(x)
            for jb in jobs: self.emit_job(jb)
        W0 = ["s_waitcnt lgkmcnt(0)"]
        def chunked(r):
            out = []
            return list(r)
        wo_a = [self.job4(S_B3, 4 * k, 80 + 4 * k, "w3a") for k in range(17)]
        wo_b = [self.job4(S_B3, 68 + 4 * k, 4 * k, "w3b") for k in range(8)]
        w1_a = [self.job4(S_B4, 4 * k, 32 + 4 * k, "w4a") for k in range(12)]
        def touch(sbase, first_blk, n8k, who, nshare):
            r = []
            for k in range((n8k + 3) // 4):
                su = ["s_mul_i32 s58, %s, %d" % (s(who), n8k * 8192), "s_add_u32 s58, s58, %s" % s(sbase), "s_mul_i32 s59, %s, 7168" % s(S_W),
                      "s_add_u32 s58, s58, s59", "s_add_u32 %s, s58, %d" % (s(S_SOFF), first_blk * 1024 + k * 32768)]
                r.append((su, "buffer_load_dword v%d, v198, %s, %s offen" % (192 + (self.ntouch + k) % 6, s(S_WS, 4), s(S_SOFF)), "touch"))
            self.ntouch += (n8k + 3) // 4
            return r
        e("v_lshlrev_b32 v198, 7, %s" % v(V_L))
        e("s_and_b32 s73, %s, 1" % s(S_M3))
        e("s_lshl_b32 s74, s73, 1"); e("s_and_b32 s58, %s, 1" % s(S_J3)); e("s_add_u32 s74, s74, s58")
        e("s_mul_i32 s75, s73, %d" % (36 * 1024)); e("s_add_u32 s75, s75, %s" % s(S_B4))
        e("s_and_b32 s76, %s, 1" % s(S_W)); e("s_lshl_b32 s76, s76, 10"); e("s_add_u32 s76, s76, %d" % (148 * 1024))
        pfj = [(["s_mov_b32 m0, s76", "s_add_u32 %s, s75, 0x%x" % (s(S_SOFF), (48 + 4 * k) * 1024)],
                "buffer_load_dwordx4 %s, %s, %s offen sc1 lds" % (v(VL16), s(S_WS, 4), s(S_SOFF)), "pfj") for k in range(9)] if o.get("pf4", 1) else []
        tch = (touch(S_B4, 0, 8, 73, 2) + touch(S_B3, 68, 1, 74, 4)) if o.get("pf2", 1) else []
        e("s_waitcnt lgkmcnt(0)")
        for x in A(0): e(x)
        if o.get("fine2"): self.stamp()
        def sync2():
            lw = self.newlabel("S2")
            if o.get("fine2"): self.stamp()
            e("s_waitcnt vmcnt(0)")
            e("s_cmp_lg_u32 %s, 0" % s(S_W)); e("s_cbranch_scc1 %s" % lw)
            e("s_mov_b64 s[50:51], -1")
            for k in range(4):
                e("v_cmp_eq_u32 s[46:47], %s, %s" % (s(S_NONCE), v(T + 22 + 2 * k))); e("v_cmp_eq_u32 s[48:49], %s, %s" % (s(S_NONCE + 1), v(T + 23 + 2 * k)))
                e("s_and_b64 s[50:51], s[50:51], s[46:47]"); e("s_and_b64 s[50:51], s[50:51], s[48:49]")
            e("s_cmp_eq_u64 s[50:51], -1"); e("s_cbranch_scc1 %s_ok" % lw)
            self.flag_poll(T + 20, T + 22, nloads=4, stride=64)
            e("buffer_load_dwordx4 %s, %s, %s, 0 offen sc1" % (v(T + 32, 4), v(T + 18), s(S_WS, 4)))
            e("s_waitcnt vmcnt(0)")
            self.label(lw + "_ok")
            e("v_cmp_eq_u32 s[46:47], %s, %s" % (s(S_XCC), v(T + 34)))
            e("v_cmp_eq_u32 s[48:49], %s, %s" % (s(S_NONCE), v(T + 32))); e("s_and_b64 s[46:47], s[46:47], s[48:49]")
            e("s_cmp_eq_u64 s[46:47], -1"); e("s_cselect_b32 s46, 1, 0")
            e("s_cmp_eq_u32 %s, 0" % s(S_TMO)); e("s_cselect_b32 s46, s46, 0")
            e("v_mov_b32 %s, s46" % v(T + 30)); e("v_mov_b32 %s, %d" % (v(T + 31), BB + 6640))
            e("ds_write_b32 %s, %s" % (v(T + 31), v(T + 30)))
            e("s_waitcnt lgkmcnt(0)")
            self.label(lw)
            e("s_barrier")
            if o.get("fastp", 1):
                e("v_mov_b32 %s, %d" % (v(T + 31), BB + 6640))
                e("ds_read_b32 %s, %s" % (v(T + 30), v(T + 31)))
                e("s_waitcnt lgkmcnt(0)")
                e("v_readfirstlane_b32 %s, %s" % (s(S_FAST), v(T + 30)))
            if o.get("fine2"): self.stamp()
        stage(0, A(1), [], chunked(v_reads(0)) + chunked(k_reads(1)), wo_a[:9], mid=sync2)
        e("s_waitcnt lgkmcnt(0)")
        if o.get("fine2"): self.stamp()
        stage(1, D(0)[:17], D(0)[17:] + A(2)[:16], chunked(v_reads(1)), wo_a[9:] + pfj[:3])
        for x in A(2)[16:]: e(x)
        e("s_waitcnt lgkmcnt(0)")
        e("s_barrier")
        if o.get("fine2"): self.stamp()
        for x in E(0): e(x)
        stage(2, D(1)[:17], D(1)[17:] + A(3)[:16], [], wo_b + w1_a[:2] + pfj[3:6])
        for x in A(3)[16:]: e(x)
        for x in E(1): e(x)
        if o.get("fine2"): self.stamp()
        stage(3, D(2)[:17], D(2)[17:], [], w1_a[2:9] + pfj[6:])
        self.p3_jobs = w1_a[9:]
        for x in E(2): e(x)
        for x in D(3): e(x)
        for x in E(3): e(x)
        self.stamp()
        self.c("o: staging -> fragment-major global")
        e("v_mul_u32_u24 %s, 80, %s" % (v(t0), v(V_C))); e("v_add_u32 %s, %s, %s" % (v(t0), s(S_OST), v(t0)))
        e("v_lshl_add_u32 %s, %s, 4, %s" % (v(t1), v(V_G), v(t0)))
        e("v_mul_u32_u24 %s, 1280, %s" % (v(t2), v(V_G))); e("v_add_u32 %s, %s, %s" % (v(t2), v(t2), v(t0)))
        e("v_min_u32 %s, %d, %s" % (v(t2), OB + 4 * 2560 - 80, v(t2)))
        e("s_waitcnt lgkmcnt(0)")
        R = 56
        e("ds_read_b128 %s, %s" % (v(R, 4), v(t1)))
        e("ds_read_b128 %s, %s offset:1280" % (v(R + 4, 4), v(t1)))
        e("ds_read_b128 %s, %s offset:64" % (v(R + 8, 4), v(t2)))
        e("s_mul_i32 s55, %s, 5" % s(S_J3))
        e("s_lshl_b32 s58, %s, 3" % s(S_M3)); e("s_lshl_b32 s59, %s, 1" % s(S_W)); e("s_add_u32 s58, s58, s59"); e("s_mul_i32 s58, s58, 20480")
        e("s_add_u32 s58, s58, 0x%x" % WS_O)
        e("v_add_u32 %s, s55, %s" % (v(t0), v(V_G)))
        e("v_lshrrev_b32 %s, 2, %s" % (v(t1), v(t0))); e("v_lshlrev_b32 %s, 10, %s" % (v(t1), v(t1)))
        e("v_and_b32 %s, 3, %s" % (v(t0), v(t0))); e("v_lshl_add_u32 %s, %s, 8, %s" % (v(t1), v(t0), v(t1)))
        e("v_lshl_add_u32 %s, %s, 4, %s" % (v(t1), v(V_C), v(t1)))
        e("s_add_u32 s59, s55, 4"); e("s_lshr_b32 s60, s59, 2"); e("s_lshl_b32 s60, s60, 10"); e("s_and_b32 s59, s59, 3"); e("s_lshl_b32 s59, s59, 8"); e("s_add_u32 s60, s60, s59")
        e("v_mul_u32_u24 %s, 20480, %s" % (v(t3), v(V_G))); e("v_lshl_add_u32 %s, %s, 4, %s" % (v(t3), v(V_C), v(t3))); e("v_add_u32 %s, s60, %s" % (v(t3), v(t3)))
        e("s_waitcnt lgkmcnt(0)")
        self.vm("buffer_store_dwordx4 %s, %s, %s, s58 offen sc1" % (v(R, 4), v(t1), s(S_WS, 4)), "ost")
        e("s_add_u32 s59, s58, 20480")
        self.vm("buffer_store_dwordx4 %s, %s, %s, s59 offen sc1" % (v(R + 4, 4), v(t1), s(S_WS, 4)), "ost")
        e("s_mov_b64 exec, 0xffffffff")
        self.vm("buffer_store_dwordx4 %s, %s, %s, s58 offen sc1" % (v(R + 8, 4), v(t3), s(S_WS, 4)), "ost")
        e("s_mov_b64 exec, -1")

    def handoff(self, phase, jobs, dma_a=None, dma_b=None, wait_dma=True):
        e = self.e
        l0 = self.newlabel("H0"); l1 = self.newlabel("H1"); l2 = self.newlabel("H2"); l3 = self.newlabel("H3")
        for j in jobs: self.emit_job(j)
        if dma_a:
            e("s_cmp_eq_u32 %s, 0" % s(S_W)); e("s_cbranch_scc1 %s" % l0)
            n0 = len(self.vmq)
            dma_a()
            e("s_waitcnt vmcnt(%d)" % (len(self.vmq) - n0 + len(jobs)))
            e("s_branch %s" % l1)
            self.label(l0)
            e("s_waitcnt vmcnt(%d)" % len(jobs))
            self.label(l1)
        else:
            e("s_waitcnt vmcnt(%d)" % len(jobs))
        e("s_barrier")
        self.stamp()
        e("s_cmp_eq_u32 %s, 0" % s(S_W)); e("s_cbranch_scc1 %s" % l2)
        if dma_b: dma_b()
        e("s_branch %s" % l3)
        self.label(l2)
        self.group_flag_idx()
        self.flag_set(phase, 52, 212, checkwave=False)
        self.poll_group(phase, 212)
        self.label(l3)
        if wait_dma: e("s_waitcnt vmcnt(0)")
        e("s_barrier")
        self.stamp()

    def gemm_small(self, NS, VL16, ACC, pos, bfrag, btag, RING, T, hooks, slots):
        e = self.e
        VA = T + 16
        def rd(st):
            r = []
            for t in range(5):
                off = pos(st * 5 + t) * 1024
                r.append("ds_read_b128 %s, %s offset:%d" % (a(RING + ((st % 3) * 5 + t) * 4, 4), v(VA + off // 65536), off % 65536))
            return r
        for x in rd(0) + rd(1): e(x)
        for st in range(NS):
            if st in hooks: hooks[st]()
            self.vm_wait(btag(st), " lgkmcnt(%d)" % (5 if st + 1 < NS else 0))
            nx = rd(st + 2) if st + 2 < NS else []
            jobs = list(slots(st))
            for t in range(5):
                jb = None
                if jobs and t in (0, 2, 4):
                    jb = jobs.pop(0)
                    for x in jb[0]: e(x)
                e("%s %s, %s, %s, %s" % (M, v(ACC + t * 4, 4), a(RING + ((st % 3) * 5 + t) * 4, 4), a(bfrag(st), 4), v(ACC + t * 4, 4)))
                if t < len(nx): e(nx[t])
                if jb: self.vm(jb[1], jb[2])
            for jb in jobs: self.emit_job(jb)

    def frag_job(self, dst, sreg, idx, tag, VL16=4):
        su = []
        if idx % 4 == 0 and idx > 0: su = ["s_add_u32 %s, %s, 4096" % (s(sreg), s(sreg))]
        return (su, "buffer_load_dwordx4 %s, %s, %s, %s offen offset:%d sc1" % (a(dst, 4), v(VL16), s(S_WS, 4), s(sreg), (idx % 4) * 1024), tag)

    def p3(self):
        e = self.e; o = self.o
        VL16 = 4; T = 200; t0, t1, t2, t3 = T, T + 1, T + 2, T + 3
        XR = 8
        ACC = 32
        HR = 240
        self.c("P2 -> P3 hand-off")
        VA = T + 16
        e("v_mov_b32 %s, %s" % (v(VA), v(VL16))); e("v_add_u32 %s, 0x10000, %s" % (v(VA + 1), v(VL16))); e("v_add_u32 %s, 0x20000, %s" % (v(VA + 2), v(VL16)))
        for i in range(20): e("v_mov_b32 %s, 0" % v(ACC + i))
        e("s_lshl_b32 s54, %s, 4" % s(S_TI)); e("v_add_u32 %s, s54, %s" % (v(t0), v(V_C))); e("v_mul_u32_u24 %s, 1280, %s" % (v(t0), v(t0)))
        e("s_mul_i32 s54, %s, 160" % s(S_NQ))
        e("v_lshl_add_u32 %s, %s, 4, %s" % (v(t1), v(V_G), v(t0))); e("v_add_u32 %s, s54, %s" % (v(20), v(t1)))
        e("v_lshl_add_u32 %s, %s, 3, %s" % (v(t1), v(V_G), v(t0))); e("v_add_u32 %s, s54, %s" % (v(21), v(t1)))
        e("s_waitcnt lgkmcnt(0)")
        e("s_barrier")
        self.handoff(1, self.p3_jobs)
        self.c("P3 main")
        e("s_mul_i32 s54, %s, 20480" % s(S_TI)); e("s_add_u32 s54, s54, 0x%x" % WS_O)
        fj = [self.frag_job(st * 4, 54, st, ("of", st)) for st in range(20)]
        LA = 10
        for st in range(LA): self.emit_job(fj[st])
        xr = [([], "buffer_load_dwordx4 %s, v20, %s, 0 offen" % (v(XR, 4), s(S_X, 4)), "xr"),
              ([], "buffer_load_dwordx4 %s, v20, %s, 0 offen offset:64" % (v(XR + 4, 4), s(S_X, 4)), "xr"),
              ([], "buffer_load_dwordx2 %s, v21, %s, 0 offen offset:128" % (v(XR + 8, 2), s(S_X, 4)), "xr")]
        def slots(st):
            r = []
            if st + LA < 20: r.append(fj[st + LA])
            if 12 <= st < 15: r.append(xr[st - 12])
            return r
        self.gemm_small(20, VL16, ACC, lambda i: 80 + i if i < 68 else i - 68, lambda st: st * 4, lambda st: ("of", st), 80, T, {}, slots)
        self.stamp()
        self.c("P3 epilogue")
        SUM, SQ = T + 4, T + 6
        e("v_mov_b32 %s, 0" % v(SUM)); e("v_mov_b32 %s, 0" % v(SUM + 1)); e("v_mov_b32 %s, 0" % v(SQ)); e("v_mov_b32 %s, 0" % v(SQ + 1))
        e("s_mul_i32 s54, %s, 20480" % s(S_TI)); e("s_add_u32 s54, s54, 0x%x" % WS_H)
        e("s_mul_i32 s55, %s, 10" % s(S_NQ))
        def uaddr(dst, ureg):
            e("v_lshrrev_b32 %s, 2, %s" % (v(t2), v(ureg))); e("v_lshlrev_b32 %s, 10, %s" % (v(t2), v(t2)))
            e("v_and_b32 %s, 3, %s" % (v(t3), v(ureg))); e("v_lshl_add_u32 %s, %s, 8, %s" % (v(t2), v(t3), v(t2)))
            e("v_lshl_add_u32 %s, %s, 4, %s" % (v(dst), v(V_C), v(t2)))
        for p in range(2):
            e("v_add_u32 %s, s55, %s" % (v(t0), v(V_G)))
            if p: e("v_add_u32 %s, 4, %s" % (v(t0), v(t0)))
            uaddr(22 + p, t0)
        e("v_lshrrev_b32 %s, 1, %s" % (v(t0), v(V_G))); e("v_add_u32 %s, s55, %s" % (v(t0), v(t0))); e("v_add_u32 %s, 8, %s" % (v(t0), v(t0)))
        uaddr(24, t0)
        e("v_and_b32 %s, 1, %s" % (v(t0), v(V_G))); e("v_lshl_add_u32 %s, %s, 3, %s" % (v(24), v(t0), v(24)))
        self.vm_wait("xr")
        for t in range(5):
            A_ = ACC + t * 4
            xs = (XR + (t >> 1) * 4 + (t & 1) * 2) if t < 4 else XR + 8
            for hh in range(2):
                e("v_lshlrev_b32 %s, 16, %s" % (v(t0), v(xs + hh))); e("v_and_b32 %s, 0xffff0000, %s" % (v(t1), v(xs + hh)))
                e("v_pk_add_f32 %s, %s, %s" % (v(A_ + 2 * hh, 2), v(A_ + 2 * hh, 2), v(t0, 2)))
                hd = (HR + (t >> 1) * 4 + (t & 1) * 2 + hh) if t < 4 else HR + 8 + hh
                e("v_cvt_pk_bf16_f32 %s, %s, %s" % (v(hd), v(A_ + 2 * hh), v(A_ + 2 * hh + 1)))
            if t == 1: self.vm("buffer_store_dwordx4 %s, v22, %s, s54 offen sc1" % (v(HR, 4), s(S_WS, 4)), "hst")
            if t == 3: self.vm("buffer_store_dwordx4 %s, v23, %s, s54 offen sc1" % (v(HR + 4, 4), s(S_WS, 4)), "hst")
            if t == 4: self.vm("buffer_store_dwordx2 %s, v24, %s, s54 offen sc1" % (v(HR + 8, 2), s(S_WS, 4)), "hst")
        for t in range(5):
            A_ = ACC + t * 4
            for hh in range(2):
                e("v_pk_add_f32 %s, %s, %s" % (v(SUM, 2), v(SUM, 2), v(A_ + 2 * hh, 2)))
                e("v_pk_fma_f32 %s, %s, %s, %s" % (v(SQ, 2), v(A_ + 2 * hh, 2), v(A_ + 2 * hh, 2), v(SQ, 2)))
        e("v_add_f32 %s, %s, %s" % (v(SUM), v(SUM), v(SUM + 1))); e("v_add_f32 %s, %s, %s" % (v(SUM + 1), v(SQ), v(SQ + 1)))
        self.reduce4(SUM, t0); self.reduce4(SUM + 1, t0)
        e("s_lshl_b32 s54, %s, 4" % s(S_TI)); e("v_add_u32 %s, s54, %s" % (v(t0), v(V_C))); e("v_lshlrev_b32 %s, 6, %s" % (v(t0), v(t0)))
        e("s_lshl_b32 s54, %s, 3" % s(S_NQ)); e("s_add_u32 s54, s54, 0x%x" % WS_HS)
        e("s_mov_b64 exec, 0xffff")
        self.vm("buffer_store_dwordx2 %s, %s, %s, s54 offen sc1" % (v(SUM, 2), v(t0), s(S_WS, 4)), "hst")
        e("s_mov_b64 exec, -1")

    def p4(self):
        e = self.e; o = self.o
        VL16 = 4; T = 200; t0, t1, t2, t3 = T, T + 1, T + 2, T + 3
        ACC = 32
        CSA = 80
        CSV = 88
        VONE = 112
        VST = 116
        CS_OFF = 158 * 1024
        RING = 160
        pos = lambda i: 32 + i if i < 48 else 80 + (i - 48)
        self.c("P3 -> P4 hand-off")
        for i in range(4): e("v_mov_b32 %s, 0x3f803f80" % v(VONE + i))
        for i in range(8): e("v_mov_b32 %s, 0" % v(CSA + i))
        for i in range(48): e("v_mov_b32 %s, 0" % v(ACC + i))
        e("s_barrier")
        self.handoff(2, [], lambda: self.dma3(S_B4, 48, 80, 8, "w4b"), lambda: self.dma3(S_B4, 72, 104, 16, "w4b"), wait_dma=False)
        self.c("P4 main")
        e("s_lshl_b32 s54, %s, 3" % s(S_M3)); e("s_lshl_b32 s55, %s, 1" % s(S_W)); e("s_add_u32 s54, s54, s55")
        e("s_mov_b32 s88, s54")
        e("s_mul_i32 s55, s54, 20480"); e("s_add_u32 s55, s55, 0x%x" % WS_H); e("s_add_u32 s56, s55, 20480")
        fj = [[self.frag_job((st * 2 + tt) * 4, 55 + tt, st, ("hf", st)) for tt in range(2)] for st in range(20)]
        LA = 5
        for st in range(LA):
            for j in fj[st]: self.emit_job(j)
        e("s_lshl_b32 s57, s54, 4"); e("v_add_u32 %s, s57, %s" % (v(t0), v(V_C))); e("v_lshlrev_b32 %s, 6, %s" % (v(t0), v(t0)))
        e("v_lshl_add_u32 %s, %s, 4, %s" % (v(t0), v(V_G), v(t0))); e("v_add_u32 %s, 0x%x, %s" % (v(25), WS_HS, v(t0)))
        e("s_add_u32 s58, %s, 4" % s(S_W)); e("s_cmp_ge_u32 s58, 6"); e("s_cselect_b32 s57, 6, 0"); e("s_sub_u32 s58, s58, s57")
        e("v_add_u32 %s, %s, %s" % (v(t0), s(S_W1K), v(VL16)))
        e("s_lshl_b32 s57, s58, 10"); e("v_add_u32 %s, s57, %s" % (v(t1), v(VL16)))
        e("v_add_u32 %s, 0x10000, %s" % (v(t2), v(t0))); e("v_add_u32 %s, 0x10000, %s" % (v(t3), v(t1)))
        e("v_add_u32 %s, 0x20000, %s" % (v(t0 + 4), v(t0))); e("v_add_u32 %s, 0x20000, %s" % (v(t0 + 5), v(t1)))
        def csrd(st):
            off = pos(st * 6) * 1024
            return ["ds_read_b128 %s, %s offset:%d" % (a(RING + ((st % 4) * 2 + q) * 4, 4), v(t0 + 2 * (off // 65536) + q), off % 65536) for q in range(2)]
        CSR = 208
        def csrd2(st):
            off = pos(st * 6) * 1024
            return ["ds_read_b128 %s, %s offset:%d" % (a(CSR + ((st % 4) * 2 + q) * 4, 4), v(142 + 2 * (off // 65536) + q), off % 65536) for q in range(2)]
        def cs_block(s0, s1, jobs=()):
            jobs = list(jobs)
            for st in range(s0, min(s0 + 3, s1)):
                for x in csrd2(st): e(x)
            for st in range(s0, s1):
                nx = csrd2(st + 3) if st + 3 < s1 else []
                for x in nx: e(x)
                e("s_waitcnt lgkmcnt(%d)" % (2 * min(3, s1 - 1 - st)))
                for q in range(2):
                    e("%s %s, %s, %s, %s" % (M, v(CSA + q * 4, 4), a(CSR + ((st % 4) * 2 + q) * 4, 4), v(VONE, 4), v(CSA + q * 4, 4)))
                if jobs: self.emit_job(jobs.pop(0))
        for k in range(6): e("v_mov_b32 %s, %s" % (v(142 + k), v(t0 + k)))
        cs_block(0, 8, [self.job4(S_B5, 4 * k, 4 * k, "w5a") for k in range(8)])
        e("v_lshlrev_b32 %s, 4, %s" % (v(t2), v(V_G)))
        e("s_lshl_b32 s57, %s, 6" % s(S_W)); e("s_add_u32 s57, s57, %d" % CS_OFF); e("v_add_u32 %s, s57, %s" % (v(t0), v(t2)))
        e("s_lshl_b32 s57, s58, 6"); e("s_add_u32 s57, s57, %d" % CS_OFF); e("v_add_u32 %s, s57, %s" % (v(t1), v(t2)))
        e("v_add_u32 %s, %d, %s" % (v(26), CS_OFF, v(t2)))
        VA = T + 16
        e("v_mov_b32 %s, %s" % (v(VA), v(VL16))); e("v_add_u32 %s, 0x10000, %s" % (v(VA + 1), v(VL16))); e("v_add_u32 %s, 0x20000, %s" % (v(VA + 2), v(VL16)))
        def rd(st):
            r = []
            for t in range(6):
                off = pos(st * 6 + t) * 1024
                r.append("ds_read_b128 %s, %s offset:%d" % (a(RING + ((st % 2) * 6 + t) * 4, 4), v(VA + off // 65536), off % 65536))
            return r
        e("v_mov_b32 %s, %s" % (v(140), v(t0))); e("v_mov_b32 %s, %s" % (v(141), v(t1)))
        for x in rd(0): e(x)
        w5b = [self.job4(S_B5, 32 + 4 * k, 32 + 4 * k, "w5b") for k in range(12)]
        hs = [([], "buffer_load_dwordx4 %s, v25, %s, 0 offen offset:%d sc1" % (v(VST + tt * 4, 4), s(S_WS, 4), tt * 1024), "hs") for tt in range(2)]
        for st in range(20):
            if st == 7:
                self.vm_wait("w4b")
                e("s_barrier")
            if st == 8:
                e("s_waitcnt lgkmcnt(0)")
                cs_block(8, 20)
                e("v_cmp_eq_u32 vcc, 0, %s" % v(V_C))
                e("s_and_saveexec_b64 s[58:59], vcc")
                e("ds_write_b128 v140, %s" % v(CSA, 4))
                e("ds_write_b128 v141, %s" % v(CSA + 4, 4))
                e("s_mov_b64 exec, s[58:59]")
            if st == 10:
                e("s_barrier")
                for t in range(6): e("ds_read_b128 %s, %s offset:%d" % (v(CSV + t * 4, 4), v(26), t * 64))
            self.vm_wait(("hf", st), " lgkmcnt(0)")
            nx = rd(st + 1) if st + 1 < 20 else []
            jobs = list(fj[st + LA]) if st + LA < 20 else []
            if st == 15: jobs += hs
            if st in (2, 4, 6) and o.get("pf3", 0):
                k = (st - 2) // 2
                if k < 2:
                    jobs.append((["s_mul_i32 s58, s74, 40960", "s_add_u32 s58, s58, %s" % s(S_B5), "s_mul_i32 s59, %s, 7168" % s(S_W), "s_add_u32 s58, s58, s59",
                                  "s_add_u32 %s, s58, %d" % (s(S_SOFF), 80 * 1024 + k * 32768)],
                                 "buffer_load_dword v%d, v198, %s, %s offen" % (192 + k, s(S_WS, 4), s(S_SOFF)), "touch"))
            if st >= 10:
                jobs += w5b[:2] if st >= 15 or st in (11, 13) else w5b[:1]
                w5b = w5b[2:] if (st >= 15 or st in (11, 13)) else w5b[1:]
            k = 0; n = 0
            for t in range(6):
                for tt in range(2):
                    d = ACC + (t * 2 + tt) * 4
                    jb = None
                    if jobs and n % 3 == 0:
                        jb = jobs.pop(0)
                        for x in jb[0]: e(x)
                    e("%s %s, %s, %s, %s" % (M, v(d, 4), a(RING + ((st % 2) * 6 + t) * 4, 4), a((st * 2 + tt) * 4, 4), v(d, 4)))
                    if tt == 0 and k < len(nx): e(nx[k]); k += 1
                    if jb: self.vm(jb[1], jb[2])
                    n += 1
            for jb in jobs: self.emit_job(jb)
        assert not w5b
        self.stamp()
        e("s_barrier")
        self.c("P4 epilogue (remaining resident part of W2 streams in underneath)")
        w5c = [self.job4(S_B5, 80 + 4 * k, 80 + 4 * k, "w5c") for k in range(20)]
        self.p5_jobs = w5c[12:]; w5c = w5c[:12]
        self.vm_wait("hs")
        NM = [T + 4, T + 6]
        for tt in range(2):
            q = VST + tt * 4
            e("v_add_f32 %s, %s, %s" % (v(q), v(q), v(q + 2))); e("v_add_f32 %s, %s, %s" % (v(q + 1), v(q + 1), v(q + 3)))
            self.reduce4(q, t0); self.reduce4(q + 1, t0)
            e("v_mul_f32 %s, 0x%x, %s" % (v(NM[tt]), f2u(-1.0 / 640), v(q)))
            e("v_mul_f32 %s, 0x%x, %s" % (v(q + 1), f2u(1.0 / 640), v(q + 1)))
            e("v_fma_f32 %s, -%s, %s, %s" % (v(q + 1), v(NM[tt]), v(NM[tt]), v(q + 1)))
            e("v_max_f32 %s, 0, %s" % (v(q + 1), v(q + 1))); e("v_add_f32 %s, 0x%x, %s" % (v(q + 1), f2u(1e-5), v(q + 1)))
            e("v_rsq_f32 %s, %s" % (v(NM[tt] + 1), v(q + 1)))
        e("s_mul_i32 s54, s88, 49152"); e("s_mul_i32 s55, %s, 3072" % s(S_J3)); e("s_add_u32 s54, s54, s55"); e("s_add_u32 s54, s54, 0x%x" % WS_H1)
        e("s_add_u32 s55, s54, 49152")
        e("s_mov_b32 s56, 0x%x" % f2u(-math.log2(math.e))); e("s_mov_b32 s57, s56")
        n = 0
        for tt in range(2):
            for p in range(3):
                O4 = 124 + (n % 4) * 4
                zs = []
                for hf in range(2):
                    t = 2 * p + hf; A_ = ACC + (t * 2 + tt) * 4
                    for hh in range(2): zs.append((A_ + 2 * hh, CSV + t * 4 + 2 * hh, O4 + hf * 2 + hh))
                E_ = [T + 8, T + 10, T + 12, T + 14]
                for k, (z, c_, od) in enumerate(zs): e("v_pk_fma_f32 %s, %s, %s, %s op_sel_hi:[1,0,1]" % (v(z, 2), v(c_, 2), v(NM[tt], 2), v(z, 2)))
                for k, (z, c_, od) in enumerate(zs): e("v_pk_mul_f32 %s, %s, %s op_sel:[0,1] op_sel_hi:[1,1]" % (v(z, 2), v(z, 2), v(NM[tt], 2)))
                for k, (z, c_, od) in enumerate(zs): e("v_pk_mul_f32 %s, %s, s[56:57]" % (v(E_[k], 2), v(z, 2)))
                for k in range(4): e("v_exp_f32 %s, %s" % (v(E_[k]), v(E_[k]))); e("v_exp_f32 %s, %s" % (v(E_[k] + 1), v(E_[k] + 1)))
                for k in range(4): e("v_pk_add_f32 %s, %s, 1.0 op_sel_hi:[1,0]" % (v(E_[k], 2), v(E_[k], 2)))
                for k in range(4): e("v_rcp_f32 %s, %s" % (v(E_[k]), v(E_[k]))); e("v_rcp_f32 %s, %s" % (v(E_[k] + 1), v(E_[k] + 1)))
                for k, (z, c_, od) in enumerate(zs): e("v_pk_mul_f32 %s, %s, %s" % (v(z, 2), v(z, 2), v(E_[k], 2)))
                for k, (z, c_, od) in enumerate(zs): e("v_cvt_pk_bf16_f32 %s, %s, %s" % (v(od), v(z), v(z + 1)))
                for _ in range(2):
                    if w5c: self.emit_job(w5c.pop(0))
                self.vm("buffer_store_dwordx4 %s, %s, %s, %s offen offset:%d sc1" % (v(O4, 4), v(VL16), s(S_WS, 4), s(54 + tt), p * 1024), "h1st")
                n += 1
        assert not w5c

    def p5(self):
        e = self.e; o = self.o
        VL16 = 4; T = 200; t0, t1, t2, t3 = T, T + 1, T + 2, T + 3
        ACC = 32; HR = 240
        self.c("P4 -> P5 hand-off")
        for i in range(20): e("v_mov_b32 %s, 0" % v(ACC + i))
        self.handoff(3, self.p5_jobs)
        self.c("P5 main")
        e("s_mul_i32 s54, %s, 49152" % s(S_TI)); e("s_add_u32 s54, s54, 0x%x" % WS_H1)
        fj = [self.frag_job(st * 4, 54, st, ("f1", st)) for st in range(48)]
        LA = 12
        for st in range(LA): self.emit_job(fj[st])
        bA = [self.job4(S_B5, 160 + 4 * k, 4 * k, "b5a") for k in range(10)]
        bB = [self.job4(S_B5, 200 + 4 * k, 40 + 4 * k, "b5b") for k in range(10)]
        def slots(st):
            r = []
            if st + LA < 48: r.append(fj[st + LA])
            if 9 <= st < 19: r.append(bA[st - 9])
            if 19 <= st < 29: r.append(bB[st - 19])
            return r
        def bar(): e("s_barrier")
        def landed(tag):
            def fn():
                self.vm_wait(tag); e("s_barrier")
            return fn
        hooks = {9: bar, 19: bar, 30: landed("b5a"), 38: landed("b5b")}
        self.gemm_small(48, VL16, ACC, lambda i: i % 160, lambda st: st * 4, lambda st: ("f1", st), 192, T, hooks, slots)
        self.stamp()
        self.c("P5 epilogue")
        for t in range(5):
            A_ = ACC + t * 4
            for hh in range(2):
                hd = (HR + (t >> 1) * 4 + (t & 1) * 2 + hh) if t < 4 else HR + 8 + hh
                e("v_lshlrev_b32 %s, 16, %s" % (v(t0), v(hd))); e("v_and_b32 %s, 0xffff0000, %s" % (v(t1), v(hd)))
                e("v_pk_add_f32 %s, %s, %s" % (v(A_ + 2 * hh, 2), v(A_ + 2 * hh, 2), v(t0, 2)))
                od = (64 + (t >> 1) * 4 + (t & 1) * 2 + hh) if t < 4 else 72 + hh
                e("v_cvt_pk_bf16_f32 %s, %s, %s" % (v(od), v(A_ + 2 * hh), v(A_ + 2 * hh + 1)))
            if t == 1: e("buffer_store_dwordx4 v[64:67], v20, %s, 0 offen" % s(S_OUT, 4))
            if t == 3: e("buffer_store_dwordx4 v[68:71], v20, %s, 0 offen offset:64" % s(S_OUT, 4))
        e("buffer_store_dwordx2 v[72:73], v21, %s, 0 offen offset:128" % s(S_OUT, 4))
        self.stamp()

    def finish(self):
        self.label("L_end")
        self.e("s_endpgm")

def build(opts):
    g = Gen(opts)
    g.prologue()
    stop = opts.get("stop", 5)
    g.p1()
    if stop >= 2: g.p2()
    if stop >= 3: g.p3()
    if stop >= 4: g.p4()
    if stop >= 5: g.p5()
    g.e("s_waitcnt vmcnt(0)")
    g.finish()
    body = g.finalize(2 if opts.get('nocheck') else True)
    hdr = open("cdna_kernels/%s.s.ref" % NAME).read().split("\n")
    head = [l for l in hdr if l.startswith(";") and ("Kernarg" in l or "offset" in l)]
    txt = "\n".join(head) + "\n; @launch grid=(256,1,1) block=(256,1,1) lds=163840\n"
    txt += '.amdgcn_target "amdgcn-amd-amdhsa--gfx950"\n.text\n.globl %s_kernel\n.p2align 8\n.type %s_kernel,@function\n%s_kernel:\n' % (NAME, NAME, NAME)
    txt += body + "\n"
    txt = txt.replace("CODE_Q", "16384")
    txt += """.section .rodata,"a"
.p2align 6
.amdhsa_kernel %s_kernel
  .amdhsa_next_free_vgpr 512
  .amdhsa_next_free_sgpr 100
  .amdhsa_accum_offset 256
  .amdhsa_group_segment_fixed_size 0
  .amdhsa_kernarg_size 72
  .amdhsa_user_sgpr_count 2
  .amdhsa_user_sgpr_kernarg_segment_ptr 1
  .amdhsa_system_sgpr_workgroup_id_x 1
  .amdhsa_float_denorm_mode_32 3
.end_amdhsa_kernel
""" % NAME
    return txt, g

if __name__ == "__main__":
    opts = {}
    out = sys.argv[1]
    for x in sys.argv[2:]:
        if "=" in x:
            k, val = x.split("="); opts[k] = int(val)
        else: opts[x] = 1
    txt, g = build(opts)
    open(out, "w").write(txt)
    print("lines", len(txt.split("\n")), "bytes", len(txt), "nops", g.nops)
```

```python
import sys, math, struct
from asmlib import Asm, v, a, s

NAME = 'sequential_preLN__sliding_block__dense_activation_silu__prompt'
M = "v_mfma_f32_16x16x32_bf16"

WS_FLAGS = 0x0
WS_STAT = 0x20000
WS_HS = 0x40000
WS_QKV = 0x100000
WS_O = 0x900000
WS_H = 0xC00000
WS_H1 = 0xF00000
WS_PW3 = 0x1500000
WS_PW4 = 0x1600000
WS_PW5 = 0x1800000
WS_ST = 0x1A00000
WS_SIZE = 0x1B00000
BIGOFF = 0x7F000000

def f2u(x):
    return struct.unpack("<I", struct.pack("<f", x))[0]

S_X, S_WQ, S_WO, S_W1, S_W2, S_OUT, S_WS, S_DBG = 4, 8, 12, 16, 20, 24, 28, 32
S_W = 36
S_M1, S_N1, S_M3, S_J3 = 37, 38, 39, 40
S_NONCE = 42
S_SOFF = 62
S_TMO = 63
S_STC = 80
S_STT = 82
S_ODD = 84
S_TI, S_NQ = 86, 87
S_B3, S_B4, S_B5 = 90, 91, 92
S_W1K, S_W3 = 93, 94
S_OST = 95
S_XCC, S_FAST = 98, 99

V_L, V_C, V_G = 1, 2, 3

class Gen(Asm):
    def __init__(self, opts):
        super().__init__()
        self.o = opts
        self.vmq = []
        self.nlab = 0
        self.nstamp = 0
        self.ntouch = 0
    def vm(self, text, tag=None):
        if tag in {0: (), 1: ("ost",), 2: ("ost", "hst"), 3: ("ost", "hst", "h1st")}[self.o.get("fastd", 2)] and self.o.get("fastp", 1):
            self.dual(text)
            self.vmq.append(tag); return
        self.e(text); self.vmq.append(tag)
    def dual(self, text):
        l1 = self.newlabel("DF"); l2 = self.newlabel("DJ")
        self.e("s_cmp_lg_u32 %s, 0" % s(S_FAST)); self.e("s_cbranch_scc1 %s" % l1)
        self.e(text); self.e("s_branch %s" % l2)
        self.label(l1)
        self.e(text.replace(" sc1", ""))
        self.label(l2)
    def vm_n(self, tag):
        idx = max(i for i, t in enumerate(self.vmq) if t == tag)
        n = len(self.vmq) - 1 - idx
        assert n <= 63, (tag, n)
        return n
    def vm_wait(self, tag, extra=""):
        self.e("s_waitcnt vmcnt(%d)%s" % (self.vm_n(tag), extra))
    def newlabel(self, p="L"):
        self.nlab += 1
        return "%s_%d" % (p, self.nlab)
    def stamp(self, idx=None, pre=None):
        if not self.o.get("stamps"): return
        i = self.nstamp if idx is None else idx
        if idx is None: self.nstamp += 1
        assert i < 32
        e = self.e
        if pre is not None:
            e("s_mov_b64 %s, %s" % (s(S_STT, 2), s(pre, 2)))
        else:
            e("%s %s" % ("s_memtime" if self.o.get("stamps") == 2 else "s_memrealtime", s(S_STT, 2)))
        e("s_waitcnt lgkmcnt(0)")
        e("v_mov_b32 v254, %s" % s(S_STT)); e("v_mov_b32 v255, %s" % s(S_STT + 1))
        e("s_lshl_b32 %s, s2, 2" % s(S_STC)); e("s_add_u32 %s, %s, %s" % (s(S_STC), s(S_STC), s(S_W)))
        e("s_lshl_b32 %s, %s, 8" % (s(S_STC), s(S_STC)))
        e("s_add_u32 %s, %s, 0x%x" % (s(S_STC), s(S_STC), WS_ST + i * 8))
        e("v_mov_b32 v253, %s" % s(S_STC))
        e("s_mov_b64 exec, 1")
        self.vm("buffer_store_dwordx2 v[254:255], v253, %s, 0 offen" % s(S_WS, 4), "stamp")
        e("s_mov_b64 exec, -1")

    def reduce4(self, x, tmp, op="v_add_f32"):
        e = self.e
        e("v_mov_b32 %s, %s" % (v(tmp), v(x)))
        e("v_permlane16_swap_b32 %s, %s" % (v(x), v(tmp)))
        e("%s %s, %s, %s" % (op, v(x), v(x), v(tmp)))
        e("v_mov_b32 %s, %s" % (v(tmp), v(x)))
        e("v_permlane32_swap_b32 %s, %s" % (v(x), v(tmp)))
        e("%s %s, %s, %s" % (op, v(x), v(x), v(tmp)))

    def nonce_issue(self, vr):
        self.e("v_mov_b32 %s, 0" % v(vr + 2))
        self.vm("buffer_load_dwordx2 %s, %s, %s, 0 offen sc1" % (v(vr, 2), v(vr + 2), s(S_DBG, 4)), "nonce")
    def nonce_get(self, vr):
        e = self.e
        self.vm_wait("nonce")
        l0 = self.newlabel("NL"); l1 = self.newlabel("ND")
        e("v_readfirstlane_b32 %s, %s" % (s(S_NONCE), v(vr)))
        e("v_readfirstlane_b32 %s, %s" % (s(S_NONCE + 1), v(vr + 1)))
        e("s_cmp_lg_u32 %s, 0" % s(S_NONCE))
        e("s_cbranch_scc1 %s" % l1)
        e("s_mov_b32 s44, 0")
        self.label(l0)
        e("buffer_load_dwordx2 %s, %s, %s, 0 offen sc1" % (v(vr, 2), v(vr + 2), s(S_DBG, 4)))
        e("s_waitcnt vmcnt(0)")
        e("v_readfirstlane_b32 %s, %s" % (s(S_NONCE), v(vr)))
        e("v_readfirstlane_b32 %s, %s" % (s(S_NONCE + 1), v(vr + 1)))
        e("s_add_u32 s44, s44, 1")
        e("s_cmp_gt_u32 s44, 20000")
        e("s_cbranch_scc1 %s" % l1)
        e("s_cmp_eq_u32 %s, 0" % s(S_NONCE))
        e("s_cbranch_scc1 %s" % l0)
        self.label(l1)
    def flag_set(self, phase, sidx, vt, checkwave=True):
        e = self.e
        l = self.newlabel("FS")
        if checkwave: e("s_cmp_lg_u32 %s, 0" % s(S_W)); e("s_cbranch_scc1 %s" % l)
        e("s_lshl_b32 s44, %s, 6" % s(sidx)); e("s_add_u32 s44, s44, 0x%x" % (WS_FLAGS + phase * 16384))
        e("v_mov_b32 %s, %s" % (v(vt), s(S_NONCE))); e("v_mov_b32 %s, %s" % (v(vt + 1), s(S_NONCE + 1)))
        if phase == 0:
            e("v_mov_b32 %s, %s" % (v(vt + 2), s(S_XCC))); e("v_mov_b32 %s, 0" % v(vt + 3)); e("v_mov_b32 %s, s44" % v(vt + 4))
            e("s_mov_b64 exec, 1")
            e("buffer_store_dwordx4 %s, %s, %s, 0 offen sc1" % (v(vt, 4), v(vt + 4), s(S_WS, 4)))
            e("s_mov_b64 exec, -1")
        else:
            e("v_mov_b32 %s, s44" % v(vt + 2))
            e("s_mov_b64 exec, 1")
            txt = "buffer_store_dwordx2 %s, %s, %s, 0 offen sc1" % (v(vt, 2), v(vt + 2), s(S_WS, 4))
            if self.o.get("fastp", 1): self.dual(txt)
            else: e(txt)
            e("s_mov_b64 exec, -1")
        self.label(l)
    def flag_poll(self, vaddr, vt, nloads=1, stride=0):
        e = self.e
        l0 = self.newlabel("PL"); l1 = self.newlabel("PD")
        e("s_mov_b32 s44, 0")
        self.label(l0)
        for k in range(nloads):
            e("buffer_load_dwordx2 %s, %s, %s, 0 offen offset:%d sc1" % (v(vt + 2 * k, 2), v(vaddr), s(S_WS, 4), k * stride))
        e("s_waitcnt vmcnt(0)")
        for k in range(nloads):
            e("v_cmp_eq_u32 %s, %s, %s" % (s(46 + 0, 2), s(S_NONCE), v(vt + 2 * k)))
            e("v_cmp_eq_u32 %s, %s, %s" % (s(48 + 0, 2), s(S_NONCE + 1), v(vt + 2 * k + 1)))
            e("s_and_b64 s[46:47], s[46:47], s[48:49]")
            if k == 0: e("s_mov_b64 s[50:51], s[46:47]")
            else: e("s_and_b64 s[50:51], s[50:51], s[46:47]")
        e("s_cmp_eq_u64 s[50:51], -1")
        e("s_cbranch_scc1 %s" % l1)
        e("s_add_u32 s44, s44, 1")
        e("s_cmp_gt_u32 s44, 20000")
        e("s_cbranch_scc0 %s" % l0)
        e("s_mov_b32 %s, 1" % s(S_TMO))
        self.label(l1)

    def srd(self, d, src, size):
        e = self.e
        e("s_mov_b32 %s, %s" % (s(d), s(src))); e("s_and_b32 %s, %s, 0xffff" % (s(d + 1), s(src + 1)))
        e("s_mov_b32 %s, 0x%x" % (s(d + 2), size)); e("s_mov_b32 %s, 0x20000" % s(d + 3))
    def prologue(self):
        e = self.e
        if self.o.get("stamps"): e("s_memrealtime s[96:97]")
        e("s_cmp_ge_u32 s2, 256")
        e("s_cbranch_scc1 L_end")
        e("s_load_dwordx16 s[64:79], s[0:1], 0")
        e("s_load_dwordx2 s[80:81], s[0:1], 64")
        e("v_and_b32 %s, 63, v0" % v(V_L))
        e("v_lshrrev_b32 v4, 6, v0")
        e("v_and_b32 %s, 15, %s" % (v(V_C), v(V_L)))
        e("v_lshrrev_b32 %s, 4, %s" % (v(V_G), v(V_L)))
        e("v_readfirstlane_b32 %s, v4" % s(S_W))
        e("s_and_b32 s3, s2, 7")
        e("s_lshr_b32 s41, s2, 3")
        e("s_lshr_b32 %s, s3, 1" % s(S_M1)); e("s_lshl_b32 %s, %s, 2" % (s(S_M1), s(S_M1)))
        e("s_lshr_b32 s62, s41, 3"); e("s_add_u32 %s, %s, s62" % (s(S_M1), s(S_M1)))
        e("s_and_b32 %s, s3, 1" % s(S_N1)); e("s_lshl_b32 %s, %s, 3" % (s(S_N1), s(S_N1)))
        e("s_and_b32 s62, s41, 7"); e("s_add_u32 %s, %s, s62" % (s(S_N1), s(S_N1)))
        e("s_lshl_b32 %s, s3, 1" % s(S_M3)); e("s_lshr_b32 s62, s41, 4"); e("s_add_u32 %s, %s, s62" % (s(S_M3), s(S_M3)))
        e("s_and_b32 %s, s41, 15" % s(S_J3))
        e("s_mov_b32 %s, 0" % s(S_TMO))
        e("s_getreg_b32 %s, hwreg(HW_REG_XCC_ID, 0, 4)" % s(S_XCC))
        e("s_mov_b32 %s, 0" % s(S_FAST))
        e("v_and_b32 v4, 1, %s" % v(V_G))
        e("v_cmp_eq_u32 %s, 1, v4" % s(S_ODD, 2))
    def prologue2(self):
        e = self.e
        self.srd(S_WO, 68, 640 * 640 * 2)
        self.srd(S_W1, 72, 640 * 1536 * 2)
        self.srd(S_W2, 74, 1536 * 640 * 2)
        self.srd(S_OUT, 76, 2048 * 640 * 2)

    def x_dma_setup(self, VX, t0, t1):
        e = self.e
        e("v_lshrrev_b32 %s, 3, %s" % (v(t0), v(V_L)))
        e("v_lshrrev_b32 %s, 1, %s" % (v(t1), v(t0)))
        e("v_xor_b32 %s, %s, %s" % (v(t1), v(t1), v(V_L))); e("v_and_b32 %s, 7, %s" % (v(t1), v(t1)))
        e("s_lshl_b32 s44, %s, 7" % s(S_M1)); e("s_lshl_b32 s45, %s, 5" % s(S_W)); e("s_add_u32 s44, s44, s45")
        e("v_add_u32 %s, s44, %s" % (v(t0), v(t0)))
        e("v_mul_u32_u24 %s, 1280, %s" % (v(t0), v(t0)))
        e("v_lshl_add_u32 %s, %s, 4, %s" % (v(VX), v(t1), v(t0)))
        e("v_xor_b32 %s, 4, %s" % (v(t1), v(t1)))
        e("v_lshl_add_u32 %s, %s, 4, %s" % (v(VX + 1), v(t1), v(t0)))
        e("v_add_u32 %s, %d, %s" % (v(VX + 1), 8 * 1280, v(VX + 1)))
    def x_frag_addr(self, VA, t0, base_const):
        e = self.e
        e("v_lshrrev_b32 %s, 1, %s" % (v(t0), v(V_C)))
        e("v_xor_b32 %s, %s, %s" % (v(t0), v(t0), v(V_G)))
        e("v_lshlrev_b32 %s, 4, %s" % (v(t0), v(t0)))
        e("v_lshl_add_u32 %s, %s, 7, %s" % (v(VA), v(V_C), v(t0)))
        e("v_xor_b32 %s, 64, %s" % (v(VA + 1), v(VA)))

    def p1_helper(self):
        e = self.e
        self.c("helper workgroup: LayerNorm statistics of x for token block m1")
        save = list(self.vmq); self.vmq = []
        VX, VA, T = 12, 14, 208
        self.x_dma_setup(VX, T, T + 1)
        self.x_frag_addr(VA, T, None)
        e("s_lshl_b32 s47, %s, 15" % s(S_W))
        e("v_add_u32 %s, s47, %s" % (v(VA), v(VA))); e("v_add_u32 %s, s47, %s" % (v(VA + 1), v(VA + 1)))
        def issue(sg):
            for i in range(4):
                e("s_add_u32 m0, s47, 0x%x" % ((sg % 8) * 4096 + i * 1024))
                e("s_mov_b32 %s, %d" % (s(S_SOFF), sg * 128 + (i >> 1) * 16 * 1280))
                self.vm("buffer_load_dwordx4 %s, %s, %s offen lds" % (v(VX + (i & 1)), s(S_X, 4), s(S_SOFF)), ("hx", sg))
        for sg in range(8): issue(sg)
        self.nonce_issue(16)
        for i in range(4): e("v_mov_b32 %s, 0x3f803f80" % v(20 + i))
        for i in range(16): e("v_mov_b32 %s, 0" % v(32 + i))
        for st in range(20):
            sg = st // 2
            if st % 2 == 0: self.vm_wait(("hx", sg))
            b = (st % 2) * 8
            for tt in range(2):
                e("ds_read_b128 %s, %s offset:%d" % (a(b + tt * 4, 4), v(VA + (st & 1)), (sg % 8) * 4096 + tt * 2048))
            e("s_waitcnt lgkmcnt(0)")
            if st % 2 == 1 and sg < 2: issue(sg + 8)
            for tt in range(2):
                e("%s %s, %s, %s, %s" % (M, v(32 + tt * 4, 4), a(b + tt * 4, 4), a(b + tt * 4, 4), v(32 + tt * 4, 4)))
                e("%s %s, %s, %s, %s" % (M, v(40 + tt * 4, 4), v(20, 4), a(b + tt * 4, 4), v(40 + tt * 4, 4)))
        self.nonce_get(16)
        e("v_and_b32 %s, 3, %s" % (v(T), v(V_C)))
        e("v_lshrrev_b32 %s, 2, %s" % (v(T + 1), v(V_C)))
        e("v_cmp_eq_u32 s[46:47], %s, %s" % (v(T + 1), v(V_G)))
        for tt in range(2):
            d = 32 + tt * 4
            for i in range(1, 4):
                e("v_cmp_eq_u32 vcc, %d, %s" % (i, v(T)))
                e("v_cndmask_b32 %s, %s, %s, vcc" % (v(d), v(d), v(d + i)))
            e("v_cndmask_b32 %s, 0, %s, s[46:47]" % (v(d), v(d)))
            self.reduce4(d, T + 2)
            sm = 40 + tt * 4
            e("v_mul_f32 %s, 0x%x, %s" % (v(sm), f2u(1.0 / 640), v(sm)))
            e("v_mul_f32 %s, 0x%x, %s" % (v(d), f2u(1.0 / 640), v(d)))
            e("v_fma_f32 %s, -%s, %s, %s" % (v(d), v(sm), v(sm), v(d)))
            e("v_max_f32 %s, 0, %s" % (v(d), v(d)))
            e("v_add_f32 %s, 0x%x, %s" % (v(d), f2u(1e-5), v(d)))
            e("v_rsq_f32 %s, %s" % (v(d), v(d)))
            o4 = 48 + tt * 4
            e("v_mov_b32 %s, %s" % (v(o4), v(sm))); e("v_mov_b32 %s, %s" % (v(o4 + 1), v(d)))
            e("v_mov_b32 %s, %s" % (v(o4 + 2), s(S_NONCE))); e("v_mov_b32 %s, %s" % (v(o4 + 3), s(S_NONCE + 1)))
        e("s_lshl_b32 s44, %s, 7" % s(S_M1)); e("s_lshl_b32 s45, %s, 5" % s(S_W)); e("s_add_u32 s44, s44, s45")
        e("v_add_u32 %s, s44, %s" % (v(T), v(V_C)))
        e("v_lshlrev_b32 %s, 4, %s" % (v(T), v(T)))
        e("v_add_u32 %s, 0x%x, %s" % (v(T), WS_STAT, v(T)))
        e("s_mov_b64 exec, 0xffff")
        for tt in range(2):
            e("buffer_store_dwordx4 %s, %s, %s, 0 offen offset:%d sc1" % (v(48 + tt * 4, 4), v(T), s(S_WS, 4), tt * 256))
        e("s_mov_b64 exec, -1")
        e("s_waitcnt vmcnt(0)")
        self.vmq = save

    def p1(self):
        e = self.e; o = self.o
        VT = 4
        VXA = 8
        VX = 10
        VWO = 12
        VPK = 13
        VONE = 20
        VCS = 24
        ACC = 32
        VST = 96
        VN = 112
        VPA = 124
        PKF = 116
        TMP = 208
        t0, t1, t2, t3 = TMP, TMP + 1, TMP + 2, TMP + 3
        acc = lambda i, tt: ACC + (i * 4 + tt) * 4
        PK_OFF = 131072
        CS_OFF = 131072 + 24576
        lab_h = self.newlabel("HELP"); lab_j = self.newlabel("P1J")
        self.c("P1: address setup (no pointers needed yet)")
        self.x_dma_setup(VX, t0, t1)
        e("s_lshr_b32 s44, %s, 1" % s(S_W)); e("s_lshl_b32 s44, s44, 3")
        e("v_and_b32 %s, 1, %s" % (v(t0), v(V_G))); e("v_and_b32 %s, 2, %s" % (v(t1), v(V_G)))
        e("v_lshl_or_b32 %s, %s, 1, %s" % (v(t0), v(t1), v(t0))); e("v_or_b32 %s, s44, %s" % (v(t0), v(t0)))
        e("v_xor_b32 %s, %s, %s" % (v(t0), v(t0), v(V_C)))
        e("s_lshl_b32 s45, %s, 2" % s(S_W)); e("v_add_u32 %s, s45, %s" % (v(t1), v(V_G)))
        e("v_mul_u32_u24 %s, 3840, %s" % (v(t1), v(t1)))
        e("v_lshl_add_u32 %s, %s, 4, %s" % (v(t1), v(t0), v(t1)))
        e("s_lshl_b32 s44, %s, 8" % s(S_N1)); e("v_add_u32 %s, s44, %s" % (v(VWO), v(t1)))
        e("s_lshl_b32 s47, %s, 10" % s(S_W))
        e("s_lshl_b32 s48, %s, 12" % s(S_W))
        e("s_waitcnt lgkmcnt(0)")
        self.srd(S_X, 64, 2048 * 640 * 2)
        self.srd(S_WQ, 66, 640 * 1920 * 2)
        self.srd(S_WS, 80, WS_SIZE)
        self.srd(S_DBG, 78, 256)
        l = self.newlabel("NP")
        e("s_lshl_b32 s44, s2, 2"); e("s_or_b32 s44, s44, %s" % s(S_W))
        e("s_cmp_lg_u32 s44, 0"); e("s_cbranch_scc1 %s" % l)
        e("s_memrealtime s[44:45]")
        e("s_waitcnt lgkmcnt(0)")
        e("s_or_b32 s44, s44, 1")
        e("v_mov_b32 v204, s44"); e("v_mov_b32 v205, s45"); e("v_mov_b32 v206, 0")
        e("s_mov_b64 exec, 1")
        e("buffer_store_dwordx2 v[204:205], v206, %s, 0 offen sc1" % s(S_DBG, 4))
        e("s_mov_b64 exec, -1")
        self.label(l)
        self.stamp(pre=96)
        self.stamp()
        e("s_cmp_eq_u32 %s, 15" % s(S_N1)); e("s_cbranch_scc1 %s" % lab_h)
        def dma_ops(st):
            ops = []
            sl = ((st // 2) % 4) * 32768
            for h in range(2):
                if o.get("xnoW") and st >= 2: continue
                ops.append((["s_add_u32 m0, s47, 0x%x" % (sl + (st & 1) * 8192 + h * 4096), "s_mov_b32 %s, 0x%x" % (s(S_SOFF), (32 * st + 16 * h) * 3840)],
                            "buffer_load_dwordx4 %s, %s, %s offen lds" % (v(VWO), s(S_WQ, 4), s(S_SOFF))))
            for i in range(2):
                if o.get("xnoX") and st >= 2: continue
                ii = (st & 1) * 2 + i
                ops.append((["s_add_u32 m0, s48, 0x%x" % (sl + 16384 + ii * 1024), "s_mov_b32 %s, %d" % (s(S_SOFF), (st // 2) * 128 + (ii >> 1) * 16 * 1280)],
                            "buffer_load_dwordx4 %s, %s, %s offen lds" % (v(VX + (ii & 1)), s(S_X, 4), s(S_SOFF))))
            return ops
        def issue_now(st):
            for su, ld in dma_ops(st):
                for x in su: e(x)
                self.vm(ld, ("st", st))
        issue_now(0)
        if o.get("tlb", 0):
            e("v_lshlrev_b32 %s, 19, %s" % (v(t0), v(V_L))); e("v_add_u32 %s, 0x7ff80, %s" % (v(t0), v(t0)))
            self.vm("buffer_load_dword v186, %s, %s, 0 offen" % (v(t0), s(S_WS, 4)), "touch")
        if o.get("pf1", 1):
            e("s_and_b32 s44, %s, 3" % s(S_M1)); e("s_mul_i32 s44, s44, %d" % (160 * 3840)); e("s_lshl_b32 s45, %s, 8" % s(S_N1)); e("s_add_u32 s44, s44, s45")
            e("s_lshl_b32 s45, %s, 6" % s(S_W)); e("v_add_u32 %s, s45, %s" % (v(t0), v(V_L)))
            e("v_lshrrev_b32 %s, 1, %s" % (v(t1), v(t0))); e("v_mul_u32_u24 %s, 3840, %s" % (v(t1), v(t1)))
            e("v_and_b32 %s, 1, %s" % (v(t2), v(t0))); e("v_lshl_add_u32 %s, %s, 7, %s" % (v(t1), v(t2), v(t1)))
            self.vm("buffer_load_dword v190, %s, %s, s44 offen" % (v(t1), s(S_WQ, 4)), "touch")
            lt = self.newlabel("TX"); lj = self.newlabel("TJ")
            e("s_cmp_lg_u32 %s, 0" % s(S_W)); e("s_cbranch_scc1 %s" % lt)
            e("v_add_u32 %s, %d, %s" % (v(t1), 128 * 3840, v(t1)))
            e("buffer_load_dword v191, %s, %s, s44 offen" % (v(t1), s(S_WQ, 4)))
            e("s_branch %s" % lj)
            self.label(lt)
            e("v_subrev_u32 %s, 64, %s" % (v(t0), v(t0))); e("v_min_u32 %s, 159, %s" % (v(t0), v(t0)))
            e("v_mul_u32_u24 %s, 6554, %s" % (v(t1), v(t0))); e("v_lshrrev_b32 %s, 16, %s" % (v(t1), v(t1)))
            e("v_mul_u32_u24 %s, 10, %s" % (v(t2), v(t1))); e("v_sub_u32 %s, %s, %s" % (v(t2), v(t0), v(t2)))
            e("s_and_b32 s44, %s, 7" % s(S_N1)); e("s_lshl_b32 s44, s44, 4"); e("s_lshl_b32 s45, %s, 7" % s(S_M1)); e("s_add_u32 s44, s44, s45")
            e("v_add_u32 %s, s44, %s" % (v(t1), v(t1))); e("v_mul_u32_u24 %s, 1280, %s" % (v(t1), v(t1)))
            e("v_lshl_add_u32 %s, %s, 7, %s" % (v(t1), v(t2), v(t1)))
            e("buffer_load_dword v187, %s, %s, 0 offen" % (v(t1), s(S_X, 4)))
            self.label(lj)
            self.vmq.append("touch")
        for st in range(1, 3): issue_now(st)
        if o.get("cpf", 1):
            e("s_getpc_b64 s[44:45]")
            self.label("L_pc")
            e("s_mov_b32 s50, L_end-L_pc")
            e("v_lshlrev_b32 %s, 7, %s" % (v(t0), v(V_L)))
            e("s_lshl_b32 s46, %s, 14" % s(S_W)); e("v_add_u32 %s, s46, %s" % (v(t0), v(t0)))
            for k in range(2):
                e("v_min_u32 %s, s50, %s" % (v(t1), v(t0)))
                self.vm("global_load_dword v%d, %s, s[44:45]" % (188 + k, v(t1)), "touch")
                if k == 0: e("v_add_u32 %s, 8192, %s" % (v(t0), v(t0)))
        self.stamp()
        self.prologue2()
        self.c("W tile / x fragment read addresses")
        e("v_lshrrev_b32 %s, 2, %s" % (v(t0), v(V_C)))
        e("v_and_b32 %s, 3, %s" % (v(t1), v(V_L)))
        e("v_and_b32 %s, 1, %s" % (v(t2), v(t0))); e("v_and_b32 %s, 2, %s" % (v(t3), v(t0)))
        e("v_lshl_or_b32 %s, %s, 1, %s" % (v(t2), v(t3), v(t2)))
        e("v_and_b32 %s, 1, %s" % (v(t3), v(V_G))); e("v_lshl_or_b32 %s, %s, 3, %s" % (v(t2), v(t3), v(t2)))
        e("v_lshl_add_u32 %s, %s, 3, %s" % (v(t0), v(V_G), v(t0))); e("v_lshlrev_b32 %s, 8, %s" % (v(t0), v(t0)))
        e("s_lshr_b32 s50, %s, 1" % s(S_W)); e("s_and_b32 s45, %s, 1" % s(S_W)); e("s_lshl_b32 s45, s45, 1")
        for i in range(4):
            if i % 2 == 0:
                e("s_xor_b32 s44, s50, %d" % (i >> 1)); e("s_add_u32 s44, s44, s45"); e("s_lshl_b32 s44, s44, 2")
                e("v_add_u32 %s, s44, %s" % (v(t3), v(t1))); e("v_xor_b32 %s, %s, %s" % (v(t3), v(t3), v(t2)))
                e("v_lshl_add_u32 %s, %s, 4, %s" % (v(t3 + 1), v(t3), v(t0)))
            e("v_and_b32 %s, 1, %s" % (v(t3), v(t1)))
            if i & 1: e("v_xor_b32 %s, 1, %s" % (v(t3), v(t3)))
            e("v_lshl_add_u32 %s, %s, 3, %s" % (v(VT + i), v(t3), v(t3 + 1)))
        self.x_frag_addr(VXA, t0, None)
        e("s_lshl_b32 s44, s50, 13"); e("s_add_u32 s44, s44, 16384")
        e("v_add_u32 %s, s44, %s" % (v(VXA), v(VXA))); e("v_add_u32 %s, s44, %s" % (v(VXA + 1), v(VXA + 1)))
        issue_now(3)
        for i in range(4): e("v_mov_b32 %s, 0x3f803f80" % v(VONE + i))
        self.c("pack set-up")
        PS = []
        pe = PS.append
        pe("s_mul_i32 s49, %s, 15" % s(S_M1)); pe("s_add_u32 s49, s49, %s" % s(S_N1))
        pe("s_cmp_lt_u32 s49, 80")
        pe("s_cselect_b32 s64, %s, %s" % (s(S_WO), s(S_W1))); pe("s_cselect_b32 s65, %s, %s" % (s(S_WO + 1), s(S_W1 + 1)))
        pe("s_cselect_b32 s66, %s, %s" % (s(S_WO + 2), s(S_W1 + 2))); pe("s_mov_b32 s67, 0x20000")
        pe("s_mov_b32 s72, 1280"); pe("s_cselect_b32 s72, s72, 3072")
        pe("s_cselect_b32 s73, 19, 23")
        pe("s_cselect_b32 s74, 2, 3")
        pe("s_cselect_b32 s75, 0, 80")
        pe("s_mov_b32 s76, 320"); pe("s_cselect_b32 s76, s76, 384")
        pe("s_cselect_b32 s77, 5, 6")
        pe("s_mov_b32 s78, 20")
        pe("s_mov_b32 s79, 0x%x" % WS_PW3); pe("s_cselect_b32 s79, s79, 0x%x" % WS_PW4)
        pe("s_sub_u32 s50, s49, s75"); pe("s_lshr_b32 s51, s50, s74")
        pe("s_lshl_b32 s52, 1, s74"); pe("s_sub_u32 s52, s52, 1"); pe("s_and_b32 s52, s50, s52")
        for i3 in range(3):
            pe("s_lshl_b32 s54, %s, 6" % s(S_W)); pe("s_add_u32 s54, s54, %d" % (256 * i3))
            pe("v_add_u32 %s, s54, %s" % (v(t0), v(V_L)))
            pe("v_mul_u32_u24 %s, 2731, %s" % (v(136 + i3), v(t0))); pe("v_lshrrev_b32 %s, 16, %s" % (v(136 + i3), v(136 + i3)))
            pe("v_mul_u32_u24 %s, 24, %s" % (v(t2), v(136 + i3))); pe("v_sub_u32 %s, %s, %s" % (v(139 + i3), v(t0), v(t2)))
        pe("v_lshrrev_b32 %s, 2, %s" % (v(t1), v(V_C))); pe("v_lshl_add_u32 %s, %s, 3, %s" % (v(t1), v(V_G), v(t1))); pe("v_mul_u32_u24 %s, 384, %s" % (v(t1), v(t1)))
        pe("v_and_b32 %s, 3, %s" % (v(t0), v(V_L)))
        pe("v_lshl_add_u32 v142, %s, 4, %s" % (v(t0), v(t1))); pe("v_lshl_add_u32 v143, %s, 3, %s" % (v(t0), v(t1)))
        pe("v_lshlrev_b32 v144, 4, %s" % v(V_L))
        pe("s_lshr_b32 s60, %s, 1" % s(S_W))
        pe("s_and_b32 s61, %s, 1" % s(S_W)); pe("s_mul_i32 s61, s61, 3")
        def pack_setup(blk, valid_s):
            pe("s_mul_i32 s53, s51, s72"); pe("s_lshl_b32 s53, s53, 5"); pe("s_mul_i32 s54, s52, s76"); pe("s_add_u32 s53, s53, s54")
            for i3 in range(3):
                pe("v_min_u32 %s, s73, %s" % (v(t2), v(139 + i3)))
                pe("v_mul_lo_u32 %s, %s, s72" % (v(t1), v(136 + i3)))
                pe("v_lshl_add_u32 %s, %s, 4, %s" % (v(t1), v(t2), v(t1)))
                pe("v_add_u32 %s, s53, %s" % (v(VPK + 3 * blk + i3), v(t1)))
            pe("s_lshl_b32 s57, s52, 1"); pe("s_add_u32 s57, s57, s60"); pe("s_mul_i32 s57, s57, s78"); pe("s_add_u32 s57, s57, s51")
            pe("s_mul_i32 s57, s57, s77"); pe("s_lshl_b32 s57, s57, 10"); pe("s_add_u32 s57, s57, s79")
            if valid_s is not None:
                pe("s_cmp_lt_u32 s49, %d" % valid_s); pe("s_cselect_b32 s57, s57, 0x%x" % BIGOFF)
            pe("s_mul_i32 s58, s60, s77"); pe("s_lshl_b32 s58, s58, 5"); pe("s_add_u32 s58, s58, %d" % (PK_OFF + blk * 12288))
            for i3 in range(3):
                pe("s_add_u32 s56, s61, %d" % i3)
                pe("s_lshr_b32 s54, s56, 1"); pe("s_lshl_b32 s54, s54, 6"); pe("s_and_b32 s55, s56, 1"); pe("s_lshl_b32 s55, s55, 3")
                pe("s_add_u32 s54, s54, s55"); pe("s_add_u32 s54, s54, s58")
                pe("s_lshl_b32 s55, s77, 3"); pe("s_add_u32 s55, s55, s56"); pe("s_cmp_eq_u32 s55, 44")
                pe("s_cselect_b64 s[68:69], -1, 0")
                pe("v_cndmask_b32 %s, v142, v143, s[68:69]" % v(t0))
                pe("v_add_u32 %s, s54, %s" % (v(VPA + 3 * blk + i3), v(t0)))
                pe("s_lshl_b32 s54, s56, 10"); pe("s_add_u32 s54, s54, s57"); pe("s_cmp_lt_u32 s56, s77"); pe("s_cselect_b32 s54, s54, 0x%x" % BIGOFF)
                pe("v_add_u32 %s, s54, v144" % v(VPA + 6 + 3 * blk + i3))
        pack_setup(0, None)
        for x in ("s_mov_b32 s72, 1280", "s_mov_b32 s73, 19", "s_mov_b32 s76, 320", "s_mov_b32 s77, 5", "s_mov_b32 s78, 48", "s_mov_b32 s79, 0x%x" % WS_PW5,
                  "s_lshr_b32 s51, s49, 2", "s_and_b32 s52, s49, 3"): pe(x)
        pack_setup(1, 192)
        self.stamp()
        self.c("P1 main loop")
        NS = 20
        def reads(st):
            b = (st % 2) * 32; sl = ((st // 2) % 2) * 32768
            pre = []
            if st % 8 == 4:
                pre = ["v_add_u32 %s, 0x10000, %s" % (v(r), v(r)) for r in (VT, VT + 1, VT + 2, VT + 3, VXA, VXA + 1)]
            elif st % 8 == 0 and st > 0:
                pre = ["v_subrev_u32 %s, 0x10000, %s" % (v(r), v(r)) for r in (VT, VT + 1, VT + 2, VT + 3, VXA, VXA + 1)]
            r = []
            for i in range(4):
                r.append("ds_read_b64_tr_b16 %s, %s offset:%d" % (a(b + i * 4, 2), v(VT + i), sl + (st & 1) * 8192))
                r.append("ds_read_b64_tr_b16 %s, %s offset:%d" % (a(b + i * 4 + 2, 2), v(VT + i), sl + (st & 1) * 8192 + 1024))
            for tt in range(4):
                r.append("ds_read_b128 %s, %s offset:%d" % (a(b + 16 + tt * 4, 4), v(VXA + (st & 1)), sl + tt * 2048))
            return pre, r
        self.vm_wait(("st", 1))
        e("s_barrier")
        pre, r = reads(0)
        for x in pre + r: e(x)
        pending_dma = [(su, ld, ("st", s2)) for s2 in range(4, 8) for su, ld in dma_ops(s2)]
        groups = []; cur = []
        for x in PS:
            cur.append(x)
            if len(cur) >= 6 and not x.startswith(("s_cmp", "s_cselect", "s_mov")): groups.append(cur); cur = []
        if cur: groups.append(cur)
        if o.get("xnopk"): groups = []
        for st in range(NS):
            b = (st % 2) * 32
            e("s_waitcnt lgkmcnt(0)")
            nxt = st + 1
            if nxt < NS and nxt % 2 == 0:
                if ("st", nxt + 1) in self.vmq: self.vm_wait(("st", nxt + 1))
                e("s_barrier")
                if o.get("fine"): self.stamp()
                for s2 in (nxt + 6, nxt + 7):
                    if s2 < NS: pending_dma += [(su, ld, ("st", s2)) for su, ld in dma_ops(s2)]
            if st == 7 and not o.get("xnopk"):
                pk = []
                for blk in range(2):
                    for i3 in range(3):
                        pk.append((["s_add_u32 m0, s47, 0x%x" % (PK_OFF + blk * 12288 + i3 * 4096), "s_nop 0"],
                                   "buffer_load_dwordx4 %s, %s, 0 offen lds" % (v(VPK + 3 * blk + i3), s(64 if blk == 0 else S_W2, 4)), "pk"))
                pending_dma = pk + pending_dma
            if st == 7 and not o.get('xnocs'): assert len(groups) <= 5, len(groups)
            if st == 7 and o.get('xnocs'):
                for gr in groups:
                    for x in gr: e(x)
                groups = []
            pre, r = reads(nxt) if nxt < NS else ([], [])
            pk_rd = st - 13 if 13 <= st < 19 and not o.get("xnopk") else None
            pk_st = st - 14 if 14 <= st < 20 and not o.get("xnopk") else None
            if pk_rd is not None:
                f = PKF + (st % 2) * 4
                r = r + ["ds_read_b64_tr_b16 %s, %s" % (v(f, 2), v(VPA + pk_rd)),
                         "ds_read_b64_tr_b16 %s, %s offset:%d" % (v(f + 2, 2), v(VPA + pk_rd), 4 * 384)]
            mf = []
            for i in range(4):
                for tt in range(4):
                    mf.append("%s %s, %s, %s, %s" % (M, v(acc(i, tt), 4), a(b + i * 4, 4), a(b + 16 + tt * 4, 4), v(acc(i, tt), 4) if st else "0"))
                if i < 2 and not o.get("xnocs"): mf.append("%s %s, %s, %s, %s" % (M, v(VCS + i * 4, 4), a(b + i * 4, 4), v(VONE, 4), v(VCS + i * 4, 4) if st else "0"))
            for x in pre: e(x)
            dpos = (1, 5, 10, 14) if st >= 4 else (0, 2, 4, 7, 9, 11, 13, 15)
            for n, m in enumerate(mf):
                if st >= 1 and n in (3, 6, 8, 12, 15, 17) and groups and not (n in dpos):
                    for x in groups.pop(0): e(x)
                dm = None
                if n in dpos and pending_dma:
                    dm = pending_dma.pop(0)
                    for x in dm[0]: e(x)
                e(m)
                if n < len(r): e(r[n])
                if dm: self.vm(dm[1], dm[2])
                if n == 8 and pk_st is not None:
                    f = PKF + ((st - 1) % 2) * 4
                    self.vm("buffer_store_dwordx4 %s, %s, %s, 0 offen sc1" % (v(f, 4), v(VPA + 6 + pk_st), s(S_WS, 4)), "pkst")
                if n == len(mf) - 2 and st == 15: self.nonce_issue(VN)
                if n == len(mf) - 2 and st == 17:
                    e("s_lshl_b32 s44, %s, 7" % s(S_M1)); e("s_lshr_b32 s45, %s, 1" % s(S_W)); e("s_lshl_b32 s45, s45, 6"); e("s_add_u32 s44, s44, s45")
                    e("v_add_u32 %s, s44, %s" % (v(t0), v(V_C))); e("v_lshlrev_b32 %s, 4, %s" % (v(t0), v(t0)))
                    e("v_add_u32 %s, 0x%x, %s" % (v(19), WS_STAT, v(t0)))
                    for tt in range(4):
                        self.vm("buffer_load_dwordx4 %s, %s, %s, 0 offen offset:%d sc1" % (v(VST + tt * 4, 4), v(19), s(S_WS, 4), tt * 256), "stat")
            assert st < NS - 1 or not pending_dma
        self.stamp()
        self.c("P1 epilogue")
        e("s_lshr_b32 s44, %s, 1" % s(S_W)); e("s_and_b32 s45, %s, 1" % s(S_W)); e("s_lshl_b32 s45, s45, 1")
        e("s_add_u32 s46, s44, s45")
        e("s_xor_b32 s44, s44, 1"); e("s_add_u32 s50, s44, s45")
        e("s_lshl_b32 s51, s46, 7"); e("s_add_u32 s51, s51, 0x%x" % CS_OFF)
        e("v_lshlrev_b32 %s, 4, %s" % (v(t0), v(V_G)))
        e("v_add_u32 %s, s51, %s" % (v(t1), v(t0)))
        e("v_cmp_eq_u32 vcc, 0, %s" % v(V_C))
        e("s_and_saveexec_b64 s[52:53], vcc")
        e("ds_write_b128 %s, %s" % (v(t1), v(VCS, 4)))
        e("ds_write_b128 %s, %s offset:64" % (v(t1), v(VCS + 4, 4)))
        e("s_mov_b64 exec, s[52:53]")
        e("s_mov_b32 s61, s46")
        self.nonce_get(VN)
        self.vm_wait("stat")
        l0 = self.newlabel("SR"); l1 = self.newlabel("SD")
        e("s_mov_b32 s44, 0")
        self.label(l0)
        e("s_mov_b64 s[52:53], -1")
        for tt in range(4):
            e("v_cmp_eq_u32 s[54:55], %s, %s" % (s(S_NONCE), v(VST + tt * 4 + 2)))
            e("v_cmp_eq_u32 s[56:57], %s, %s" % (s(S_NONCE + 1), v(VST + tt * 4 + 3)))
            e("s_and_b64 s[52:53], s[52:53], s[54:55]"); e("s_and_b64 s[52:53], s[52:53], s[56:57]")
        e("s_cmp_eq_u64 s[52:53], -1"); e("s_cbranch_scc1 %s" % l1)
        e("s_add_u32 s44, s44, 1"); e("s_cmp_gt_u32 s44, 20000"); e("s_cbranch_scc1 %s" % l1)
        for tt in range(4):
            e("buffer_load_dwordx4 %s, %s, %s, 0 offen offset:%d sc1" % (v(VST + tt * 4, 4), v(19), s(S_WS, 4), tt * 256))
        e("s_waitcnt vmcnt(0)")
        e("s_branch %s" % l0)
        self.label(l1)
        e("s_waitcnt lgkmcnt(0)")
        e("s_barrier")
        CSV = 146
        e("s_lshl_b32 s52, s50, 7"); e("s_add_u32 s52, s52, 0x%x" % CS_OFF)
        e("v_add_u32 %s, s52, %s" % (v(t1), v(t0)))
        e("ds_read_b128 %s, %s" % (v(CSV + 8, 4), v(t1)))
        e("ds_read_b128 %s, %s offset:64" % (v(CSV + 12, 4), v(t1)))
        for i in range(8): e("v_mov_b32 %s, %s" % (v(CSV + i), v(VCS + i)))
        qs = math.log2(math.e) / math.sqrt(20.0)
        e("s_cmp_lt_u32 %s, 5" % s(S_N1)); e("s_mov_b32 s53, 0x3f800000"); e("s_cselect_b32 s53, 0x%x, s53" % f2u(qs))
        for tt in range(4):
            e("v_mul_f32 %s, s53, %s" % (v(VST + tt * 4 + 1), v(VST + tt * 4 + 1)))
            e("v_xor_b32 %s, 0x80000000, %s" % (v(VST + tt * 4), v(VST + tt * 4)))
        e("v_lshlrev_b32 %s, 11, %s" % (v(t2), v(V_G))); e("v_add_u32 %s, %s, %s" % (v(t2), v(t2), v(V_C))); e("v_lshlrev_b32 %s, 4, %s" % (v(t2), v(t2)))
        e("s_lshl_b32 s54, %s, 7" % s(S_M1)); e("s_lshr_b32 s55, %s, 1" % s(S_W)); e("s_lshl_b32 s55, s55, 6"); e("s_add_u32 s54, s54, s55")
        e("s_lshl_b32 s55, %s, 4" % s(S_N1))
        for q, sp in ((0, 61), (1, 50)):
            e("s_lshl_b32 s56, %s, 2" % s(sp)); e("s_add_u32 s56, s56, s55"); e("s_lshl_b32 s56, s56, 11"); e("s_add_u32 s56, s56, s54")
            e("s_lshl_b32 s56, s56, 4"); e("s_add_u32 %s, s56, 0x%x" % (s(58 + q), WS_QKV))
        e("s_waitcnt lgkmcnt(0)")
        OUTR = 188
        n = 0
        for q in range(2):
            for tt in range(4):
                nm = VST + tt * 4
                P = []
                for hf in range(2):
                    i = 2 * q + hf; A_ = acc(i, tt)
                    for h in range(2):
                        e("v_pk_fma_f32 %s, %s, %s, %s op_sel_hi:[1,0,1]" % (v(A_ + 2 * h, 2), v(CSV + i * 4 + 2 * h, 2), v(nm, 2), v(A_ + 2 * h, 2)))
                    for h in range(2):
                        e("v_pk_mul_f32 %s, %s, %s op_sel:[0,1] op_sel_hi:[1,1]" % (v(A_ + 2 * h, 2), v(A_ + 2 * h, 2), v(nm, 2)))
                    e("v_cvt_pk_bf16_f32 %s, %s, %s" % (v(A_), v(A_), v(A_ + 1)))
                    e("v_cvt_pk_bf16_f32 %s, %s, %s" % (v(A_ + 1), v(A_ + 2), v(A_ + 3)))
                    P.append(A_)
                O4 = OUTR + (n % 4) * 4
                e("v_cndmask_b32 %s, %s, %s, %s" % (v(O4), v(P[0]), v(P[1]), s(S_ODD, 2)))
                e("v_cndmask_b32 %s, %s, %s, %s" % (v(O4 + 1), v(P[0] + 1), v(P[1] + 1), s(S_ODD, 2)))
                e("v_cndmask_b32 %s, %s, %s, %s" % (v(O4 + 2), v(P[1]), v(P[0]), s(S_ODD, 2)))
                e("v_cndmask_b32 %s, %s, %s, %s" % (v(O4 + 3), v(P[1] + 1), v(P[0] + 1), s(S_ODD, 2)))
                self.vm("buffer_store_dwordx4 %s, %s, %s, %s offen offset:%d sc1" % (v(O4, 4), v(t2), s(S_WS, 4), s(58 + q), tt * 256), "qkvst")
                n += 1
        e("s_branch %s" % lab_j)
        self.label(lab_h)
        self.prologue2()
        self.p1_helper()
        self.label(lab_j)
        self.stamp()
        e("s_barrier")
        e("s_lshl_b32 s89, %s, 4" % s(S_M1)); e("s_add_u32 s89, s89, %s" % s(S_N1))
        self.vmq = []

    def wait_all(self, phase, vt, barrier=True, allwaves=False):
        e = self.e
        l = self.newlabel("WA")
        if not allwaves:
            e("s_cmp_lg_u32 %s, 0" % s(S_W)); e("s_cbranch_scc1 %s" % l)
        e("v_lshlrev_b32 %s, 8, %s" % (v(vt), v(V_L)))
        if phase: e("v_add_u32 %s, 0x%x, %s" % (v(vt), WS_FLAGS + phase * 16384, v(vt)))
        self.flag_poll(vt, vt + 2, nloads=4, stride=64)
        self.label(l)
        if barrier: e("s_barrier")
    def poll_group(self, phase, vt):
        e = self.e
        e("s_lshl_b32 s52, %s, 10" % s(S_M3)); e("s_add_u32 s52, s52, 0x%x" % (WS_FLAGS + phase * 16384))
        e("v_lshlrev_b32 %s, 6, %s" % (v(vt), v(V_C)))
        e("v_add_u32 %s, s52, %s" % (v(vt), v(vt)))
        self.flag_poll(vt, vt + 2)
    def job4(self, sbase, blk, pos, tag, vl16=4):
        return (["s_add_u32 m0, %s, 0x%x" % (s(S_W1K), pos * 1024), "s_add_u32 %s, %s, 0x%x" % (s(S_SOFF), s(sbase), blk * 1024)],
                "buffer_load_dwordx4 %s, %s, %s offen sc1 lds" % (v(vl16), s(S_WS, 4), s(S_SOFF)), tag)
    def emit_job(self, j):
        for x in j[0]: self.e(x)
        self.vm(j[1], j[2])
    def dma3(self, sbase, blk0, pos0, njobs, tag, vl16=4):
        e = self.e
        e("s_sub_u32 s49, %s, 1024" % s(sbase))
        for k in range(njobs):
            e("s_add_u32 m0, %s, 0x%x" % (s(S_W3), (pos0 + 3 * k) * 1024))
            e("s_add_u32 %s, s49, 0x%x" % (s(S_SOFF), (blk0 + 3 * k) * 1024))
            self.vm("buffer_load_dwordx4 %s, %s, %s offen sc1 lds" % (v(vl16), s(S_WS, 4), s(S_SOFF)), tag)
    def group_flag_idx(self):
        self.e("s_lshl_b32 s52, %s, 4" % s(S_M3)); self.e("s_add_u32 s52, s52, %s" % s(S_J3))

    def p2(self):
        e = self.e; o = self.o
        KB, VB, BB, QB, OB = 0, 30720, 62080, 69632, 150 * 1024
        T = 200
        t0, t1, t2, t3 = T, T + 1, T + 2, T + 3
        VL16 = 4
        VKA = 5
        VVA = 8
        VMF, VML = 12, 16
        VQ = 20
        OA = 36
        SB = [56, 124]
        NEG = f2u(-1e30)
        self.c("P2 set-up")
        e("v_lshlrev_b32 %s, 4, %s" % (v(VL16), v(V_L)))
        e("s_lshl_b32 %s, %s, 10" % (s(S_W1K), s(S_W))); e("s_sub_u32 %s, %s, 1024" % (s(S_W3), s(S_W1K)))
        e("s_lshr_b32 %s, %s, 1" % (s(S_NQ), s(S_J3)))
        for sb, sk, sz, base in ((S_B3, S_NQ, 102400, WS_PW3), (S_B4, S_J3, 122880, WS_PW4), (S_B5, S_NQ, 245760, WS_PW5)):
            e("s_mul_i32 %s, %s, %d" % (s(sb), s(sk), sz)); e("s_add_u32 %s, %s, 0x%x" % (s(sb), s(sb), base)); e("s_add_u32 %s, %s, %s" % (s(sb), s(sb), s(S_W1K)))
        e("s_lshl_b32 %s, %s, 3" % (s(S_TI), s(S_M3))); e("s_and_b32 s52, %s, 1" % s(S_J3)); e("s_lshl_b32 s52, s52, 2")
        e("s_add_u32 %s, %s, s52" % (s(S_TI), s(S_TI))); e("s_add_u32 %s, %s, %s" % (s(S_TI), s(S_TI), s(S_W)))
        e("s_lshl_b32 s52, %s, 7" % s(S_M3)); e("s_sub_i32 s52, 256, s52")
        e("v_mov_b32 %s, 0xf149" % v(t0 + 4))
        e("v_mov_b32 %s, 0" % v(t0 + 9)); e("v_mov_b32 %s, 0x3f80" % v(t0 + 10)); e("v_mov_b32 %s, 0" % v(t0 + 11))
        e("v_cmp_gt_i32 vcc, s52, v0")
        e("v_cndmask_b32 %s, 0, %s, vcc" % (v(t0 + 8), v(t0 + 4)))
        e("v_lshlrev_b32 %s, 4, v0" % v(t1)); e("v_add_u32 %s, %d, %s" % (v(t1), BB, v(t1)))
        e("ds_write_b128 %s, %s" % (v(t1), v(t0 + 8, 4)))
        e("v_add_u32 %s, 256, v0" % v(t2))
        e("v_cmp_gt_i32 vcc, s52, %s" % v(t2))
        e("v_cndmask_b32 %s, 0, %s, vcc" % (v(t0 + 12), v(t0 + 4)))
        e("v_mov_b32 %s, 0" % v(t0 + 13)); e("v_mov_b32 %s, 0x3f80" % v(t0 + 14)); e("v_mov_b32 %s, 0" % v(t0 + 15))
        e("v_cmp_gt_u32 vcc, 160, v0")
        e("s_and_saveexec_b64 s[54:55], vcc")
        e("ds_write_b128 %s, %s offset:4096" % (v(t1), v(t0 + 12, 4)))
        e("s_mov_b64 exec, s[54:55]")
        e("s_mul_i32 s55, %s, 5" % s(S_J3))
        e("s_lshl_b32 s56, %s, 7" % s(S_M3)); e("s_sub_i32 s56, s56, 256")
        e("s_cmp_ge_u32 %s, 2" % s(S_W))
        e("s_cselect_b32 s57, -2, 4")
        e("s_cselect_b32 s70, 26624, 0")
        e("s_cselect_b32 s71, 128, 0")
        e("s_add_i32 s57, s57, %s" % s(S_W))
        for k, (reg, add) in enumerate(((S_W, 0), (57, 0), (S_W, 2))):
            e("s_add_i32 s58, %s, %d" % (s(reg), add)); e("s_lshl_b32 s58, s58, 6"); e("s_add_i32 s58, s58, s56"); e("s_cmp_lt_i32 s58, 0")
            e("s_cselect_b32 %s, 0x%x, 0" % (s(64 + k), BIGOFF))
        e("s_add_u32 s65, s65, s70")
        e("s_lshl_b32 s56, s56, 4"); e("s_add_u32 s56, s56, %s" % s(S_W1K))
        e("s_add_u32 s58, s55, 80"); e("s_lshl_b32 s58, s58, 15"); e("s_add_u32 s58, s58, 0x%x" % WS_QKV); e("s_add_u32 s68, s58, s56")
        e("s_add_u32 s69, s68, 0x%x" % (80 << 15))
        e("s_lshr_b32 s58, %s, 1" % s(S_W)); e("s_add_u32 s58, s58, s55"); e("s_lshl_b32 s58, s58, 15"); e("s_lshl_b32 s59, %s, 11" % s(S_M3)); e("s_add_u32 s58, s58, s59")
        e("s_and_b32 s59, %s, 1" % s(S_W)); e("s_lshl_b32 s59, s59, 10"); e("s_add_u32 s58, s58, s59"); e("s_add_u32 s72, s58, 0x%x" % WS_QKV)
        e("v_lshrrev_b32 %s, 3, %s" % (v(t0), v(V_L))); e("v_and_b32 %s, 3, %s" % (v(t0), v(t0))); e("v_min_u32 %s, 2, %s" % (v(t0), v(t0)))
        e("v_lshrrev_b32 %s, 1, %s" % (v(t1), v(V_L))); e("v_and_b32 %s, 3, %s" % (v(t1), v(t1))); e("v_min_u32 %s, 2, %s" % (v(t1), v(t1)))
        e("v_and_b32 %s, 1, %s" % (v(t2), v(V_L))); e("v_lshlrev_b32 %s, 2, %s" % (v(t2), v(t2)))
        e("v_mul_u32_u24 %s, 80, %s" % (v(t0), v(t0))); e("v_add3_u32 %s, %s, %s, s55" % (v(t0), v(t0), v(t2))); e("v_lshrrev_b32 %s, 4, %s" % (v(t0), v(t0)))
        e("s_sub_i32 s58, %s, 2" % s(S_M3)); e("v_add_u32 %s, s58, %s" % (v(t1), v(t1))); e("v_max_i32 %s, 0, %s" % (v(t1), v(t1)))
        e("v_lshl_add_u32 %s, %s, 4, %s" % (v(t0), v(t1), v(t0))); e("v_lshlrev_b32 %s, 6, %s" % (v(T + 19), v(t0)))
        self.c("fragment addresses and masks")
        e("s_lshl_b32 s57, %s, 5" % s(S_W)); e("v_add_u32 %s, s57, %s" % (v(t0), v(V_C))); e("v_lshlrev_b32 %s, 4, %s" % (v(t0), v(t0)))
        e("v_cmp_eq_u32 s[58:59], 3, %s" % v(V_G)); e("v_cmp_eq_u32 s[60:61], 2, %s" % v(V_G))
        e("v_mul_u32_u24 %s, 6144, %s" % (v(t1), v(V_G)))
        e("v_mov_b32 %s, %d" % (v(t2), BB))
        e("v_cndmask_b32 %s, %s, %s, s[58:59]" % (v(VKA), v(t1), v(t2)))
        e("v_add_u32 %s, %d, %s" % (v(t3), 3 * 6144, v(t1)))
        e("v_mov_b32 %s, %d" % (v(t0 + 4), 2 * 6144))
        e("v_cndmask_b32 %s, %s, %s, s[60:61]" % (v(t3), v(t3), v(t0 + 4)))
        e("v_cndmask_b32 %s, %s, %s, s[58:59]" % (v(VKA + 1), v(t3), v(t2)))
        e("v_add_u32 %s, %s, %s" % (v(VKA), v(VKA), v(t0))); e("v_add_u32 %s, %s, %s" % (v(VKA + 1), v(VKA + 1), v(t0)))
        VQA = 52
        e("v_lshlrev_b32 %s, 11, %s" % (v(t1), v(V_G)))
        e("v_cndmask_b32 %s, %s, 0, s[58:59]" % (v(VQA), v(t1)))
        e("v_add_u32 %s, %d, %s" % (v(t3), 3 * 2048, v(t1))); e("v_mov_b32 %s, %d" % (v(t0 + 4), 2 * 2048))
        e("v_cndmask_b32 %s, %s, %s, s[60:61]" % (v(t3), v(t3), v(t0 + 4)))
        e("v_cndmask_b32 %s, %s, 0, s[58:59]" % (v(VQA + 1), v(t3)))
        e("v_add_u32 %s, %d, %s" % (v(t3), QB, v(t0)))
        for h in range(2): e("v_add_u32 %s, %s, %s" % (v(VQA + h), v(VQA + h), v(t3)))
        e("v_lshrrev_b32 %s, 2, %s" % (v(t0), v(V_C))); e("v_lshl_add_u32 %s, %s, 2, %s" % (v(t0), v(V_G), v(t0)))
        e("v_add_u32 %s, s57, %s" % (v(t0), v(t0))); e("v_lshlrev_b32 %s, 4, %s" % (v(t0), v(t0)))
        e("v_and_b32 %s, 3, %s" % (v(t1), v(V_L)))
        for h in range(2):
            e("v_add_u32 %s, %d, %s" % (v(t2), 5 * h, v(t1)))
            e("v_lshrrev_b32 %s, 1, %s" % (v(t3), v(t2))); e("v_mul_u32_u24 %s, 6272, %s" % (v(t3), v(t3)))
            e("v_and_b32 %s, 1, %s" % (v(t2), v(t2))); e("v_lshl_add_u32 %s, %s, 3, %s" % (v(t3), v(t2), v(t3)))
            e("v_add_u32 %s, %s, %s" % (v(VVA + 2 * h), v(t3), v(t0)))
            e("v_add_u32 %s, %d, %s" % (v(VVA + 2 * h), VB, v(VVA + 2 * h)))
            X = 5 * h + 4
            e("v_and_b32 %s, 1, %s" % (v(t2), v(t1))); e("v_cmp_eq_u32 vcc, 1, %s" % v(t2))
            e("v_mov_b32 %s, %d" % (v(t3), VB + (X >> 1) * 6272 + (X & 1) * 8)); e("v_mov_b32 %s, %d" % (v(t0 + 4), BB + 8))
            e("v_cndmask_b32 %s, %s, %s, vcc" % (v(t3), v(t3), v(t0 + 4)))
            e("v_add_u32 %s, %s, %s" % (v(VVA + 2 * h + 1), v(t3), v(t0)))
        e("v_lshlrev_b32 %s, 2, %s" % (v(t0), v(V_G))); e("v_mov_b32 %s, 0x%x" % (v(t1), NEG))
        for i in range(4):
            e("v_add_u32 %s, %d, %s" % (v(t2), i, v(t0)))
            e("v_cmp_gt_u32 vcc, %s, %s" % (v(t2), v(V_C)))
            e("v_cndmask_b32 %s, %s, 0, vcc" % (v(VMF + i), v(t1)))
            e("v_cndmask_b32 %s, 0, %s, vcc" % (v(VML + i), v(t1)))
        VOW = 54
        e("s_mul_i32 %s, %s, 2560" % (s(S_OST), s(S_W))); e("s_add_u32 %s, %s, %d" % (s(S_OST), s(S_OST), OB))
        e("v_mul_u32_u24 %s, 80, %s" % (v(VOW), v(V_C))); e("v_lshl_add_u32 %s, %s, 3, %s" % (v(VOW), v(V_G), v(VOW))); e("v_add_u32 %s, %s, %s" % (v(VOW), s(S_OST), v(VOW)))
        e("s_waitcnt vmcnt(0) lgkmcnt(0)")
        e("s_barrier")
        self.flag_set(0, 89, T + 20)
        self.stamp()
        lw = self.newlabel("WD")
        e("s_cmp_lg_u32 %s, 0" % s(S_W)); e("s_cbranch_scc1 %s" % lw)
        self.flag_poll(T + 19, T + 22)
        self.label(lw)
        e("s_barrier")
        self.stamp()
        self.vmq = []
        def kvjob(base_s, ldsb, pitch, u, pat, tag):
            g = u * 32768 + (0, 4096, 32768 + 2048)[pat]
            l = ldsb + u * pitch + (0, 4096, pitch + 2048)[pat]
            e("s_add_u32 m0, %s, %d" % (s(S_W1K), l))
            if pat == 1 and pitch != 6144: e("s_add_u32 m0, m0, s71")
            e("s_add_u32 %s, %s, %s" % (s(S_SOFF), s(base_s), s(64 + pat)))
            if g: e("s_add_u32 %s, %s, %d" % (s(S_SOFF), s(S_SOFF), g))
            self.vm("buffer_load_dwordx4 %s, %s, %s offen sc1 lds" % (v(VL16), s(S_WS, 4), s(S_SOFF)), tag)
        def halfjob(base_s, ldsb, pitch, u, tag):
            e("s_cmp_ge_u32 %s, 2" % s(S_W))
            e("s_cselect_b32 s58, %d, %d" % (156 * 1024 - 2048, 0) if False else "s_mov_b32 s58, %d" % (ldsb + u * pitch + 4096))
            e("s_cselect_b32 s58, %d, s58" % (76 * 1024))
            e("s_add_u32 m0, %s, s58" % s(S_W1K))
            e("s_cselect_b32 s58, 0x%x, s65" % BIGOFF if False else "s_cmp_ge_u32 %s, 2" % s(S_W))
            e("s_cselect_b32 s58, 0x%x, s65" % BIGOFF)
            e("s_add_u32 %s, %s, s58" % (s(S_SOFF), s(base_s))); e("s_add_u32 %s, %s, %d" % (s(S_SOFF), s(S_SOFF), u * 32768 + 4096))
            self.vm("buffer_load_dwordx4 %s, %s, %s offen sc1 lds" % (v(VL16), s(S_WS, 4), s(S_SOFF)), tag)
        def qjob(u0, tag):
            e("s_add_u32 m0, %s, %d" % (s(S_W1K), QB + u0 * 2048))
            if u0 == 4:
                e("s_cmp_ge_u32 %s, 2" % s(S_W)); e("s_cselect_b32 s58, 0x%x, 0" % BIGOFF); e("s_add_u32 %s, s72, s58" % s(S_SOFF))
                e("s_add_u32 %s, %s, %d" % (s(S_SOFF), s(S_SOFF), u0 * 32768))
            else:
                e("s_add_u32 %s, s72, %d" % (s(S_SOFF), u0 * 32768))
            self.vm("buffer_load_dwordx4 %s, %s, %s offen sc1 lds" % (v(VL16), s(S_WS, 4), s(S_SOFF)), tag)
        for u in (0, 2):
            for pat in range(3): kvjob(68, KB, 6144, u, pat, "kq")
            qjob(u, "kq")
        qjob(4, "kq")
        for u in (0, 2):
            for pat in range(3): kvjob(69, VB, 6272, u, pat, "rest")
        for base_s, ldsb, pitch in ((68, KB, 6144), (69, VB, 6272)):
            kvjob(base_s, ldsb, pitch, 4, 0, "rest"); halfjob(base_s, ldsb, pitch, 4, "rest")
        lw = self.newlabel("FP")
        e("v_lshlrev_b32 %s, 8, %s" % (v(T + 20), v(V_L)))
        e("s_lshr_b32 s58, %s, 1" % s(S_M3)); e("s_lshr_b32 s59, s58, 1"); e("s_lshl_b32 s59, s59, 6"); e("s_and_b32 s58, s58, 1"); e("s_lshl_b32 s58, s58, 3"); e("s_add_u32 s59, s59, s58")
        e("s_and_b32 s58, %s, 1" % s(S_M3)); e("s_lshl_b32 s58, s58, 5"); e("s_add_u32 s59, s59, s58")
        e("v_lshrrev_b32 %s, 3, %s" % (v(T + 18), v(V_C))); e("v_lshlrev_b32 %s, 4, %s" % (v(T + 18), v(T + 18)))
        e("v_and_b32 %s, 7, %s" % (v(T + 30), v(V_C))); e("v_add3_u32 %s, %s, %s, s59" % (v(T + 18), v(T + 18), v(T + 30)))
        e("v_lshlrev_b32 %s, 6, %s" % (v(T + 18), v(T + 18)))
        e("s_cmp_lg_u32 %s, 0" % s(S_W)); e("s_cbranch_scc1 %s" % lw)
        for k in range(4):
            e("buffer_load_dwordx2 %s, %s, %s, 0 offen offset:%d sc1" % (v(T + 22 + 2 * k, 2), v(T + 20), s(S_WS, 4), k * 64))
        e("buffer_load_dwordx4 %s, %s, %s, 0 offen sc1" % (v(T + 32, 4), v(T + 18), s(S_WS, 4)))
        e("s_waitcnt vmcnt(15)")
        e("s_branch %s_j" % lw)
        self.label(lw)
        self.vm_wait("kq")
        self.label(lw + "_j")
        e("s_waitcnt lgkmcnt(0)")
        e("s_barrier")
        self.stamp()
        self.c("fragment loads")
        KF = [0, 72]; VF = [144, 0]
        def k_reads(h): return ["ds_read_b128 %s, %s offset:%d" % (a(KF[h] + B * 4, 4), v(VKA + h), B * 256) for B in range(18)]
        def v_reads(h):
            r = []
            for p in range(9):
                for dt in range(2):
                    d = VF[h] + (p * 2 + dt) * 4
                    r.append("ds_read_b64_tr_b16 %s, %s offset:%d" % (a(d, 2), v(VVA + 2 * h + dt), p * 512))
                    r.append("ds_read_b64_tr_b16 %s, %s offset:%d" % (a(d + 2, 2), v(VVA + 2 * h + dt), p * 512 + 256))
            return r
        for h in range(2):
            for qs in range(2):
                e("ds_read_b128 %s, %s offset:%d" % (v(VQ + (h * 2 + qs) * 4, 4), v(VQA + h), qs * 256))
        for x in k_reads(0)[:11]: e(x)
        e("v_cmp_eq_u32 s[58:59], 3, %s" % v(V_G)); e("v_cmp_eq_u32 s[60:61], 2, %s" % v(V_G))
        e("s_waitcnt lgkmcnt(11)")
        e("v_mov_b32 %s, 0x3f80" % v(t1))
        for h in range(2):
            for qs in range(2):
                q = VQ + (h * 2 + qs) * 4
                z = (2, 3) if h == 0 else (0, 1)
                for i in z: e("v_cndmask_b32 %s, %s, 0, s[60:61]" % (v(q + i), v(q + i)))
                e("v_cndmask_b32 %s, %s, %s, s[58:59]" % (v(q), v(q), v(t1)))
                for i in range(1, 4): e("v_cndmask_b32 %s, %s, 0, s[58:59]" % (v(q + i), v(q + i)))
        e("s_waitcnt lgkmcnt(8)")
        for x in k_reads(0)[11:]: e(x)
        tasks = [(0, 0), (0, 1), (1, 0), (1, 1)]
        def A(ti):
            h, qs = tasks[ti]; S = SB[ti % 2]; r = []
            for b in range(17):
                C = v(VMF, 4) if b == 0 else (v(VML, 4) if b == 16 else "0")
                r.append("%s %s, %s, %s, %s" % (M, v(S + b * 4, 4), a(KF[h] + (qs + b) * 4, 4), v(VQ + (h * 2 + qs) * 4, 4), C))
            return r
        MX = T + 8
        def Bst(ti):
            S = SB[ti % 2]
            vals = [S + i for i in range(68)]
            ins = []
            for c4 in range(4):
                ins.append("v_max3_f32 %s, %s, %s, %s" % (v(MX + c4), v(vals[3 * c4]), v(vals[3 * c4 + 1]), v(vals[3 * c4 + 2])))
            k = 12; ch = 0
            while k < 68:
                ins.append("v_max3_f32 %s, %s, %s, %s" % (v(MX + ch), v(MX + ch), v(vals[k]), v(vals[k + 1]))); k += 2; ch = (ch + 1) % 4
            groups = [ins[i:i + 2] for i in range(0, len(ins), 2)]
            tail = ["v_max3_f32 %s, %s, %s, %s" % (v(MX), v(MX), v(MX + 1), v(MX + 2)), "v_max_f32 %s, %s, %s" % (v(MX), v(MX), v(MX + 3)),
                    "v_mov_b32 %s, %s" % (v(MX + 1), v(MX)), "s_nop 0", "v_permlane16_swap_b32 %s, %s" % (v(MX), v(MX + 1)), "v_max_f32 %s, %s, %s" % (v(MX), v(MX), v(MX + 1)),
                    "v_mov_b32 %s, %s" % (v(MX + 1), v(MX)), "s_nop 0", "v_permlane32_swap_b32 %s, %s" % (v(MX), v(MX + 1)), "v_max_f32 %s, %s, %s" % (v(MX + 4), v(MX), v(MX + 1))]
            return groups, tail
        def Cst(ti):
            h, qs = tasks[ti]; S = SB[ti % 2]
            def adds(b):
                q = S + b * 4
                return ["v_pk_add_f32 %s, %s, %s op_sel_hi:[1,0] neg_lo:[0,1] neg_hi:[0,1]" % (v(q + 2 * hh, 2), v(q + 2 * hh, 2), v(MX + 4, 2)) for hh in range(2)]
            def cvts(b):
                q = S + b * 4; B = qs + b; r = []
                if B % 2 == 0:
                    r.append("v_cvt_pk_bf16_f32 %s, %s, %s" % (v(q), v(q), v(q + 1)))
                    r.append("v_cvt_pk_bf16_f32 %s, %s, %s" % (v(q + 1), v(q + 2), v(q + 3)))
                    if B == 16 and qs == 0: r += ["v_mov_b32 %s, 0" % v(q + 2), "v_mov_b32 %s, 0" % v(q + 3)]
                elif b == 0:
                    r.append("v_cvt_pk_bf16_f32 %s, %s, %s" % (v(q + 3), v(q + 2), v(q + 3)))
                    r.append("v_cvt_pk_bf16_f32 %s, %s, %s" % (v(q + 2), v(q), v(q + 1)))
                    r += ["v_mov_b32 %s, 0" % v(q), "v_mov_b32 %s, 0" % v(q + 1)]
                else:
                    r.append("v_cvt_pk_bf16_f32 %s, %s, %s" % (v(q - 2), v(q), v(q + 1)))
                    r.append("v_cvt_pk_bf16_f32 %s, %s, %s" % (v(q - 1), v(q + 2), v(q + 3)))
                return r
            head = adds(0)
            groups = []
            for b in range(17):
                q = S + b * 4
                groups.append(["v_exp_f32 %s, %s" % (v(q + i), v(q + i)) for i in range(4)] + (adds(b + 1) if b < 16 else []) + cvts(b))
            return head, groups
        def pfrag(ti, p):
            h, qs = tasks[ti]; S = SB[ti % 2]
            if qs == 0: return S + (2 * p) * 4
            return S + (0 if p == 0 else (2 * p - 1)) * 4
        def D(ti):
            h, qs = tasks[ti]; r = []
            for p in range(9):
                for dt in range(2):
                    d = OA + (ti % 2) * 8 + dt * 4
                    r.append("%s %s, %s, %s, %s" % (M, v(d, 4), a(VF[h] + (p * 2 + dt) * 4, 4), v(pfrag(ti, p), 4), v(d, 4) if p else "0"))
            return r
        def E(ti):
            h, qs = tasks[ti]; d = OA + (ti % 2) * 8; L = T + 14; r = []
            r += ["v_mov_b32 %s, %s" % (v(L), v(d + 4)), "v_mov_b32 %s, %s" % (v(L + 1), v(d + 4)),
                  "v_permlane16_swap_b32 %s, %s" % (v(L), v(L + 1)), "v_rcp_f32 %s, %s" % (v(L + 2), v(L + 1))]
            for hh in range(2):
                r.append("v_pk_mul_f32 %s, %s, %s op_sel_hi:[1,0]" % (v(d + 2 * hh, 2), v(d + 2 * hh, 2), v(L + 2, 2)))
                r.append("v_pk_mul_f32 %s, %s, %s op_sel_hi:[1,0]" % (v(d + 4 + 2 * hh, 2), v(d + 4 + 2 * hh, 2), v(L + 2, 2)))
            r += ["v_cvt_pk_bf16_f32 %s, %s, %s" % (v(d), v(d), v(d + 1)), "v_cvt_pk_bf16_f32 %s, %s, %s" % (v(d + 1), v(d + 2), v(d + 3)),
                  "v_cvt_pk_bf16_f32 %s, %s, %s" % (v(d + 4), v(d + 4), v(d + 5)), "v_cvt_pk_bf16_f32 %s, %s, %s" % (v(d + 5), v(d + 6), v(d + 7)),
                  "ds_write_b64 %s, %s offset:%d" % (v(VOW), v(d, 2), qs * 1280 + h * 40),
                  "s_mov_b64 exec, 0xffff",
                  "ds_write_b64 %s, %s offset:%d" % (v(VOW), v(d + 4, 2), qs * 1280 + h * 40 + 32),
                  "s_mov_b64 exec, -1"]
            return r
        def stage(ti, mB, mC, lds, jobs, mid=None):
            groups, tail = Bst(ti)
            mB = list(mB); mC = list(mC); lds = list(lds); jobs = list(jobs); njobs = len(jobs)
            for gi, gr in enumerate(groups):
                if mB: e(mB.pop(0))
                for x in gr: e(x)
            for x in mB: e(x)
            for x in tail: e(x)
            if mid: mid()
            head, cg = Cst(ti)
            for x in head: e(x)
            per = (len(lds) + 16) // 17
            for b, gr in enumerate(cg):
                if mC: e(mC.pop(0))
                jb = None
                if jobs and (b * njobs) // 17 != ((b + 1) * njobs) // 17:
                    jb = jobs.pop(0)
                    for x in jb[0]: e(x)
                for x in gr[:4]: e(x)
                if lds: e("s_waitcnt lgkmcnt(%d)" % (15 - per))
                for _ in range(per):
                    if lds: e(lds.pop(0))
                for x in gr[4:]: e(x)
                if jb: self.vm(jb[1], jb[2])
            for x in mC: e(x)
            for x in lds: e(x)
            for jb in jobs: self.emit_job(jb)
        W0 = ["s_waitcnt lgkmcnt(0)"]
        def chunked(r):
            out = []
            return list(r)
        wo_a = [self.job4(S_B3, 4 * k, 80 + 4 * k, "w3a") for k in range(17)]
        wo_b = [self.job4(S_B3, 68 + 4 * k, 4 * k, "w3b") for k in range(8)]
        w1_a = [self.job4(S_B4, 4 * k, 32 + 4 * k, "w4a") for k in range(12)]
        def touch(sbase, first_blk, n8k, who, nshare):
            r = []
            for k in range((n8k + 3) // 4):
                su = ["s_mul_i32 s58, %s, %d" % (s(who), n8k * 8192), "s_add_u32 s58, s58, %s" % s(sbase), "s_mul_i32 s59, %s, 7168" % s(S_W),
                      "s_add_u32 s58, s58, s59", "s_add_u32 %s, s58, %d" % (s(S_SOFF), first_blk * 1024 + k * 32768)]
                r.append((su, "buffer_load_dword v%d, v198, %s, %s offen" % (192 + (self.ntouch + k) % 6, s(S_WS, 4), s(S_SOFF)), "touch"))
            self.ntouch += (n8k + 3) // 4
            return r
        e("v_lshlrev_b32 v198, 7, %s" % v(V_L))
        e("s_and_b32 s73, %s, 1" % s(S_M3))
        e("s_lshl_b32 s74, s73, 1"); e("s_and_b32 s58, %s, 1" % s(S_J3)); e("s_add_u32 s74, s74, s58")
        e("s_mul_i32 s75, s73, %d" % (36 * 1024)); e("s_add_u32 s75, s75, %s" % s(S_B4))
        e("s_and_b32 s76, %s, 1" % s(S_W)); e("s_lshl_b32 s76, s76, 10"); e("s_add_u32 s76, s76, %d" % (148 * 1024))
        pfj = [(["s_mov_b32 m0, s76", "s_add_u32 %s, s75, 0x%x" % (s(S_SOFF), (48 + 4 * k) * 1024)],
                "buffer_load_dwordx4 %s, %s, %s offen sc1 lds" % (v(VL16), s(S_WS, 4), s(S_SOFF)), "pfj") for k in range(9)] if o.get("pf4", 1) else []
        tch = (touch(S_B4, 0, 8, 73, 2) + touch(S_B3, 68, 1, 74, 4)) if o.get("pf2", 1) else []
        e("s_waitcnt lgkmcnt(0)")
        for x in A(0): e(x)
        if o.get("fine2"): self.stamp()
        def sync2():
            lw = self.newlabel("S2")
            if o.get("fine2"): self.stamp()
            e("s_waitcnt vmcnt(0)")
            e("s_cmp_lg_u32 %s, 0" % s(S_W)); e("s_cbranch_scc1 %s" % lw)
            e("s_mov_b64 s[50:51], -1")
            for k in range(4):
                e("v_cmp_eq_u32 s[46:47], %s, %s" % (s(S_NONCE), v(T + 22 + 2 * k))); e("v_cmp_eq_u32 s[48:49], %s, %s" % (s(S_NONCE + 1), v(T + 23 + 2 * k)))
                e("s_and_b64 s[50:51], s[50:51], s[46:47]"); e("s_and_b64 s[50:51], s[50:51], s[48:49]")
            e("s_cmp_eq_u64 s[50:51], -1"); e("s_cbranch_scc1 %s_ok" % lw)
            self.flag_poll(T + 20, T + 22, nloads=4, stride=64)
            e("buffer_load_dwordx4 %s, %s, %s, 0 offen sc1" % (v(T + 32, 4), v(T + 18), s(S_WS, 4)))
            e("s_waitcnt vmcnt(0)")
            self.label(lw + "_ok")
            e("v_cmp_eq_u32 s[46:47], %s, %s" % (s(S_XCC), v(T + 34)))
            e("v_cmp_eq_u32 s[48:49], %s, %s" % (s(S_NONCE), v(T + 32))); e("s_and_b64 s[46:47], s[46:47], s[48:49]")
            e("s_cmp_eq_u64 s[46:47], -1"); e("s_cselect_b32 s46, 1, 0")
            e("s_cmp_eq_u32 %s, 0" % s(S_TMO)); e("s_cselect_b32 s46, s46, 0")
            e("v_mov_b32 %s, s46" % v(T + 30)); e("v_mov_b32 %s, %d" % (v(T + 31), BB + 6640))
            e("ds_write_b32 %s, %s" % (v(T + 31), v(T + 30)))
            e("s_waitcnt lgkmcnt(0)")
            self.label(lw)
            e("s_barrier")
            if o.get("fastp", 1):
                e("v_mov_b32 %s, %d" % (v(T + 31), BB + 6640))
                e("ds_read_b32 %s, %s" % (v(T + 30), v(T + 31)))
                e("s_waitcnt lgkmcnt(0)")
                e("v_readfirstlane_b32 %s, %s" % (s(S_FAST), v(T + 30)))
            if o.get("fine2"): self.stamp()
        stage(0, A(1), [], chunked(v_reads(0)) + chunked(k_reads(1)), wo_a[:9], mid=sync2)
        e("s_waitcnt lgkmcnt(0)")
        if o.get("fine2"): self.stamp()
        stage(1, D(0)[:17], D(0)[17:] + A(2)[:16], chunked(v_reads(1)), wo_a[9:] + pfj[:3])
        for x in A(2)[16:]: e(x)
        e("s_waitcnt lgkmcnt(0)")
        e("s_barrier")
        if o.get("fine2"): self.stamp()
        for x in E(0): e(x)
        stage(2, D(1)[:17], D(1)[17:] + A(3)[:16], [], wo_b + w1_a[:2] + pfj[3:6])
        for x in A(3)[16:]: e(x)
        for x in E(1): e(x)
        if o.get("fine2"): self.stamp()
        stage(3, D(2)[:17], D(2)[17:], [], w1_a[2:9] + pfj[6:])
        self.p3_jobs = w1_a[9:]
        for x in E(2): e(x)
        for x in D(3): e(x)
        for x in E(3): e(x)
        self.stamp()
        self.c("o: staging -> fragment-major global")
        e("v_mul_u32_u24 %s, 80, %s" % (v(t0), v(V_C))); e("v_add_u32 %s, %s, %s" % (v(t0), s(S_OST), v(t0)))
        e("v_lshl_add_u32 %s, %s, 4, %s" % (v(t1), v(V_G), v(t0)))
        e("v_mul_u32_u24 %s, 1280, %s" % (v(t2), v(V_G))); e("v_add_u32 %s, %s, %s" % (v(t2), v(t2), v(t0)))
        e("v_min_u32 %s, %d, %s" % (v(t2), OB + 4 * 2560 - 80, v(t2)))
        e("s_waitcnt lgkmcnt(0)")
        R = 56
        e("ds_read_b128 %s, %s" % (v(R, 4), v(t1)))
        e("ds_read_b128 %s, %s offset:1280" % (v(R + 4, 4), v(t1)))
        e("ds_read_b128 %s, %s offset:64" % (v(R + 8, 4), v(t2)))
        e("s_mul_i32 s55, %s, 5" % s(S_J3))
        e("s_lshl_b32 s58, %s, 3" % s(S_M3)); e("s_lshl_b32 s59, %s, 1" % s(S_W)); e("s_add_u32 s58, s58, s59"); e("s_mul_i32 s58, s58, 20480")
        e("s_add_u32 s58, s58, 0x%x" % WS_O)
        e("v_add_u32 %s, s55, %s" % (v(t0), v(V_G)))
        e("v_lshrrev_b32 %s, 2, %s" % (v(t1), v(t0))); e("v_lshlrev_b32 %s, 10, %s" % (v(t1), v(t1)))
        e("v_and_b32 %s, 3, %s" % (v(t0), v(t0))); e("v_lshl_add_u32 %s, %s, 8, %s" % (v(t1), v(t0), v(t1)))
        e("v_lshl_add_u32 %s, %s, 4, %s" % (v(t1), v(V_C), v(t1)))
        e("s_add_u32 s59, s55, 4"); e("s_lshr_b32 s60, s59, 2"); e("s_lshl_b32 s60, s60, 10"); e("s_and_b32 s59, s59, 3"); e("s_lshl_b32 s59, s59, 8"); e("s_add_u32 s60, s60, s59")
        e("v_mul_u32_u24 %s, 20480, %s" % (v(t3), v(V_G))); e("v_lshl_add_u32 %s, %s, 4, %s" % (v(t3), v(V_C), v(t3))); e("v_add_u32 %s, s60, %s" % (v(t3), v(t3)))
        e("s_waitcnt lgkmcnt(0)")
        self.vm("buffer_store_dwordx4 %s, %s, %s, s58 offen sc1" % (v(R, 4), v(t1), s(S_WS, 4)), "ost")
        e("s_add_u32 s59, s58, 20480")
        self.vm("buffer_store_dwordx4 %s, %s, %s, s59 offen sc1" % (v(R + 4, 4), v(t1), s(S_WS, 4)), "ost")
        e("s_mov_b64 exec, 0xffffffff")
        self.vm("buffer_store_dwordx4 %s, %s, %s, s58 offen sc1" % (v(R + 8, 4), v(t3), s(S_WS, 4)), "ost")
        e("s_mov_b64 exec, -1")

    def handoff(self, phase, jobs, dma_a=None, dma_b=None, wait_dma=True):
        e = self.e
        l0 = self.newlabel("H0"); l1 = self.newlabel("H1"); l2 = self.newlabel("H2"); l3 = self.newlabel("H3")
        for j in jobs: self.emit_job(j)
        if dma_a:
            e("s_cmp_eq_u32 %s, 0" % s(S_W)); e("s_cbranch_scc1 %s" % l0)
            n0 = len(self.vmq)
            dma_a()
            e("s_waitcnt vmcnt(%d)" % (len(self.vmq) - n0 + len(jobs)))
            e("s_branch %s" % l1)
            self.label(l0)
            e("s_waitcnt vmcnt(%d)" % len(jobs))
            self.label(l1)
        else:
            e("s_waitcnt vmcnt(%d)" % len(jobs))
        e("s_barrier")
        self.stamp()
        e("s_cmp_eq_u32 %s, 0" % s(S_W)); e("s_cbranch_scc1 %s" % l2)
        if dma_b: dma_b()
        e("s_branch %s" % l3)
        self.label(l2)
        self.group_flag_idx()
        self.flag_set(phase, 52, 212, checkwave=False)
        self.poll_group(phase, 212)
        self.label(l3)
        if wait_dma: e("s_waitcnt vmcnt(0)")
        e("s_barrier")
        self.stamp()

    def gemm_small(self, NS, VL16, ACC, pos, bfrag, btag, RING, T, hooks, slots):
        e = self.e
        VA = T + 16
        def rd(st):
            r = []
            for t in range(5):
                off = pos(st * 5 + t) * 1024
                r.append("ds_read_b128 %s, %s offset:%d" % (a(RING + ((st % 3) * 5 + t) * 4, 4), v(VA + off // 65536), off % 65536))
            return r
        for x in rd(0) + rd(1): e(x)
        for st in range(NS):
            if st in hooks: hooks[st]()
            self.vm_wait(btag(st), " lgkmcnt(%d)" % (5 if st + 1 < NS else 0))
            nx = rd(st + 2) if st + 2 < NS else []
            jobs = list(slots(st))
            for t in range(5):
                jb = None
                if jobs and t in (0, 2, 4):
                    jb = jobs.pop(0)
                    for x in jb[0]: e(x)
                e("%s %s, %s, %s, %s" % (M, v(ACC + t * 4, 4), a(RING + ((st % 3) * 5 + t) * 4, 4), a(bfrag(st), 4), v(ACC + t * 4, 4)))
                if t < len(nx): e(nx[t])
                if jb: self.vm(jb[1], jb[2])
            for jb in jobs: self.emit_job(jb)

    def frag_job(self, dst, sreg, idx, tag, VL16=4):
        su = []
        if idx % 4 == 0 and idx > 0: su = ["s_add_u32 %s, %s, 4096" % (s(sreg), s(sreg))]
        return (su, "buffer_load_dwordx4 %s, %s, %s, %s offen offset:%d sc1" % (a(dst, 4), v(VL16), s(S_WS, 4), s(sreg), (idx % 4) * 1024), tag)

    def p3(self):
        e = self.e; o = self.o
        VL16 = 4; T = 200; t0, t1, t2, t3 = T, T + 1, T + 2, T + 3
        XR = 8
        ACC = 32
        HR = 240
        self.c("P2 -> P3 hand-off")
        VA = T + 16
        e("v_mov_b32 %s, %s" % (v(VA), v(VL16))); e("v_add_u32 %s, 0x10000, %s" % (v(VA + 1), v(VL16))); e("v_add_u32 %s, 0x20000, %s" % (v(VA + 2), v(VL16)))
        for i in range(20): e("v_mov_b32 %s, 0" % v(ACC + i))
        e("s_lshl_b32 s54, %s, 4" % s(S_TI)); e("v_add_u32 %s, s54, %s" % (v(t0), v(V_C))); e("v_mul_u32_u24 %s, 1280, %s" % (v(t0), v(t0)))
        e("s_mul_i32 s54, %s, 160" % s(S_NQ))
        e("v_lshl_add_u32 %s, %s, 4, %s" % (v(t1), v(V_G), v(t0))); e("v_add_u32 %s, s54, %s" % (v(20), v(t1)))
        e("v_lshl_add_u32 %s, %s, 3, %s" % (v(t1), v(V_G), v(t0))); e("v_add_u32 %s, s54, %s" % (v(21), v(t1)))
        e("s_waitcnt lgkmcnt(0)")
        e("s_barrier")
        self.handoff(1, self.p3_jobs)
        self.c("P3 main")
        e("s_mul_i32 s54, %s, 20480" % s(S_TI)); e("s_add_u32 s54, s54, 0x%x" % WS_O)
        fj = [self.frag_job(st * 4, 54, st, ("of", st)) for st in range(20)]
        LA = 10
        for st in range(LA): self.emit_job(fj[st])
        xr = [([], "buffer_load_dwordx4 %s, v20, %s, 0 offen" % (v(XR, 4), s(S_X, 4)), "xr"),
              ([], "buffer_load_dwordx4 %s, v20, %s, 0 offen offset:64" % (v(XR + 4, 4), s(S_X, 4)), "xr"),
              ([], "buffer_load_dwordx2 %s, v21, %s, 0 offen offset:128" % (v(XR + 8, 2), s(S_X, 4)), "xr")]
        def slots(st):
            r = []
            if st + LA < 20: r.append(fj[st + LA])
            if 12 <= st < 15: r.append(xr[st - 12])
            return r
        self.gemm_small(20, VL16, ACC, lambda i: 80 + i if i < 68 else i - 68, lambda st: st * 4, lambda st: ("of", st), 80, T, {}, slots)
        self.stamp()
        self.c("P3 epilogue")
        SUM, SQ = T + 4, T + 6
        e("v_mov_b32 %s, 0" % v(SUM)); e("v_mov_b32 %s, 0" % v(SUM + 1)); e("v_mov_b32 %s, 0" % v(SQ)); e("v_mov_b32 %s, 0" % v(SQ + 1))
        e("s_mul_i32 s54, %s, 20480" % s(S_TI)); e("s_add_u32 s54, s54, 0x%x" % WS_H)
        e("s_mul_i32 s55, %s, 10" % s(S_NQ))
        def uaddr(dst, ureg):
            e("v_lshrrev_b32 %s, 2, %s" % (v(t2), v(ureg))); e("v_lshlrev_b32 %s, 10, %s" % (v(t2), v(t2)))
            e("v_and_b32 %s, 3, %s" % (v(t3), v(ureg))); e("v_lshl_add_u32 %s, %s, 8, %s" % (v(t2), v(t3), v(t2)))
            e("v_lshl_add_u32 %s, %s, 4, %s" % (v(dst), v(V_C), v(t2)))
        for p in range(2):
            e("v_add_u32 %s, s55, %s" % (v(t0), v(V_G)))
            if p: e("v_add_u32 %s, 4, %s" % (v(t0), v(t0)))
            uaddr(22 + p, t0)
        e("v_lshrrev_b32 %s, 1, %s" % (v(t0), v(V_G))); e("v_add_u32 %s, s55, %s" % (v(t0), v(t0))); e("v_add_u32 %s, 8, %s" % (v(t0), v(t0)))
        uaddr(24, t0)
        e("v_and_b32 %s, 1, %s" % (v(t0), v(V_G))); e("v_lshl_add_u32 %s, %s, 3, %s" % (v(24), v(t0), v(24)))
        self.vm_wait("xr")
        for t in range(5):
            A_ = ACC + t * 4
            xs = (XR + (t >> 1) * 4 + (t & 1) * 2) if t < 4 else XR + 8
            for hh in range(2):
                e("v_lshlrev_b32 %s, 16, %s" % (v(t0), v(xs + hh))); e("v_and_b32 %s, 0xffff0000, %s" % (v(t1), v(xs + hh)))
                e("v_pk_add_f32 %s, %s, %s" % (v(A_ + 2 * hh, 2), v(A_ + 2 * hh, 2), v(t0, 2)))
                hd = (HR + (t >> 1) * 4 + (t & 1) * 2 + hh) if t < 4 else HR + 8 + hh
                e("v_cvt_pk_bf16_f32 %s, %s, %s" % (v(hd), v(A_ + 2 * hh), v(A_ + 2 * hh + 1)))
            if t == 1: self.vm("buffer_store_dwordx4 %s, v22, %s, s54 offen sc1" % (v(HR, 4), s(S_WS, 4)), "hst")
            if t == 3: self.vm("buffer_store_dwordx4 %s, v23, %s, s54 offen sc1" % (v(HR + 4, 4), s(S_WS, 4)), "hst")
            if t == 4: self.vm("buffer_store_dwordx2 %s, v24, %s, s54 offen sc1" % (v(HR + 8, 2), s(S_WS, 4)), "hst")
        for t in range(5):
            A_ = ACC + t * 4
            for hh in range(2):
                e("v_pk_add_f32 %s, %s, %s" % (v(SUM, 2), v(SUM, 2), v(A_ + 2 * hh, 2)))
                e("v_pk_fma_f32 %s, %s, %s, %s" % (v(SQ, 2), v(A_ + 2 * hh, 2), v(A_ + 2 * hh, 2), v(SQ, 2)))
        e("v_add_f32 %s, %s, %s" % (v(SUM), v(SUM), v(SUM + 1))); e("v_add_f32 %s, %s, %s" % (v(SUM + 1), v(SQ), v(SQ + 1)))
        self.reduce4(SUM, t0); self.reduce4(SUM + 1, t0)
        e("s_lshl_b32 s54, %s, 4" % s(S_TI)); e("v_add_u32 %s, s54, %s" % (v(t0), v(V_C))); e("v_lshlrev_b32 %s, 6, %s" % (v(t0), v(t0)))
        e("s_lshl_b32 s54, %s, 3" % s(S_NQ)); e("s_add_u32 s54, s54, 0x%x" % WS_HS)
        e("s_mov_b64 exec, 0xffff")
        self.vm("buffer_store_dwordx2 %s, %s, %s, s54 offen sc1" % (v(SUM, 2), v(t0), s(S_WS, 4)), "hst")
        e("s_mov_b64 exec, -1")

    def p4(self):
        e = self.e; o = self.o
        VL16 = 4; T = 200; t0, t1, t2, t3 = T, T + 1, T + 2, T + 3
        ACC = 32
        CSA = 80
        CSV = 88
        VONE = 112
        VST = 116
        CS_OFF = 158 * 1024
        RING = 160
        pos = lambda i: 32 + i if i < 48 else 80 + (i - 48)
        self.c("P3 -> P4 hand-off")
        for i in range(4): e("v_mov_b32 %s, 0x3f803f80" % v(VONE + i))
        for i in range(8): e("v_mov_b32 %s, 0" % v(CSA + i))
        for i in range(48): e("v_mov_b32 %s, 0" % v(ACC + i))
        e("s_barrier")
        self.handoff(2, [], lambda: self.dma3(S_B4, 48, 80, 8, "w4b"), lambda: self.dma3(S_B4, 72, 104, 16, "w4b"), wait_dma=False)
        self.c("P4 main")
        e("s_lshl_b32 s54, %s, 3" % s(S_M3)); e("s_lshl_b32 s55, %s, 1" % s(S_W)); e("s_add_u32 s54, s54, s55")
        e("s_mov_b32 s88, s54")
        e("s_mul_i32 s55, s54, 20480"); e("s_add_u32 s55, s55, 0x%x" % WS_H); e("s_add_u32 s56, s55, 20480")
        fj = [[self.frag_job((st * 2 + tt) * 4, 55 + tt, st, ("hf", st)) for tt in range(2)] for st in range(20)]
        LA = 5
        for st in range(LA):
            for j in fj[st]: self.emit_job(j)
        e("s_lshl_b32 s57, s54, 4"); e("v_add_u32 %s, s57, %s" % (v(t0), v(V_C))); e("v_lshlrev_b32 %s, 6, %s" % (v(t0), v(t0)))
        e("v_lshl_add_u32 %s, %s, 4, %s" % (v(t0), v(V_G), v(t0))); e("v_add_u32 %s, 0x%x, %s" % (v(25), WS_HS, v(t0)))
        e("s_add_u32 s58, %s, 4" % s(S_W)); e("s_cmp_ge_u32 s58, 6"); e("s_cselect_b32 s57, 6, 0"); e("s_sub_u32 s58, s58, s57")
        e("v_add_u32 %s, %s, %s" % (v(t0), s(S_W1K), v(VL16)))
        e("s_lshl_b32 s57, s58, 10"); e("v_add_u32 %s, s57, %s" % (v(t1), v(VL16)))
        e("v_add_u32 %s, 0x10000, %s" % (v(t2), v(t0))); e("v_add_u32 %s, 0x10000, %s" % (v(t3), v(t1)))
        e("v_add_u32 %s, 0x20000, %s" % (v(t0 + 4), v(t0))); e("v_add_u32 %s, 0x20000, %s" % (v(t0 + 5), v(t1)))
        def csrd(st):
            off = pos(st * 6) * 1024
            return ["ds_read_b128 %s, %s offset:%d" % (a(RING + ((st % 4) * 2 + q) * 4, 4), v(t0 + 2 * (off // 65536) + q), off % 65536) for q in range(2)]
        CSR = 208
        def csrd2(st):
            off = pos(st * 6) * 1024
            return ["ds_read_b128 %s, %s offset:%d" % (a(CSR + ((st % 4) * 2 + q) * 4, 4), v(142 + 2 * (off // 65536) + q), off % 65536) for q in range(2)]
        def cs_block(s0, s1, jobs=()):
            jobs = list(jobs)
            for st in range(s0, min(s0 + 3, s1)):
                for x in csrd2(st): e(x)
            for st in range(s0, s1):
                nx = csrd2(st + 3) if st + 3 < s1 else []
                for x in nx: e(x)
                e("s_waitcnt lgkmcnt(%d)" % (2 * min(3, s1 - 1 - st)))
                for q in range(2):
                    e("%s %s, %s, %s, %s" % (M, v(CSA + q * 4, 4), a(CSR + ((st % 4) * 2 + q) * 4, 4), v(VONE, 4), v(CSA + q * 4, 4)))
                if jobs: self.emit_job(jobs.pop(0))
        for k in range(6): e("v_mov_b32 %s, %s" % (v(142 + k), v(t0 + k)))
        cs_block(0, 8, [self.job4(S_B5, 4 * k, 4 * k, "w5a") for k in range(8)])
        e("v_lshlrev_b32 %s, 4, %s" % (v(t2), v(V_G)))
        e("s_lshl_b32 s57, %s, 6" % s(S_W)); e("s_add_u32 s57, s57, %d" % CS_OFF); e("v_add_u32 %s, s57, %s" % (v(t0), v(t2)))
        e("s_lshl_b32 s57, s58, 6"); e("s_add_u32 s57, s57, %d" % CS_OFF); e("v_add_u32 %s, s57, %s" % (v(t1), v(t2)))
        e("v_add_u32 %s, %d, %s" % (v(26), CS_OFF, v(t2)))
        VA = T + 16
        e("v_mov_b32 %s, %s" % (v(VA), v(VL16))); e("v_add_u32 %s, 0x10000, %s" % (v(VA + 1), v(VL16))); e("v_add_u32 %s, 0x20000, %s" % (v(VA + 2), v(VL16)))
        def rd(st):
            r = []
            for t in range(6):
                off = pos(st * 6 + t) * 1024
                r.append("ds_read_b128 %s, %s offset:%d" % (a(RING + ((st % 2) * 6 + t) * 4, 4), v(VA + off // 65536), off % 65536))
            return r
        e("v_mov_b32 %s, %s" % (v(140), v(t0))); e("v_mov_b32 %s, %s" % (v(141), v(t1)))
        for x in rd(0): e(x)
        w5b = [self.job4(S_B5, 32 + 4 * k, 32 + 4 * k, "w5b") for k in range(12)]
        hs = [([], "buffer_load_dwordx4 %s, v25, %s, 0 offen offset:%d sc1" % (v(VST + tt * 4, 4), s(S_WS, 4), tt * 1024), "hs") for tt in range(2)]
        for st in range(20):
            if st == 7:
                self.vm_wait("w4b")
                e("s_barrier")
            if st == 8:
                e("s_waitcnt lgkmcnt(0)")
                cs_block(8, 20)
                e("v_cmp_eq_u32 vcc, 0, %s" % v(V_C))
                e("s_and_saveexec_b64 s[58:59], vcc")
                e("ds_write_b128 v140, %s" % v(CSA, 4))
                e("ds_write_b128 v141, %s" % v(CSA + 4, 4))
                e("s_mov_b64 exec, s[58:59]")
            if st == 10:
                e("s_barrier")
                for t in range(6): e("ds_read_b128 %s, %s offset:%d" % (v(CSV + t * 4, 4), v(26), t * 64))
            self.vm_wait(("hf", st), " lgkmcnt(0)")
            nx = rd(st + 1) if st + 1 < 20 else []
            jobs = list(fj[st + LA]) if st + LA < 20 else []
            if st == 15: jobs += hs
            if st in (2, 4, 6) and o.get("pf3", 0):
                k = (st - 2) // 2
                if k < 2:
                    jobs.append((["s_mul_i32 s58, s74, 40960", "s_add_u32 s58, s58, %s" % s(S_B5), "s_mul_i32 s59, %s, 7168" % s(S_W), "s_add_u32 s58, s58, s59",
                                  "s_add_u32 %s, s58, %d" % (s(S_SOFF), 80 * 1024 + k * 32768)],
                                 "buffer_load_dword v%d, v198, %s, %s offen" % (192 + k, s(S_WS, 4), s(S_SOFF)), "touch"))
            if st >= 10:
                jobs += w5b[:2] if st >= 15 or st in (11, 13) else w5b[:1]
                w5b = w5b[2:] if (st >= 15 or st in (11, 13)) else w5b[1:]
            k = 0; n = 0
            for t in range(6):
                for tt in range(2):
                    d = ACC + (t * 2 + tt) * 4
                    jb = None
                    if jobs and n % 3 == 0:
                        jb = jobs.pop(0)
                        for x in jb[0]: e(x)
                    e("%s %s, %s, %s, %s" % (M, v(d, 4), a(RING + ((st % 2) * 6 + t) * 4, 4), a((st * 2 + tt) * 4, 4), v(d, 4)))
                    if tt == 0 and k < len(nx): e(nx[k]); k += 1
                    if jb: self.vm(jb[1], jb[2])
                    n += 1
            for jb in jobs: self.emit_job(jb)
        assert not w5b
        self.stamp()
        e("s_barrier")
        self.c("P4 epilogue (remaining resident part of W2 streams in underneath)")
        w5c = [self.job4(S_B5, 80 + 4 * k, 80 + 4 * k, "w5c") for k in range(20)]
        self.p5_jobs = w5c[12:]; w5c = w5c[:12]
        self.vm_wait("hs")
        NM = [T + 4, T + 6]
        for tt in range(2):
            q = VST + tt * 4
            e("v_add_f32 %s, %s, %s" % (v(q), v(q), v(q + 2))); e("v_add_f32 %s, %s, %s" % (v(q + 1), v(q + 1), v(q + 3)))
            self.reduce4(q, t0); self.reduce4(q + 1, t0)
            e("v_mul_f32 %s, 0x%x, %s" % (v(NM[tt]), f2u(-1.0 / 640), v(q)))
            e("v_mul_f32 %s, 0x%x, %s" % (v(q + 1), f2u(1.0 / 640), v(q + 1)))
            e("v_fma_f32 %s, -%s, %s, %s" % (v(q + 1), v(NM[tt]), v(NM[tt]), v(q + 1)))
            e("v_max_f32 %s, 0, %s" % (v(q + 1), v(q + 1))); e("v_add_f32 %s, 0x%x, %s" % (v(q + 1), f2u(1e-5), v(q + 1)))
            e("v_rsq_f32 %s, %s" % (v(NM[tt] + 1), v(q + 1)))
        e("s_mul_i32 s54, s88, 49152"); e("s_mul_i32 s55, %s, 3072" % s(S_J3)); e("s_add_u32 s54, s54, s55"); e("s_add_u32 s54, s54, 0x%x" % WS_H1)
        e("s_add_u32 s55, s54, 49152")
        e("s_mov_b32 s56, 0x%x" % f2u(-math.log2(math.e))); e("s_mov_b32 s57, s56")
        n = 0
        for tt in range(2):
            for p in range(3):
                O4 = 124 + (n % 4) * 4
                zs = []
                for hf in range(2):
                    t = 2 * p + hf; A_ = ACC + (t * 2 + tt) * 4
                    for hh in range(2): zs.append((A_ + 2 * hh, CSV + t * 4 + 2 * hh, O4 + hf * 2 + hh))
                E_ = [T + 8, T + 10, T + 12, T + 14]
                for k, (z, c_, od) in enumerate(zs): e("v_pk_fma_f32 %s, %s, %s, %s op_sel_hi:[1,0,1]" % (v(z, 2), v(c_, 2), v(NM[tt], 2), v(z, 2)))
                for k, (z, c_, od) in enumerate(zs): e("v_pk_mul_f32 %s, %s, %s op_sel:[0,1] op_sel_hi:[1,1]" % (v(z, 2), v(z, 2), v(NM[tt], 2)))
                for k, (z, c_, od) in enumerate(zs): e("v_pk_mul_f32 %s, %s, s[56:57]" % (v(E_[k], 2), v(z, 2)))
                for k in range(4): e("v_exp_f32 %s, %s" % (v(E_[k]), v(E_[k]))); e("v_exp_f32 %s, %s" % (v(E_[k] + 1), v(E_[k] + 1)))
                for k in range(4): e("v_pk_add_f32 %s, %s, 1.0 op_sel_hi:[1,0]" % (v(E_[k], 2), v(E_[k], 2)))
                for k in range(4): e("v_rcp_f32 %s, %s" % (v(E_[k]), v(E_[k]))); e("v_rcp_f32 %s, %s" % (v(E_[k] + 1), v(E_[k] + 1)))
                for k, (z, c_, od) in enumerate(zs): e("v_pk_mul_f32 %s, %s, %s" % (v(z, 2), v(z, 2), v(E_[k], 2)))
                for k, (z, c_, od) in enumerate(zs): e("v_cvt_pk_bf16_f32 %s, %s, %s" % (v(od), v(z), v(z + 1)))
                for _ in range(2):
                    if w5c: self.emit_job(w5c.pop(0))
                self.vm("buffer_store_dwordx4 %s, %s, %s, %s offen offset:%d sc1" % (v(O4, 4), v(VL16), s(S_WS, 4), s(54 + tt), p * 1024), "h1st")
                n += 1
        assert not w5c

    def p5(self):
        e = self.e; o = self.o
        VL16 = 4; T = 200; t0, t1, t2, t3 = T, T + 1, T + 2, T + 3
        ACC = 32; HR = 240
        self.c("P4 -> P5 hand-off")
        for i in range(20): e("v_mov_b32 %s, 0" % v(ACC + i))
        self.handoff(3, self.p5_jobs)
        self.c("P5 main")
        e("s_mul_i32 s54, %s, 49152" % s(S_TI)); e("s_add_u32 s54, s54, 0x%x" % WS_H1)
        fj = [self.frag_job(st * 4, 54, st, ("f1", st)) for st in range(48)]
        LA = 12
        for st in range(LA): self.emit_job(fj[st])
        bA = [self.job4(S_B5, 160 + 4 * k, 4 * k, "b5a") for k in range(10)]
        bB = [self.job4(S_B5, 200 + 4 * k, 40 + 4 * k, "b5b") for k in range(10)]
        def slots(st):
            r = []
            if st + LA < 48: r.append(fj[st + LA])
            if 9 <= st < 19: r.append(bA[st - 9])
            if 19 <= st < 29: r.append(bB[st - 19])
            return r
        def bar(): e("s_barrier")
        def landed(tag):
            def fn():
                self.vm_wait(tag); e("s_barrier")
            return fn
        hooks = {9: bar, 19: bar, 30: landed("b5a"), 38: landed("b5b")}
        self.gemm_small(48, VL16, ACC, lambda i: i % 160, lambda st: st * 4, lambda st: ("f1", st), 192, T, hooks, slots)
        self.stamp()
        self.c("P5 epilogue")
        for t in range(5):
            A_ = ACC + t * 4
            for hh in range(2):
                hd = (HR + (t >> 1) * 4 + (t & 1) * 2 + hh) if t < 4 else HR + 8 + hh
                e("v_lshlrev_b32 %s, 16, %s" % (v(t0), v(hd))); e("v_and_b32 %s, 0xffff0000, %s" % (v(t1), v(hd)))
                e("v_pk_add_f32 %s, %s, %s" % (v(A_ + 2 * hh, 2), v(A_ + 2 * hh, 2), v(t0, 2)))
                od = (64 + (t >> 1) * 4 + (t & 1) * 2 + hh) if t < 4 else 72 + hh
                e("v_cvt_pk_bf16_f32 %s, %s, %s" % (v(od), v(A_ + 2 * hh), v(A_ + 2 * hh + 1)))
            if t == 1: e("buffer_store_dwordx4 v[64:67], v20, %s, 0 offen" % s(S_OUT, 4))
            if t == 3: e("buffer_store_dwordx4 v[68:71], v20, %s, 0 offen offset:64" % s(S_OUT, 4))
        e("buffer_store_dwordx2 v[72:73], v21, %s, 0 offen offset:128" % s(S_OUT, 4))
        self.stamp()

    def finish(self):
        self.label("L_end")
        self.e("s_endpgm")

def build(opts):
    g = Gen(opts)
    g.prologue()
    stop = opts.get("stop", 5)
    g.p1()
    if stop >= 2: g.p2()
    if stop >= 3: g.p3()
    if stop >= 4: g.p4()
    if stop >= 5: g.p5()
    g.e("s_waitcnt vmcnt(0)")
    g.finish()
    body = g.finalize(2 if opts.get('nocheck') else True)
    hdr = open("cdna_kernels/%s.s.ref" % NAME).read().split("\n")
    head = [l for l in hdr if l.startswith(";") and ("Kernarg" in l or "offset" in l)]
    txt = "\n".join(head) + "\n; @launch grid=(256,1,1) block=(256,1,1) lds=163840\n"
    txt += '.amdgcn_target "amdgcn-amd-amdhsa--gfx950"\n.text\n.globl %s_kernel\n.p2align 8\n.type %s_kernel,@function\n%s_kernel:\n' % (NAME, NAME, NAME)
    txt += body + "\n"
    txt = txt.replace("CODE_Q", "16384")
    txt += """.section .rodata,"a"
.p2align 6
.amdhsa_kernel %s_kernel
  .amdhsa_next_free_vgpr 512
  .amdhsa_next_free_sgpr 100
  .amdhsa_accum_offset 256
  .amdhsa_group_segment_fixed_size 0
  .amdhsa_kernarg_size 72
  .amdhsa_user_sgpr_count 2
  .amdhsa_user_sgpr_kernarg_segment_ptr 1
  .amdhsa_system_sgpr_workgroup_id_x 1
  .amdhsa_float_denorm_mode_32 3
.end_amdhsa_kernel
""" % NAME
    return txt, g

if __name__ == "__main__":
    opts = {}
    out = sys.argv[1]
    for x in sys.argv[2:]:
        if "=" in x:
            k, val = x.split("="); opts[k] = int(val)
        else: opts[x] = 1
    txt, g = build(opts)
    open(out, "w").write(txt)
    print("lines", len(txt.split("\n")), "bytes", len(txt), "nops", g.nops)
```

```python
import sys, math, struct
from asmlib import Asm, v, a, s

NAME = 'sequential_preLN__sliding_block__dense_activation_silu__prompt'
M = "v_mfma_f32_16x16x32_bf16"

WS_FLAGS = 0x0
WS_STAT = 0x20000
WS_HS = 0x40000
WS_QKV = 0x100000
WS_O = 0x900000
WS_H = 0xC00000
WS_H1 = 0xF00000
WS_PW3 = 0x1500000
WS_PW4 = 0x1600000
WS_PW5 = 0x1800000
WS_ST = 0x1A00000
WS_SIZE = 0x1B00000
BIGOFF = 0x7F000000

def f2u(x):
    return struct.unpack("<I", struct.pack("<f", x))[0]

S_X, S_WQ, S_WO, S_W1, S_W2, S_OUT, S_WS, S_DBG = 4, 8, 12, 16, 20, 24, 28, 32
S_W = 36
S_M1, S_N1, S_M3, S_J3 = 37, 38, 39, 40
S_NONCE = 42
S_SOFF = 62
S_TMO = 63
S_STC = 80
S_STT = 82
S_ODD = 84
S_TI, S_NQ = 86, 87
S_B3, S_B4, S_B5 = 90, 91, 92
S_W1K, S_W3 = 93, 94
S_OST = 95
S_XCC, S_FAST = 98, 99

V_L, V_C, V_G = 1, 2, 3

class Gen(Asm):
    def __init__(self, opts):
        super().__init__()
        self.o = opts
        self.vmq = []
        self.nlab = 0
        self.nstamp = 0
        self.ntouch = 0
    def vm(self, text, tag=None):
        if tag in {0: (), 1: ("ost",), 2: ("ost", "hst"), 3: ("ost", "hst", "h1st")}[self.o.get("fastd", 2)] and self.o.get("fastp", 1):
            self.dual(text)
            self.vmq.append(tag); return
        self.e(text); self.vmq.append(tag)
    def dual(self, text):
        l1 = self.newlabel("DF"); l2 = self.newlabel("DJ")
        self.e("s_cmp_lg_u32 %s, 0" % s(S_FAST)); self.e("s_cbranch_scc1 %s" % l1)
        self.e(text); self.e("s_branch %s" % l2)
        self.label(l1)
        self.e(text.replace(" sc1", ""))
        self.label(l2)
    def vm_n(self, tag):
        idx = max(i for i, t in enumerate(self.vmq) if t == tag)
        n = len(self.vmq) - 1 - idx
        assert n <= 63, (tag, n)
        return n
    def vm_wait(self, tag, extra=""):
        self.e("s_waitcnt vmcnt(%d)%s" % (self.vm_n(tag), extra))
    def newlabel(self, p="L"):
        self.nlab += 1
        return "%s_%d" % (p, self.nlab)
    def stamp(self, idx=None, pre=None):
        if not self.o.get("stamps"): return
        i = self.nstamp if idx is None else idx
        if idx is None: self.nstamp += 1
        assert i < 32
        e = self.e
        if pre is not None:
            e("s_mov_b64 %s, %s" % (s(S_STT, 2), s(pre, 2)))
        else:
            e("%s %s" % ("s_memtime" if self.o.get("stamps") == 2 else "s_memrealtime", s(S_STT, 2)))
        e("s_waitcnt lgkmcnt(0)")
        e("v_mov_b32 v254, %s" % s(S_STT)); e("v_mov_b32 v255, %s" % s(S_STT + 1))
        e("s_lshl_b32 %s, s2, 2" % s(S_STC)); e("s_add_u32 %s, %s, %s" % (s(S_STC), s(S_STC), s(S_W)))
        e("s_lshl_b32 %s, %s, 8" % (s(S_STC), s(S_STC)))
        e("s_add_u32 %s, %s, 0x%x" % (s(S_STC), s(S_STC), WS_ST + i * 8))
        e("v_mov_b32 v253, %s" % s(S_STC))
        e("s_mov_b64 exec, 1")
        self.vm("buffer_store_dwordx2 v[254:255], v253, %s, 0 offen" % s(S_WS, 4), "stamp")
        e("s_mov_b64 exec, -1")

    def reduce4(self, x, tmp, op="v_add_f32"):
        e = self.e
        e("v_mov_b32 %s, %s" % (v(tmp), v(x)))
        e("v_permlane16_swap_b32 %s, %s" % (v(x), v(tmp)))
        e("%s %s, %s, %s" % (op, v(x), v(x), v(tmp)))
        e("v_mov_b32 %s, %s" % (v(tmp), v(x)))
        e("v_permlane32_swap_b32 %s, %s" % (v(x), v(tmp)))
        e("%s %s, %s, %s" % (op, v(x), v(x), v(tmp)))

    def nonce_issue(self, vr):
        self.e("v_mov_b32 %s, 0" % v(vr + 2))
        self.vm("buffer_load_dwordx2 %s, %s, %s, 0 offen sc1" % (v(vr, 2), v(vr + 2), s(S_DBG, 4)), "nonce")
    def nonce_get(self, vr):
        e = self.e
        self.vm_wait("nonce")
        l0 = self.newlabel("NL"); l1 = self.newlabel("ND")
        e("v_readfirstlane_b32 %s, %s" % (s(S_NONCE), v(vr)))
        e("v_readfirstlane_b32 %s, %s" % (s(S_NONCE + 1), v(vr + 1)))
        e("s_cmp_lg_u32 %s, 0" % s(S_NONCE))
        e("s_cbranch_scc1 %s" % l1)
        e("s_mov_b32 s44, 0")
        self.label(l0)
        e("buffer_load_dwordx2 %s, %s, %s, 0 offen sc1" % (v(vr, 2), v(vr + 2), s(S_DBG, 4)))
        e("s_waitcnt vmcnt(0)")
        e("v_readfirstlane_b32 %s, %s" % (s(S_NONCE), v(vr)))
        e("v_readfirstlane_b32 %s, %s" % (s(S_NONCE + 1), v(vr + 1)))
        e("s_add_u32 s44, s44, 1")
        e("s_cmp_gt_u32 s44, 20000")
        e("s_cbranch_scc1 %s" % l1)
        e("s_cmp_eq_u32 %s, 0" % s(S_NONCE))
        e("s_cbranch_scc1 %s" % l0)
        self.label(l1)
    def flag_set(self, phase, sidx, vt, checkwave=True):
        e = self.e
        l = self.newlabel("FS")
        if checkwave: e("s_cmp_lg_u32 %s, 0" % s(S_W)); e("s_cbranch_scc1 %s" % l)
        e("s_lshl_b32 s44, %s, 6" % s(sidx)); e("s_add_u32 s44, s44, 0x%x" % (WS_FLAGS + phase * 16384))
        e("v_mov_b32 %s, %s" % (v(vt), s(S_NONCE))); e("v_mov_b32 %s, %s" % (v(vt + 1), s(S_NONCE + 1)))
        if phase == 0:
            e("v_mov_b32 %s, %s" % (v(vt + 2), s(S_XCC))); e("v_mov_b32 %s, 0" % v(vt + 3)); e("v_mov_b32 %s, s44" % v(vt + 4))
            e("s_mov_b64 exec, 1")
            e("buffer_store_dwordx4 %s, %s, %s, 0 offen sc1" % (v(vt, 4), v(vt + 4), s(S_WS, 4)))
            e("s_mov_b64 exec, -1")
        else:
            e("v_mov_b32 %s, s44" % v(vt + 2))
            e("s_mov_b64 exec, 1")
            txt = "buffer_store_dwordx2 %s, %s, %s, 0 offen sc1" % (v(vt, 2), v(vt + 2), s(S_WS, 4))
            if self.o.get("fastp", 1): self.dual(txt)
            else: e(txt)
            e("s_mov_b64 exec, -1")
        self.label(l)
    def flag_poll(self, vaddr, vt, nloads=1, stride=0):
        e = self.e
        l0 = self.newlabel("PL"); l1 = self.newlabel("PD")
        e("s_mov_b32 s44, 0")
        self.label(l0)
        for k in range(nloads):
            e("buffer_load_dwordx2 %s, %s, %s, 0 offen offset:%d sc1" % (v(vt + 2 * k, 2), v(vaddr), s(S_WS, 4), k * stride))
        e("s_waitcnt vmcnt(0)")
        for k in range(nloads):
            e("v_cmp_eq_u32 %s, %s, %s" % (s(46 + 0, 2), s(S_NONCE), v(vt + 2 * k)))
            e("v_cmp_eq_u32 %s, %s, %s" % (s(48 + 0, 2), s(S_NONCE + 1), v(vt + 2 * k + 1)))
            e("s_and_b64 s[46:47], s[46:47], s[48:49]")
            if k == 0: e("s_mov_b64 s[50:51], s[46:47]")
            else: e("s_and_b64 s[50:51], s[50:51], s[46:47]")
        e("s_cmp_eq_u64 s[50:51], -1")
        e("s_cbranch_scc1 %s" % l1)
        e("s_add_u32 s44, s44, 1")
        e("s_cmp_gt_u32 s44, 20000")
        e("s_cbranch_scc0 %s" % l0)
        e("s_mov_b32 %s, 1" % s(S_TMO))
        self.label(l1)

    def srd(self, d, src, size):
        e = self.e
        e("s_mov_b32 %s, %s" % (s(d), s(src))); e("s_and_b32 %s, %s, 0xffff" % (s(d + 1), s(src + 1)))
        e("s_mov_b32 %s, 0x%x" % (s(d + 2), size)); e("s_mov_b32 %s, 0x20000" % s(d + 3))
    def prologue(self):
        e = self.e
        if self.o.get("stamps"): e("s_memrealtime s[96:97]")
        e("s_cmp_ge_u32 s2, 256")
        e("s_cbranch_scc1 L_end")
        e("s_load_dwordx16 s[64:79], s[0:1], 0")
        e("s_load_dwordx2 s[80:81], s[0:1], 64")
        e("v_and_b32 %s, 63, v0" % v(V_L))
        e("v_lshrrev_b32 v4, 6, v0")
        e("v_and_b32 %s, 15, %s" % (v(V_C), v(V_L)))
        e("v_lshrrev_b32 %s, 4, %s" % (v(V_G), v(V_L)))
        e("v_readfirstlane_b32 %s, v4" % s(S_W))
        e("s_and_b32 s3, s2, 7")
        e("s_lshr_b32 s41, s2, 3")
        e("s_lshr_b32 %s, s3, 1" % s(S_M1)); e("s_lshl_b32 %s, %s, 2" % (s(S_M1), s(S_M1)))
        e("s_lshr_b32 s62, s41, 3"); e("s_add_u32 %s, %s, s62" % (s(S_M1), s(S_M1)))
        e("s_and_b32 %s, s3, 1" % s(S_N1)); e("s_lshl_b32 %s, %s, 3" % (s(S_N1), s(S_N1)))
        e("s_and_b32 s62, s41, 7"); e("s_add_u32 %s, %s, s62" % (s(S_N1), s(S_N1)))
        e("s_lshl_b32 %s, s3, 1" % s(S_M3)); e("s_lshr_b32 s62, s41, 4"); e("s_add_u32 %s, %s, s62" % (s(S_M3), s(S_M3)))
        e("s_and_b32 %s, s41, 15" % s(S_J3))
        e("s_mov_b32 %s, 0" % s(S_TMO))
        e("s_getreg_b32 %s, hwreg(HW_REG_XCC_ID, 0, 4)" % s(S_XCC))
        e("s_mov_b32 %s, 0" % s(S_FAST))
        e("v_and_b32 v4, 1, %s" % v(V_G))
        e("v_cmp_eq_u32 %s, 1, v4" % s(S_ODD, 2))
    def prologue2(self):
        e = self.e
        self.srd(S_WO, 68, 640 * 640 * 2)
        self.srd(S_W1, 72, 640 * 1536 * 2)
        self.srd(S_W2, 74, 1536 * 640 * 2)
        self.srd(S_OUT, 76, 2048 * 640 * 2)

    def x_dma_setup(self, VX, t0, t1):
        e = self.e
        e("v_lshrrev_b32 %s, 3, %s" % (v(t0), v(V_L)))
        e("v_lshrrev_b32 %s, 1, %s" % (v(t1), v(t0)))
        e("v_xor_b32 %s, %s, %s" % (v(t1), v(t1), v(V_L))); e("v_and_b32 %s, 7, %s" % (v(t1), v(t1)))
        e("s_lshl_b32 s44, %s, 7" % s(S_M1)); e("s_lshl_b32 s45, %s, 5" % s(S_W)); e("s_add_u32 s44, s44, s45")
        e("v_add_u32 %s, s44, %s" % (v(t0), v(t0)))
        e("v_mul_u32_u24 %s, 1280, %s" % (v(t0), v(t0)))
        e("v_lshl_add_u32 %s, %s, 4, %s" % (v(VX), v(t1), v(t0)))
        e("v_xor_b32 %s, 4, %s" % (v(t1), v(t1)))
        e("v_lshl_add_u32 %s, %s, 4, %s" % (v(VX + 1), v(t1), v(t0)))
        e("v_add_u32 %s, %d, %s" % (v(VX + 1), 8 * 1280, v(VX + 1)))
    def x_frag_addr(self, VA, t0, base_const):
        e = self.e
        e("v_lshrrev_b32 %s, 1, %s" % (v(t0), v(V_C)))
        e("v_xor_b32 %s, %s, %s" % (v(t0), v(t0), v(V_G)))
        e("v_lshlrev_b32 %s, 4, %s" % (v(t0), v(t0)))
        e("v_lshl_add_u32 %s, %s, 7, %s" % (v(VA), v(V_C), v(t0)))
        e("v_xor_b32 %s, 64, %s" % (v(VA + 1), v(VA)))

    def p1_helper(self):
        e = self.e
        self.c("helper workgroup: LayerNorm statistics of x for token block m1")
        save = list(self.vmq); self.vmq = []
        VX, VA, T = 12, 14, 208
        self.x_dma_setup(VX, T, T + 1)
        self.x_frag_addr(VA, T, None)
        e("s_lshl_b32 s47, %s, 15" % s(S_W))
        e("v_add_u32 %s, s47, %s" % (v(VA), v(VA))); e("v_add_u32 %s, s47, %s" % (v(VA + 1), v(VA + 1)))
        def issue(sg):
            for i in range(4):
                e("s_add_u32 m0, s47, 0x%x" % ((sg % 8) * 4096 + i * 1024))
                e("s_mov_b32 %s, %d" % (s(S_SOFF), sg * 128 + (i >> 1) * 16 * 1280))
                self.vm("buffer_load_dwordx4 %s, %s, %s offen lds" % (v(VX + (i & 1)), s(S_X, 4), s(S_SOFF)), ("hx", sg))
        for sg in range(8): issue(sg)
        self.nonce_issue(16)
        for i in range(4): e("v_mov_b32 %s, 0x3f803f80" % v(20 + i))
        for i in range(16): e("v_mov_b32 %s, 0" % v(32 + i))
        for st in range(20):
            sg = st // 2
            if st % 2 == 0: self.vm_wait(("hx", sg))
            b = (st % 2) * 8
            for tt in range(2):
                e("ds_read_b128 %s, %s offset:%d" % (a(b + tt * 4, 4), v(VA + (st & 1)), (sg % 8) * 4096 + tt * 2048))
            e("s_waitcnt lgkmcnt(0)")
            if st % 2 == 1 and sg < 2: issue(sg + 8)
            for tt in range(2):
                e("%s %s, %s, %s, %s" % (M, v(32 + tt * 4, 4), a(b + tt * 4, 4), a(b + tt * 4, 4), v(32 + tt * 4, 4)))
                e("%s %s, %s, %s, %s" % (M, v(40 + tt * 4, 4), v(20, 4), a(b + tt * 4, 4), v(40 + tt * 4, 4)))
        self.nonce_get(16)
        e("v_and_b32 %s, 3, %s" % (v(T), v(V_C)))
        e("v_lshrrev_b32 %s, 2, %s" % (v(T + 1), v(V_C)))
        e("v_cmp_eq_u32 s[46:47], %s, %s" % (v(T + 1), v(V_G)))
        for tt in range(2):
            d = 32 + tt * 4
            for i in range(1, 4):
                e("v_cmp_eq_u32 vcc, %d, %s" % (i, v(T)))
                e("v_cndmask_b32 %s, %s, %s, vcc" % (v(d), v(d), v(d + i)))
            e("v_cndmask_b32 %s, 0, %s, s[46:47]" % (v(d), v(d)))
            self.reduce4(d, T + 2)
            sm = 40 + tt * 4
            e("v_mul_f32 %s, 0x%x, %s" % (v(sm), f2u(1.0 / 640), v(sm)))
            e("v_mul_f32 %s, 0x%x, %s" % (v(d), f2u(1.0 / 640), v(d)))
            e("v_fma_f32 %s, -%s, %s, %s" % (v(d), v(sm), v(sm), v(d)))
            e("v_max_f32 %s, 0, %s" % (v(d), v(d)))
            e("v_add_f32 %s, 0x%x, %s" % (v(d), f2u(1e-5), v(d)))
            e("v_rsq_f32 %s, %s" % (v(d), v(d)))
            o4 = 48 + tt * 4
            e("v_mov_b32 %s, %s" % (v(o4), v(sm))); e("v_mov_b32 %s, %s" % (v(o4 + 1), v(d)))
            e("v_mov_b32 %s, %s" % (v(o4 + 2), s(S_NONCE))); e("v_mov_b32 %s, %s" % (v(o4 + 3), s(S_NONCE + 1)))
        e("s_lshl_b32 s44, %s, 7" % s(S_M1)); e("s_lshl_b32 s45, %s, 5" % s(S_W)); e("s_add_u32 s44, s44, s45")
        e("v_add_u32 %s, s44, %s" % (v(T), v(V_C)))
        e("v_lshlrev_b32 %s, 4, %s" % (v(T), v(T)))
        e("v_add_u32 %s, 0x%x, %s" % (v(T), WS_STAT, v(T)))
        e("s_mov_b64 exec, 0xffff")
        for tt in range(2):
            e("buffer_store_dwordx4 %s, %s, %s, 0 offen offset:%d sc1" % (v(48 + tt * 4, 4), v(T), s(S_WS, 4), tt * 256))
        e("s_mov_b64 exec, -1")
        e("s_waitcnt vmcnt(0)")
        self.vmq = save

    def p1(self):
        e = self.e; o = self.o
        VT = 4
        VXA = 8
        VX = 10
        VWO = 12
        VPK = 13
        VONE = 20
        VCS = 24
        ACC = 32
        VST = 96
        VN = 112
        VPA = 124
        PKF = 116
        TMP = 208
        t0, t1, t2, t3 = TMP, TMP + 1, TMP + 2, TMP + 3
        acc = lambda i, tt: ACC + (i * 4 + tt) * 4
        PK_OFF = 131072
        CS_OFF = 131072 + 24576
        lab_h = self.newlabel("HELP"); lab_j = self.newlabel("P1J")
        self.c("P1: address setup (no pointers needed yet)")
        self.x_dma_setup(VX, t0, t1)
        e("s_lshr_b32 s44, %s, 1" % s(S_W)); e("s_lshl_b32 s44, s44, 3")
        e("v_and_b32 %s, 1, %s" % (v(t0), v(V_G))); e("v_and_b32 %s, 2, %s" % (v(t1), v(V_G)))
        e("v_lshl_or_b32 %s, %s, 1, %s" % (v(t0), v(t1), v(t0))); e("v_or_b32 %s, s44, %s" % (v(t0), v(t0)))
        e("v_xor_b32 %s, %s, %s" % (v(t0), v(t0), v(V_C)))
        e("s_lshl_b32 s45, %s, 2" % s(S_W)); e("v_add_u32 %s, s45, %s" % (v(t1), v(V_G)))
        e("v_mul_u32_u24 %s, 3840, %s" % (v(t1), v(t1)))
        e("v_lshl_add_u32 %s, %s, 4, %s" % (v(t1), v(t0), v(t1)))
        e("s_lshl_b32 s44, %s, 8" % s(S_N1)); e("v_add_u32 %s, s44, %s" % (v(VWO), v(t1)))
        e("s_lshl_b32 s47, %s, 10" % s(S_W))
        e("s_lshl_b32 s48, %s, 12" % s(S_W))
        e("s_waitcnt lgkmcnt(0)")
        self.srd(S_X, 64, 2048 * 640 * 2)
        self.srd(S_WQ, 66, 640 * 1920 * 2)
        self.srd(S_WS, 80, WS_SIZE)
        self.srd(S_DBG, 78, 256)
        l = self.newlabel("NP")
        e("s_lshl_b32 s44, s2, 2"); e("s_or_b32 s44, s44, %s" % s(S_W))
        e("s_cmp_lg_u32 s44, 0"); e("s_cbranch_scc1 %s" % l)
        e("s_memrealtime s[44:45]")
        e("s_waitcnt lgkmcnt(0)")
        e("s_or_b32 s44, s44, 1")
        e("v_mov_b32 v204, s44"); e("v_mov_b32 v205, s45"); e("v_mov_b32 v206, 0")
        e("s_mov_b64 exec, 1")
        e("buffer_store_dwordx2 v[204:205], v206, %s, 0 offen sc1" % s(S_DBG, 4))
        e("s_mov_b64 exec, -1")
        self.label(l)
        self.stamp(pre=96)
        self.stamp()
        e("s_cmp_eq_u32 %s, 15" % s(S_N1)); e("s_cbranch_scc1 %s" % lab_h)
        ROT = o.get("rot", 1)
        if ROT:
            e("s_and_b32 s44, %s, 3" % s(S_M1)); e("s_mul_i32 s44, s44, 5"); e("s_and_b32 s45, %s, 7" % s(S_N1)); e("s_mul_i32 s45, s45, 5"); e("s_add_u32 s44, s44, s45")
            e("s_lshr_b32 s44, s44, 1"); e("s_cmp_ge_u32 s44, 20"); e("s_cselect_b32 s45, 20, 0"); e("s_sub_u32 s44, s44, s45")
            e("s_cmp_ge_u32 s44, 10"); e("s_cselect_b32 s45, 10, 0"); e("s_sub_u32 s44, s44, s45")
            e("s_mul_i32 s86, s44, %d" % (64 * 3840)); e("s_lshl_b32 s87, s44, 7")
        def stage_adv():
            return ["s_add_u32 s86, s86, %d" % (64 * 3840), "s_add_u32 s87, s87, 128", "s_cmp_ge_u32 s87, 1280", "s_cselect_b32 s86, 0, s86", "s_cselect_b32 s87, 0, s87"]
        def dma_ops(st):
            ops = []
            sl = ((st // 2) % 4) * 32768
            for h in range(2):
                if o.get("xnoW") and st >= 2: continue
                if ROT:
                    pre = stage_adv() if (st % 2 == 0 and h == 0 and st > 0) else []
                    ops.append((pre + ["s_add_u32 m0, s47, 0x%x" % (sl + (st & 1) * 8192 + h * 4096), "s_add_u32 %s, s86, 0x%x" % (s(S_SOFF), (32 * (st & 1) + 16 * h) * 3840)],
                                "buffer_load_dwordx4 %s, %s, %s offen lds" % (v(VWO), s(S_WQ, 4), s(S_SOFF))))
                    continue
                ops.append((["s_add_u32 m0, s47, 0x%x" % (sl + (st & 1) * 8192 + h * 4096), "s_mov_b32 %s, 0x%x" % (s(S_SOFF), (32 * st + 16 * h) * 3840)],
                            "buffer_load_dwordx4 %s, %s, %s offen lds" % (v(VWO), s(S_WQ, 4), s(S_SOFF))))
            for i in range(2):
                if o.get("xnoX") and st >= 2: continue
                ii = (st & 1) * 2 + i
                ops.append((["s_add_u32 m0, s48, 0x%x" % (sl + 16384 + ii * 1024),
                             ("s_add_u32 %s, s87, %d" % (s(S_SOFF), (ii >> 1) * 16 * 1280)) if ROT else ("s_mov_b32 %s, %d" % (s(S_SOFF), (st // 2) * 128 + (ii >> 1) * 16 * 1280))],
                            "buffer_load_dwordx4 %s, %s, %s offen lds" % (v(VX + (ii & 1)), s(S_X, 4), s(S_SOFF))))
            return ops
        def issue_now(st):
            for su, ld in dma_ops(st):
                for x in su: e(x)
                self.vm(ld, ("st", st))
        issue_now(0)
        if o.get("tlb", 0):
            e("v_lshlrev_b32 %s, 19, %s" % (v(t0), v(V_L))); e("v_add_u32 %s, 0x7ff80, %s" % (v(t0), v(t0)))
            self.vm("buffer_load_dword v186, %s, %s, 0 offen" % (v(t0), s(S_WS, 4)), "touch")
        if o.get("pf1", 1):
            e("s_and_b32 s44, %s, 3" % s(S_M1)); e("s_mul_i32 s44, s44, %d" % (160 * 3840)); e("s_lshl_b32 s45, %s, 8" % s(S_N1)); e("s_add_u32 s44, s44, s45")
            e("s_lshl_b32 s45, %s, 6" % s(S_W)); e("v_add_u32 %s, s45, %s" % (v(t0), v(V_L)))
            e("v_lshrrev_b32 %s, 1, %s" % (v(t1), v(t0))); e("v_mul_u32_u24 %s, 3840, %s" % (v(t1), v(t1)))
            e("v_and_b32 %s, 1, %s" % (v(t2), v(t0))); e("v_lshl_add_u32 %s, %s, 7, %s" % (v(t1), v(t2), v(t1)))
            self.vm("buffer_load_dword v190, %s, %s, s44 offen" % (v(t1), s(S_WQ, 4)), "touch")
            lt = self.newlabel("TX"); lj = self.newlabel("TJ")
            e("s_cmp_lg_u32 %s, 0" % s(S_W)); e("s_cbranch_scc1 %s" % lt)
            e("v_add_u32 %s, %d, %s" % (v(t1), 128 * 3840, v(t1)))
            e("buffer_load_dword v191, %s, %s, s44 offen" % (v(t1), s(S_WQ, 4)))
            e("s_branch %s" % lj)
            self.label(lt)
            e("v_subrev_u32 %s, 64, %s" % (v(t0), v(t0))); e("v_min_u32 %s, 159, %s" % (v(t0), v(t0)))
            e("v_mul_u32_u24 %s, 6554, %s" % (v(t1), v(t0))); e("v_lshrrev_b32 %s, 16, %s" % (v(t1), v(t1)))
            e("v_mul_u32_u24 %s, 10, %s" % (v(t2), v(t1))); e("v_sub_u32 %s, %s, %s" % (v(t2), v(t0), v(t2)))
            e("s_and_b32 s44, %s, 7" % s(S_N1)); e("s_lshl_b32 s44, s44, 4"); e("s_lshl_b32 s45, %s, 7" % s(S_M1)); e("s_add_u32 s44, s44, s45")
            e("v_add_u32 %s, s44, %s" % (v(t1), v(t1))); e("v_mul_u32_u24 %s, 1280, %s" % (v(t1), v(t1)))
            e("v_lshl_add_u32 %s, %s, 7, %s" % (v(t1), v(t2), v(t1)))
            e("buffer_load_dword v187, %s, %s, 0 offen" % (v(t1), s(S_X, 4)))
            self.label(lj)
            self.vmq.append("touch")
        for st in range(1, 3): issue_now(st)
        if o.get("cpf", 1):
            e("s_getpc_b64 s[44:45]")
            self.label("L_pc")
            e("s_mov_b32 s50, L_end-L_pc")
            e("v_lshlrev_b32 %s, 7, %s" % (v(t0), v(V_L)))
            e("s_lshl_b32 s46, %s, 14" % s(S_W)); e("v_add_u32 %s, s46, %s" % (v(t0), v(t0)))
            for k in range(2):
                e("v_min_u32 %s, s50, %s" % (v(t1), v(t0)))
                self.vm("global_load_dword v%d, %s, s[44:45]" % (188 + k, v(t1)), "touch")
                if k == 0: e("v_add_u32 %s, 8192, %s" % (v(t0), v(t0)))
        self.stamp()
        self.prologue2()
        self.c("W tile / x fragment read addresses")
        e("v_lshrrev_b32 %s, 2, %s" % (v(t0), v(V_C)))
        e("v_and_b32 %s, 3, %s" % (v(t1), v(V_L)))
        e("v_and_b32 %s, 1, %s" % (v(t2), v(t0))); e("v_and_b32 %s, 2, %s" % (v(t3), v(t0)))
        e("v_lshl_or_b32 %s, %s, 1, %s" % (v(t2), v(t3), v(t2)))
        e("v_and_b32 %s, 1, %s" % (v(t3), v(V_G))); e("v_lshl_or_b32 %s, %s, 3, %s" % (v(t2), v(t3), v(t2)))
        e("v_lshl_add_u32 %s, %s, 3, %s" % (v(t0), v(V_G), v(t0))); e("v_lshlrev_b32 %s, 8, %s" % (v(t0), v(t0)))
        e("s_lshr_b32 s50, %s, 1" % s(S_W)); e("s_and_b32 s45, %s, 1" % s(S_W)); e("s_lshl_b32 s45, s45, 1")
        for i in range(4):
            if i % 2 == 0:
                e("s_xor_b32 s44, s50, %d" % (i >> 1)); e("s_add_u32 s44, s44, s45"); e("s_lshl_b32 s44, s44, 2")
                e("v_add_u32 %s, s44, %s" % (v(t3), v(t1))); e("v_xor_b32 %s, %s, %s" % (v(t3), v(t3), v(t2)))
                e("v_lshl_add_u32 %s, %s, 4, %s" % (v(t3 + 1), v(t3), v(t0)))
            e("v_and_b32 %s, 1, %s" % (v(t3), v(t1)))
            if i & 1: e("v_xor_b32 %s, 1, %s" % (v(t3), v(t3)))
            e("v_lshl_add_u32 %s, %s, 3, %s" % (v(VT + i), v(t3), v(t3 + 1)))
        self.x_frag_addr(VXA, t0, None)
        e("s_lshl_b32 s44, s50, 13"); e("s_add_u32 s44, s44, 16384")
        e("v_add_u32 %s, s44, %s" % (v(VXA), v(VXA))); e("v_add_u32 %s, s44, %s" % (v(VXA + 1), v(VXA + 1)))
        INIT = o.get("init", 8)
        for st in range(3, INIT): issue_now(st)
        for i in range(4): e("v_mov_b32 %s, 0x3f803f80" % v(VONE + i))
        self.c("pack set-up")
        PS = []
        pe = PS.append
        pe("s_mul_i32 s49, %s, 15" % s(S_M1)); pe("s_add_u32 s49, s49, %s" % s(S_N1))
        pe("s_cmp_lt_u32 s49, 80")
        pe("s_cselect_b32 s64, %s, %s" % (s(S_WO), s(S_W1))); pe("s_cselect_b32 s65, %s, %s" % (s(S_WO + 1), s(S_W1 + 1)))
        pe("s_cselect_b32 s66, %s, %s" % (s(S_WO + 2), s(S_W1 + 2))); pe("s_mov_b32 s67, 0x20000")
        pe("s_mov_b32 s72, 1280"); pe("s_cselect_b32 s72, s72, 3072")
        pe("s_cselect_b32 s73, 19, 23")
        pe("s_cselect_b32 s74, 2, 3")
        pe("s_cselect_b32 s75, 0, 80")
        pe("s_mov_b32 s76, 320"); pe("s_cselect_b32 s76, s76, 384")
        pe("s_cselect_b32 s77, 5, 6")
        pe("s_mov_b32 s78, 20")
        pe("s_mov_b32 s79, 0x%x" % WS_PW3); pe("s_cselect_b32 s79, s79, 0x%x" % WS_PW4)
        pe("s_sub_u32 s50, s49, s75"); pe("s_lshr_b32 s51, s50, s74")
        pe("s_lshl_b32 s52, 1, s74"); pe("s_sub_u32 s52, s52, 1"); pe("s_and_b32 s52, s50, s52")
        for i3 in range(3):
            pe("s_lshl_b32 s54, %s, 6" % s(S_W)); pe("s_add_u32 s54, s54, %d" % (256 * i3))
            pe("v_add_u32 %s, s54, %s" % (v(t0), v(V_L)))
            pe("v_mul_u32_u24 %s, 2731, %s" % (v(136 + i3), v(t0))); pe("v_lshrrev_b32 %s, 16, %s" % (v(136 + i3), v(136 + i3)))
            pe("v_mul_u32_u24 %s, 24, %s" % (v(t2), v(136 + i3))); pe("v_sub_u32 %s, %s, %s" % (v(139 + i3), v(t0), v(t2)))
        pe("v_lshrrev_b32 %s, 2, %s" % (v(t1), v(V_C))); pe("v_lshl_add_u32 %s, %s, 3, %s" % (v(t1), v(V_G), v(t1))); pe("v_mul_u32_u24 %s, 384, %s" % (v(t1), v(t1)))
        pe("v_and_b32 %s, 3, %s" % (v(t0), v(V_L)))
        pe("v_lshl_add_u32 v142, %s, 4, %s" % (v(t0), v(t1))); pe("v_lshl_add_u32 v143, %s, 3, %s" % (v(t0), v(t1)))
        pe("v_lshlrev_b32 v144, 4, %s" % v(V_L))
        pe("s_lshr_b32 s60, %s, 1" % s(S_W))
        pe("s_and_b32 s61, %s, 1" % s(S_W)); pe("s_mul_i32 s61, s61, 3")
        def pack_setup(blk, valid_s):
            pe("s_mul_i32 s53, s51, s72"); pe("s_lshl_b32 s53, s53, 5"); pe("s_mul_i32 s54, s52, s76"); pe("s_add_u32 s53, s53, s54")
            for i3 in range(3):
                pe("v_min_u32 %s, s73, %s" % (v(t2), v(139 + i3)))
                pe("v_mul_lo_u32 %s, %s, s72" % (v(t1), v(136 + i3)))
                pe("v_lshl_add_u32 %s, %s, 4, %s" % (v(t1), v(t2), v(t1)))
                pe("v_add_u32 %s, s53, %s" % (v(VPK + 3 * blk + i3), v(t1)))
            pe("s_lshl_b32 s57, s52, 1"); pe("s_add_u32 s57, s57, s60"); pe("s_mul_i32 s57, s57, s78"); pe("s_add_u32 s57, s57, s51")
            pe("s_mul_i32 s57, s57, s77"); pe("s_lshl_b32 s57, s57, 10"); pe("s_add_u32 s57, s57, s79")
            if valid_s is not None:
                pe("s_cmp_lt_u32 s49, %d" % valid_s); pe("s_cselect_b32 s57, s57, 0x%x" % BIGOFF)
            pe("s_mul_i32 s58, s60, s77"); pe("s_lshl_b32 s58, s58, 5"); pe("s_add_u32 s58, s58, %d" % (PK_OFF + blk * 12288))
            for i3 in range(3):
                pe("s_add_u32 s56, s61, %d" % i3)
                pe("s_lshr_b32 s54, s56, 1"); pe("s_lshl_b32 s54, s54, 6"); pe("s_and_b32 s55, s56, 1"); pe("s_lshl_b32 s55, s55, 3")
                pe("s_add_u32 s54, s54, s55"); pe("s_add_u32 s54, s54, s58")
                pe("s_lshl_b32 s55, s77, 3"); pe("s_add_u32 s55, s55, s56"); pe("s_cmp_eq_u32 s55, 44")
                pe("s_cselect_b64 s[68:69], -1, 0")
                pe("v_cndmask_b32 %s, v142, v143, s[68:69]" % v(t0))
                pe("v_add_u32 %s, s54, %s" % (v(VPA + 3 * blk + i3), v(t0)))
                pe("s_lshl_b32 s54, s56, 10"); pe("s_add_u32 s54, s54, s57"); pe("s_cmp_lt_u32 s56, s77"); pe("s_cselect_b32 s54, s54, 0x%x" % BIGOFF)
                pe("v_add_u32 %s, s54, v144" % v(VPA + 6 + 3 * blk + i3))
        pack_setup(0, None)
        for x in ("s_mov_b32 s72, 1280", "s_mov_b32 s73, 19", "s_mov_b32 s76, 320", "s_mov_b32 s77, 5", "s_mov_b32 s78, 48", "s_mov_b32 s79, 0x%x" % WS_PW5,
                  "s_lshr_b32 s51, s49, 2", "s_and_b32 s52, s49, 3"): pe(x)
        pack_setup(1, 192)
        self.stamp()
        self.c("P1 main loop")
        NS = 20
        def reads(st):
            b = (st % 2) * 32; sl = ((st // 2) % 2) * 32768
            pre = []
            if st % 8 == 4:
                pre = ["v_add_u32 %s, 0x10000, %s" % (v(r), v(r)) for r in (VT, VT + 1, VT + 2, VT + 3, VXA, VXA + 1)]
            elif st % 8 == 0 and st > 0:
                pre = ["v_subrev_u32 %s, 0x10000, %s" % (v(r), v(r)) for r in (VT, VT + 1, VT + 2, VT + 3, VXA, VXA + 1)]
            r = []
            for i in range(4):
                r.append("ds_read_b64_tr_b16 %s, %s offset:%d" % (a(b + i * 4, 2), v(VT + i), sl + (st & 1) * 8192))
                r.append("ds_read_b64_tr_b16 %s, %s offset:%d" % (a(b + i * 4 + 2, 2), v(VT + i), sl + (st & 1) * 8192 + 1024))
            for tt in range(4):
                r.append("ds_read_b128 %s, %s offset:%d" % (a(b + 16 + tt * 4, 4), v(VXA + (st & 1)), sl + tt * 2048))
            return pre, r
        self.vm_wait(("st", 1))
        e("s_barrier")
        pre, r = reads(0)
        for x in pre + r: e(x)
        pending_dma = [(su, ld, ("st", s2)) for s2 in range(INIT, 8) for su, ld in dma_ops(s2)]
        groups = []; cur = []
        for x in PS:
            cur.append(x)
            if len(cur) >= 6 and not x.startswith(("s_cmp", "s_cselect", "s_mov")): groups.append(cur); cur = []
        if cur: groups.append(cur)
        if o.get("xnopk"): groups = []
        for st in range(NS):
            b = (st % 2) * 32
            e("s_waitcnt lgkmcnt(0)")
            nxt = st + 1
            if nxt < NS and nxt % 2 == 0:
                if ("st", nxt + 1) in self.vmq: self.vm_wait(("st", nxt + 1))
                e("s_barrier")
                if o.get("fine"): self.stamp()
                for s2 in (nxt + 6, nxt + 7):
                    if s2 < NS: pending_dma += [(su, ld, ("st", s2)) for su, ld in dma_ops(s2)]
            if st == 7 and not o.get("xnopk"):
                pk = []
                for blk in range(2):
                    for i3 in range(3):
                        pk.append((["s_add_u32 m0, s47, 0x%x" % (PK_OFF + blk * 12288 + i3 * 4096), "s_nop 0"],
                                   "buffer_load_dwordx4 %s, %s, 0 offen lds" % (v(VPK + 3 * blk + i3), s(64 if blk == 0 else S_W2, 4)), "pk"))
                pending_dma = pk + pending_dma
            if st == 7 and not o.get('xnocs'): assert len(groups) <= 5, len(groups)
            if st == 7 and o.get('xnocs'):
                for gr in groups:
                    for x in gr: e(x)
                groups = []
            pre, r = reads(nxt) if nxt < NS else ([], [])
            pk_rd = st - 13 if 13 <= st < 19 and not o.get("xnopk") else None
            pk_st = st - 14 if 14 <= st < 20 and not o.get("xnopk") else None
            if pk_rd is not None:
                f = PKF + (st % 2) * 4
                r = r + ["ds_read_b64_tr_b16 %s, %s" % (v(f, 2), v(VPA + pk_rd)),
                         "ds_read_b64_tr_b16 %s, %s offset:%d" % (v(f + 2, 2), v(VPA + pk_rd), 4 * 384)]
            mf = []
            for i in range(4):
                for tt in range(4):
                    mf.append("%s %s, %s, %s, %s" % (M, v(acc(i, tt), 4), a(b + i * 4, 4), a(b + 16 + tt * 4, 4), v(acc(i, tt), 4) if st else "0"))
                if i < 2 and not o.get("xnocs"): mf.append("%s %s, %s, %s, %s" % (M, v(VCS + i * 4, 4), a(b + i * 4, 4), v(VONE, 4), v(VCS + i * 4, 4) if st else "0"))
            for x in pre: e(x)
            dpos = (1, 5, 10, 14) if st >= 4 else (0, 2, 4, 7, 9, 11, 13, 15)
            for n, m in enumerate(mf):
                if st >= 1 and n in (3, 6, 8, 12, 15, 17) and groups and not (n in dpos):
                    for x in groups.pop(0): e(x)
                dm = None
                if n in dpos and pending_dma:
                    dm = pending_dma.pop(0)
                    for x in dm[0]: e(x)
                e(m)
                if n < len(r): e(r[n])
                if dm: self.vm(dm[1], dm[2])
                if n == 8 and pk_st is not None:
                    f = PKF + ((st - 1) % 2) * 4
                    self.vm("buffer_store_dwordx4 %s, %s, %s, 0 offen sc1" % (v(f, 4), v(VPA + 6 + pk_st), s(S_WS, 4)), "pkst")
                if n == len(mf) - 2 and st == 15: self.nonce_issue(VN)
                if n == len(mf) - 2 and st == 17:
                    e("s_lshl_b32 s44, %s, 7" % s(S_M1)); e("s_lshr_b32 s45, %s, 1" % s(S_W)); e("s_lshl_b32 s45, s45, 6"); e("s_add_u32 s44, s44, s45")
                    e("v_add_u32 %s, s44, %s" % (v(t0), v(V_C))); e("v_lshlrev_b32 %s, 4, %s" % (v(t0), v(t0)))
                    e("v_add_u32 %s, 0x%x, %s" % (v(19), WS_STAT, v(t0)))
                    for tt in range(4):
                        self.vm("buffer_load_dwordx4 %s, %s, %s, 0 offen offset:%d sc1" % (v(VST + tt * 4, 4), v(19), s(S_WS, 4), tt * 256), "stat")
            assert st < NS - 1 or not pending_dma
        self.stamp()
        self.c("P1 epilogue")
        e("s_lshr_b32 s44, %s, 1" % s(S_W)); e("s_and_b32 s45, %s, 1" % s(S_W)); e("s_lshl_b32 s45, s45, 1")
        e("s_add_u32 s46, s44, s45")
        e("s_xor_b32 s44, s44, 1"); e("s_add_u32 s50, s44, s45")
        e("s_lshl_b32 s51, s46, 7"); e("s_add_u32 s51, s51, 0x%x" % CS_OFF)
        e("v_lshlrev_b32 %s, 4, %s" % (v(t0), v(V_G)))
        e("v_add_u32 %s, s51, %s" % (v(t1), v(t0)))
        e("v_cmp_eq_u32 vcc, 0, %s" % v(V_C))
        e("s_and_saveexec_b64 s[52:53], vcc")
        e("ds_write_b128 %s, %s" % (v(t1), v(VCS, 4)))
        e("ds_write_b128 %s, %s offset:64" % (v(t1), v(VCS + 4, 4)))
        e("s_mov_b64 exec, s[52:53]")
        e("s_mov_b32 s61, s46")
        self.nonce_get(VN)
        self.vm_wait("stat")
        l0 = self.newlabel("SR"); l1 = self.newlabel("SD")
        e("s_mov_b32 s44, 0")
        self.label(l0)
        e("s_mov_b64 s[52:53], -1")
        for tt in range(4):
            e("v_cmp_eq_u32 s[54:55], %s, %s" % (s(S_NONCE), v(VST + tt * 4 + 2)))
            e("v_cmp_eq_u32 s[56:57], %s, %s" % (s(S_NONCE + 1), v(VST + tt * 4 + 3)))
            e("s_and_b64 s[52:53], s[52:53], s[54:55]"); e("s_and_b64 s[52:53], s[52:53], s[56:57]")
        e("s_cmp_eq_u64 s[52:53], -1"); e("s_cbranch_scc1 %s" % l1)
        e("s_add_u32 s44, s44, 1"); e("s_cmp_gt_u32 s44, 20000"); e("s_cbranch_scc1 %s" % l1)
        for tt in range(4):
            e("buffer_load_dwordx4 %s, %s, %s, 0 offen offset:%d sc1" % (v(VST + tt * 4, 4), v(19), s(S_WS, 4), tt * 256))
        e("s_waitcnt vmcnt(0)")
        e("s_branch %s" % l0)
        self.label(l1)
        e("s_waitcnt lgkmcnt(0)")
        e("s_barrier")
        CSV = 146
        e("s_lshl_b32 s52, s50, 7"); e("s_add_u32 s52, s52, 0x%x" % CS_OFF)
        e("v_add_u32 %s, s52, %s" % (v(t1), v(t0)))
        e("ds_read_b128 %s, %s" % (v(CSV + 8, 4), v(t1)))
        e("ds_read_b128 %s, %s offset:64" % (v(CSV + 12, 4), v(t1)))
        for i in range(8): e("v_mov_b32 %s, %s" % (v(CSV + i), v(VCS + i)))
        qs = math.log2(math.e) / math.sqrt(20.0)
        e("s_cmp_lt_u32 %s, 5" % s(S_N1)); e("s_mov_b32 s53, 0x3f800000"); e("s_cselect_b32 s53, 0x%x, s53" % f2u(qs))
        for tt in range(4):
            e("v_mul_f32 %s, s53, %s" % (v(VST + tt * 4 + 1), v(VST + tt * 4 + 1)))
            e("v_xor_b32 %s, 0x80000000, %s" % (v(VST + tt * 4), v(VST + tt * 4)))
        e("v_lshlrev_b32 %s, 11, %s" % (v(t2), v(V_G))); e("v_add_u32 %s, %s, %s" % (v(t2), v(t2), v(V_C))); e("v_lshlrev_b32 %s, 4, %s" % (v(t2), v(t2)))
        e("s_lshl_b32 s54, %s, 7" % s(S_M1)); e("s_lshr_b32 s55, %s, 1" % s(S_W)); e("s_lshl_b32 s55, s55, 6"); e("s_add_u32 s54, s54, s55")
        e("s_lshl_b32 s55, %s, 4" % s(S_N1))
        for q, sp in ((0, 61), (1, 50)):
            e("s_lshl_b32 s56, %s, 2" % s(sp)); e("s_add_u32 s56, s56, s55"); e("s_lshl_b32 s56, s56, 11"); e("s_add_u32 s56, s56, s54")
            e("s_lshl_b32 s56, s56, 4"); e("s_add_u32 %s, s56, 0x%x" % (s(58 + q), WS_QKV))
        e("s_waitcnt lgkmcnt(0)")
        OUTR = 188
        n = 0
        for q in range(2):
            for tt in range(4):
                nm = VST + tt * 4
                P = []
                for hf in range(2):
                    i = 2 * q + hf; A_ = acc(i, tt)
                    for h in range(2):
                        e("v_pk_fma_f32 %s, %s, %s, %s op_sel_hi:[1,0,1]" % (v(A_ + 2 * h, 2), v(CSV + i * 4 + 2 * h, 2), v(nm, 2), v(A_ + 2 * h, 2)))
                    for h in range(2):
                        e("v_pk_mul_f32 %s, %s, %s op_sel:[0,1] op_sel_hi:[1,1]" % (v(A_ + 2 * h, 2), v(A_ + 2 * h, 2), v(nm, 2)))
                    e("v_cvt_pk_bf16_f32 %s, %s, %s" % (v(A_), v(A_), v(A_ + 1)))
                    e("v_cvt_pk_bf16_f32 %s, %s, %s" % (v(A_ + 1), v(A_ + 2), v(A_ + 3)))
                    P.append(A_)
                O4 = OUTR + (n % 4) * 4
                e("v_cndmask_b32 %s, %s, %s, %s" % (v(O4), v(P[0]), v(P[1]), s(S_ODD, 2)))
                e("v_cndmask_b32 %s, %s, %s, %s" % (v(O4 + 1), v(P[0] + 1), v(P[1] + 1), s(S_ODD, 2)))
                e("v_cndmask_b32 %s, %s, %s, %s" % (v(O4 + 2), v(P[1]), v(P[0]), s(S_ODD, 2)))
                e("v_cndmask_b32 %s, %s, %s, %s" % (v(O4 + 3), v(P[1] + 1), v(P[0] + 1), s(S_ODD, 2)))
                self.vm("buffer_store_dwordx4 %s, %s, %s, %s offen offset:%d sc1" % (v(O4, 4), v(t2), s(S_WS, 4), s(58 + q), tt * 256), "qkvst")
                n += 1
        e("s_branch %s" % lab_j)
        self.label(lab_h)
        self.prologue2()
        self.p1_helper()
        self.label(lab_j)
        self.stamp()
        e("s_barrier")
        e("s_lshl_b32 s89, %s, 4" % s(S_M1)); e("s_add_u32 s89, s89, %s" % s(S_N1))
        self.vmq = []

    def wait_all(self, phase, vt, barrier=True, allwaves=False):
        e = self.e
        l = self.newlabel("WA")
        if not allwaves:
            e("s_cmp_lg_u32 %s, 0" % s(S_W)); e("s_cbranch_scc1 %s" % l)
        e("v_lshlrev_b32 %s, 8, %s" % (v(vt), v(V_L)))
        if phase: e("v_add_u32 %s, 0x%x, %s" % (v(vt), WS_FLAGS + phase * 16384, v(vt)))
        self.flag_poll(vt, vt + 2, nloads=4, stride=64)
        self.label(l)
        if barrier: e("s_barrier")
    def poll_group(self, phase, vt):
        e = self.e
        e("s_lshl_b32 s52, %s, 10" % s(S_M3)); e("s_add_u32 s52, s52, 0x%x" % (WS_FLAGS + phase * 16384))
        e("v_lshlrev_b32 %s, 6, %s" % (v(vt), v(V_C)))
        e("v_add_u32 %s, s52, %s" % (v(vt), v(vt)))
        self.flag_poll(vt, vt + 2)
    def job4(self, sbase, blk, pos, tag, vl16=4):
        return (["s_add_u32 m0, %s, 0x%x" % (s(S_W1K), pos * 1024), "s_add_u32 %s, %s, 0x%x" % (s(S_SOFF), s(sbase), blk * 1024)],
                "buffer_load_dwordx4 %s, %s, %s offen sc1 lds" % (v(vl16), s(S_WS, 4), s(S_SOFF)), tag)
    def emit_job(self, j):
        for x in j[0]: self.e(x)
        self.vm(j[1], j[2])
    def dma3(self, sbase, blk0, pos0, njobs, tag, vl16=4):
        e = self.e
        e("s_sub_u32 s49, %s, 1024" % s(sbase))
        for k in range(njobs):
            e("s_add_u32 m0, %s, 0x%x" % (s(S_W3), (pos0 + 3 * k) * 1024))
            e("s_add_u32 %s, s49, 0x%x" % (s(S_SOFF), (blk0 + 3 * k) * 1024))
            self.vm("buffer_load_dwordx4 %s, %s, %s offen sc1 lds" % (v(vl16), s(S_WS, 4), s(S_SOFF)), tag)
    def group_flag_idx(self):
        self.e("s_lshl_b32 s52, %s, 4" % s(S_M3)); self.e("s_add_u32 s52, s52, %s" % s(S_J3))

    def p2(self):
        e = self.e; o = self.o
        KB, VB, BB, QB, OB = 0, 30720, 62080, 69632, 150 * 1024
        T = 200
        t0, t1, t2, t3 = T, T + 1, T + 2, T + 3
        VL16 = 4
        VKA = 5
        VVA = 8
        VMF, VML = 12, 16
        VQ = 20
        OA = 36
        SB = [56, 124]
        NEG = f2u(-1e30)
        self.c("P2 set-up")
        e("v_lshlrev_b32 %s, 4, %s" % (v(VL16), v(V_L)))
        e("s_lshl_b32 %s, %s, 10" % (s(S_W1K), s(S_W))); e("s_sub_u32 %s, %s, 1024" % (s(S_W3), s(S_W1K)))
        e("s_lshr_b32 %s, %s, 1" % (s(S_NQ), s(S_J3)))
        for sb, sk, sz, base in ((S_B3, S_NQ, 102400, WS_PW3), (S_B4, S_J3, 122880, WS_PW4), (S_B5, S_NQ, 245760, WS_PW5)):
            e("s_mul_i32 %s, %s, %d" % (s(sb), s(sk), sz)); e("s_add_u32 %s, %s, 0x%x" % (s(sb), s(sb), base)); e("s_add_u32 %s, %s, %s" % (s(sb), s(sb), s(S_W1K)))
        e("s_lshl_b32 %s, %s, 3" % (s(S_TI), s(S_M3))); e("s_and_b32 s52, %s, 1" % s(S_J3)); e("s_lshl_b32 s52, s52, 2")
        e("s_add_u32 %s, %s, s52" % (s(S_TI), s(S_TI))); e("s_add_u32 %s, %s, %s" % (s(S_TI), s(S_TI), s(S_W)))
        e("s_lshl_b32 s52, %s, 7" % s(S_M3)); e("s_sub_i32 s52, 256, s52")
        e("v_mov_b32 %s, 0xf149" % v(t0 + 4))
        e("v_mov_b32 %s, 0" % v(t0 + 9)); e("v_mov_b32 %s, 0x3f80" % v(t0 + 10)); e("v_mov_b32 %s, 0" % v(t0 + 11))
        e("v_cmp_gt_i32 vcc, s52, v0")
        e("v_cndmask_b32 %s, 0, %s, vcc" % (v(t0 + 8), v(t0 + 4)))
        e("v_lshlrev_b32 %s, 4, v0" % v(t1)); e("v_add_u32 %s, %d, %s" % (v(t1), BB, v(t1)))
        e("ds_write_b128 %s, %s" % (v(t1), v(t0 + 8, 4)))
        e("v_add_u32 %s, 256, v0" % v(t2))
        e("v_cmp_gt_i32 vcc, s52, %s" % v(t2))
        e("v_cndmask_b32 %s, 0, %s, vcc" % (v(t0 + 12), v(t0 + 4)))
        e("v_mov_b32 %s, 0" % v(t0 + 13)); e("v_mov_b32 %s, 0x3f80" % v(t0 + 14)); e("v_mov_b32 %s, 0" % v(t0 + 15))
        e("v_cmp_gt_u32 vcc, 160, v0")
        e("s_and_saveexec_b64 s[54:55], vcc")
        e("ds_write_b128 %s, %s offset:4096" % (v(t1), v(t0 + 12, 4)))
        e("s_mov_b64 exec, s[54:55]")
        e("s_mul_i32 s55, %s, 5" % s(S_J3))
        e("s_lshl_b32 s56, %s, 7" % s(S_M3)); e("s_sub_i32 s56, s56, 256")
        e("s_cmp_ge_u32 %s, 2" % s(S_W))
        e("s_cselect_b32 s57, -2, 4")
        e("s_cselect_b32 s70, 26624, 0")
        e("s_cselect_b32 s71, 128, 0")
        e("s_add_i32 s57, s57, %s" % s(S_W))
        for k, (reg, add) in enumerate(((S_W, 0), (57, 0), (S_W, 2))):
            e("s_add_i32 s58, %s, %d" % (s(reg), add)); e("s_lshl_b32 s58, s58, 6"); e("s_add_i32 s58, s58, s56"); e("s_cmp_lt_i32 s58, 0")
            e("s_cselect_b32 %s, 0x%x, 0" % (s(64 + k), BIGOFF))
        e("s_add_u32 s65, s65, s70")
        e("s_lshl_b32 s56, s56, 4"); e("s_add_u32 s56, s56, %s" % s(S_W1K))
        e("s_add_u32 s58, s55, 80"); e("s_lshl_b32 s58, s58, 15"); e("s_add_u32 s58, s58, 0x%x" % WS_QKV); e("s_add_u32 s68, s58, s56")
        e("s_add_u32 s69, s68, 0x%x" % (80 << 15))
        e("s_lshr_b32 s58, %s, 1" % s(S_W)); e("s_add_u32 s58, s58, s55"); e("s_lshl_b32 s58, s58, 15"); e("s_lshl_b32 s59, %s, 11" % s(S_M3)); e("s_add_u32 s58, s58, s59")
        e("s_and_b32 s59, %s, 1" % s(S_W)); e("s_lshl_b32 s59, s59, 10"); e("s_add_u32 s58, s58, s59"); e("s_add_u32 s72, s58, 0x%x" % WS_QKV)
        e("v_lshrrev_b32 %s, 3, %s" % (v(t0), v(V_L))); e("v_and_b32 %s, 3, %s" % (v(t0), v(t0))); e("v_min_u32 %s, 2, %s" % (v(t0), v(t0)))
        e("v_lshrrev_b32 %s, 1, %s" % (v(t1), v(V_L))); e("v_and_b32 %s, 3, %s" % (v(t1), v(t1))); e("v_min_u32 %s, 2, %s" % (v(t1), v(t1)))
        e("v_and_b32 %s, 1, %s" % (v(t2), v(V_L))); e("v_lshlrev_b32 %s, 2, %s" % (v(t2), v(t2)))
        e("v_mul_u32_u24 %s, 80, %s" % (v(t0), v(t0))); e("v_add3_u32 %s, %s, %s, s55" % (v(t0), v(t0), v(t2))); e("v_lshrrev_b32 %s, 4, %s" % (v(t0), v(t0)))
        e("s_sub_i32 s58, %s, 2" % s(S_M3)); e("v_add_u32 %s, s58, %s" % (v(t1), v(t1))); e("v_max_i32 %s, 0, %s" % (v(t1), v(t1)))
        e("v_lshl_add_u32 %s, %s, 4, %s" % (v(t0), v(t1), v(t0))); e("v_lshlrev_b32 %s, 6, %s" % (v(T + 19), v(t0)))
        self.c("fragment addresses and masks")
        e("s_lshl_b32 s57, %s, 5" % s(S_W)); e("v_add_u32 %s, s57, %s" % (v(t0), v(V_C))); e("v_lshlrev_b32 %s, 4, %s" % (v(t0), v(t0)))
        e("v_cmp_eq_u32 s[58:59], 3, %s" % v(V_G)); e("v_cmp_eq_u32 s[60:61], 2, %s" % v(V_G))
        e("v_mul_u32_u24 %s, 6144, %s" % (v(t1), v(V_G)))
        e("v_mov_b32 %s, %d" % (v(t2), BB))
        e("v_cndmask_b32 %s, %s, %s, s[58:59]" % (v(VKA), v(t1), v(t2)))
        e("v_add_u32 %s, %d, %s" % (v(t3), 3 * 6144, v(t1)))
        e("v_mov_b32 %s, %d" % (v(t0 + 4), 2 * 6144))
        e("v_cndmask_b32 %s, %s, %s, s[60:61]" % (v(t3), v(t3), v(t0 + 4)))
        e("v_cndmask_b32 %s, %s, %s, s[58:59]" % (v(VKA + 1), v(t3), v(t2)))
        e("v_add_u32 %s, %s, %s" % (v(VKA), v(VKA), v(t0))); e("v_add_u32 %s, %s, %s" % (v(VKA + 1), v(VKA + 1), v(t0)))
        VQA = 52
        e("v_lshlrev_b32 %s, 11, %s" % (v(t1), v(V_G)))
        e("v_cndmask_b32 %s, %s, 0, s[58:59]" % (v(VQA), v(t1)))
        e("v_add_u32 %s, %d, %s" % (v(t3), 3 * 2048, v(t1))); e("v_mov_b32 %s, %d" % (v(t0 + 4), 2 * 2048))
        e("v_cndmask_b32 %s, %s, %s, s[60:61]" % (v(t3), v(t3), v(t0 + 4)))
        e("v_cndmask_b32 %s, %s, 0, s[58:59]" % (v(VQA + 1), v(t3)))
        e("v_add_u32 %s, %d, %s" % (v(t3), QB, v(t0)))
        for h in range(2): e("v_add_u32 %s, %s, %s" % (v(VQA + h), v(VQA + h), v(t3)))
        e("v_lshrrev_b32 %s, 2, %s" % (v(t0), v(V_C))); e("v_lshl_add_u32 %s, %s, 2, %s" % (v(t0), v(V_G), v(t0)))
        e("v_add_u32 %s, s57, %s" % (v(t0), v(t0))); e("v_lshlrev_b32 %s, 4, %s" % (v(t0), v(t0)))
        e("v_and_b32 %s, 3, %s" % (v(t1), v(V_L)))
        for h in range(2):
            e("v_add_u32 %s, %d, %s" % (v(t2), 5 * h, v(t1)))
            e("v_lshrrev_b32 %s, 1, %s" % (v(t3), v(t2))); e("v_mul_u32_u24 %s, 6272, %s" % (v(t3), v(t3)))
            e("v_and_b32 %s, 1, %s" % (v(t2), v(t2))); e("v_lshl_add_u32 %s, %s, 3, %s" % (v(t3), v(t2), v(t3)))
            e("v_add_u32 %s, %s, %s" % (v(VVA + 2 * h), v(t3), v(t0)))
            e("v_add_u32 %s, %d, %s" % (v(VVA + 2 * h), VB, v(VVA + 2 * h)))
            X = 5 * h + 4
            e("v_and_b32 %s, 1, %s" % (v(t2), v(t1))); e("v_cmp_eq_u32 vcc, 1, %s" % v(t2))
            e("v_mov_b32 %s, %d" % (v(t3), VB + (X >> 1) * 6272 + (X & 1) * 8)); e("v_mov_b32 %s, %d" % (v(t0 + 4), BB + 8))
            e("v_cndmask_b32 %s, %s, %s, vcc" % (v(t3), v(t3), v(t0 + 4)))
            e("v_add_u32 %s, %s, %s" % (v(VVA + 2 * h + 1), v(t3), v(t0)))
        e("v_lshlrev_b32 %s, 2, %s" % (v(t0), v(V_G))); e("v_mov_b32 %s, 0x%x" % (v(t1), NEG))
        for i in range(4):
            e("v_add_u32 %s, %d, %s" % (v(t2), i, v(t0)))
            e("v_cmp_gt_u32 vcc, %s, %s" % (v(t2), v(V_C)))
            e("v_cndmask_b32 %s, %s, 0, vcc" % (v(VMF + i), v(t1)))
            e("v_cndmask_b32 %s, 0, %s, vcc" % (v(VML + i), v(t1)))
        VOW = 54
        e("s_mul_i32 %s, %s, 2560" % (s(S_OST), s(S_W))); e("s_add_u32 %s, %s, %d" % (s(S_OST), s(S_OST), OB))
        e("v_mul_u32_u24 %s, 80, %s" % (v(VOW), v(V_C))); e("v_lshl_add_u32 %s, %s, 3, %s" % (v(VOW), v(V_G), v(VOW))); e("v_add_u32 %s, %s, %s" % (v(VOW), s(S_OST), v(VOW)))
        e("s_waitcnt vmcnt(0) lgkmcnt(0)")
        e("s_barrier")
        self.flag_set(0, 89, T + 20)
        self.stamp()
        lw = self.newlabel("WD")
        e("s_cmp_lg_u32 %s, 0" % s(S_W)); e("s_cbranch_scc1 %s" % lw)
        self.flag_poll(T + 19, T + 22)
        self.label(lw)
        e("s_barrier")
        self.stamp()
        self.vmq = []
        def kvjob(base_s, ldsb, pitch, u, pat, tag):
            g = u * 32768 + (0, 4096, 32768 + 2048)[pat]
            l = ldsb + u * pitch + (0, 4096, pitch + 2048)[pat]
            e("s_add_u32 m0, %s, %d" % (s(S_W1K), l))
            if pat == 1 and pitch != 6144: e("s_add_u32 m0, m0, s71")
            e("s_add_u32 %s, %s, %s" % (s(S_SOFF), s(base_s), s(64 + pat)))
            if g: e("s_add_u32 %s, %s, %d" % (s(S_SOFF), s(S_SOFF), g))
            self.vm("buffer_load_dwordx4 %s, %s, %s offen sc1 lds" % (v(VL16), s(S_WS, 4), s(S_SOFF)), tag)
        def halfjob(base_s, ldsb, pitch, u, tag):
            e("s_cmp_ge_u32 %s, 2" % s(S_W))
            e("s_cselect_b32 s58, %d, %d" % (156 * 1024 - 2048, 0) if False else "s_mov_b32 s58, %d" % (ldsb + u * pitch + 4096))
            e("s_cselect_b32 s58, %d, s58" % (76 * 1024))
            e("s_add_u32 m0, %s, s58" % s(S_W1K))
            e("s_cselect_b32 s58, 0x%x, s65" % BIGOFF if False else "s_cmp_ge_u32 %s, 2" % s(S_W))
            e("s_cselect_b32 s58, 0x%x, s65" % BIGOFF)
            e("s_add_u32 %s, %s, s58" % (s(S_SOFF), s(base_s))); e("s_add_u32 %s, %s, %d" % (s(S_SOFF), s(S_SOFF), u * 32768 + 4096))
            self.vm("buffer_load_dwordx4 %s, %s, %s offen sc1 lds" % (v(VL16), s(S_WS, 4), s(S_SOFF)), tag)
        def qjob(u0, tag):
            e("s_add_u32 m0, %s, %d" % (s(S_W1K), QB + u0 * 2048))
            if u0 == 4:
                e("s_cmp_ge_u32 %s, 2" % s(S_W)); e("s_cselect_b32 s58, 0x%x, 0" % BIGOFF); e("s_add_u32 %s, s72, s58" % s(S_SOFF))
                e("s_add_u32 %s, %s, %d" % (s(S_SOFF), s(S_SOFF), u0 * 32768))
            else:
                e("s_add_u32 %s, s72, %d" % (s(S_SOFF), u0 * 32768))
            self.vm("buffer_load_dwordx4 %s, %s, %s offen sc1 lds" % (v(VL16), s(S_WS, 4), s(S_SOFF)), tag)
        for u in (0, 2):
            for pat in range(3): kvjob(68, KB, 6144, u, pat, "kq")
            qjob(u, "kq")
        qjob(4, "kq")
        for u in (0, 2):
            for pat in range(3): kvjob(69, VB, 6272, u, pat, "rest")
        for base_s, ldsb, pitch in ((68, KB, 6144), (69, VB, 6272)):
            kvjob(base_s, ldsb, pitch, 4, 0, "rest"); halfjob(base_s, ldsb, pitch, 4, "rest")
        lw = self.newlabel("FP")
        e("v_lshlrev_b32 %s, 8, %s" % (v(T + 20), v(V_L)))
        e("s_lshr_b32 s58, %s, 1" % s(S_M3)); e("s_lshr_b32 s59, s58, 1"); e("s_lshl_b32 s59, s59, 6"); e("s_and_b32 s58, s58, 1"); e("s_lshl_b32 s58, s58, 3"); e("s_add_u32 s59, s59, s58")
        e("s_and_b32 s58, %s, 1" % s(S_M3)); e("s_lshl_b32 s58, s58, 5"); e("s_add_u32 s59, s59, s58")
        e("v_lshrrev_b32 %s, 3, %s" % (v(T + 18), v(V_C))); e("v_lshlrev_b32 %s, 4, %s" % (v(T + 18), v(T + 18)))
        e("v_and_b32 %s, 7, %s" % (v(T + 30), v(V_C))); e("v_add3_u32 %s, %s, %s, s59" % (v(T + 18), v(T + 18), v(T + 30)))
        e("v_lshlrev_b32 %s, 6, %s" % (v(T + 18), v(T + 18)))
        e("s_cmp_lg_u32 %s, 0" % s(S_W)); e("s_cbranch_scc1 %s" % lw)
        for k in range(4):
            e("buffer_load_dwordx2 %s, %s, %s, 0 offen offset:%d sc1" % (v(T + 22 + 2 * k, 2), v(T + 20), s(S_WS, 4), k * 64))
        e("buffer_load_dwordx4 %s, %s, %s, 0 offen sc1" % (v(T + 32, 4), v(T + 18), s(S_WS, 4)))
        e("s_waitcnt vmcnt(15)")
        e("s_branch %s_j" % lw)
        self.label(lw)
        self.vm_wait("kq")
        self.label(lw + "_j")
        e("s_waitcnt lgkmcnt(0)")
        e("s_barrier")
        self.stamp()
        self.c("fragment loads")
        KF = [0, 72]; VF = [144, 0]
        def k_reads(h): return ["ds_read_b128 %s, %s offset:%d" % (a(KF[h] + B * 4, 4), v(VKA + h), B * 256) for B in range(18)]
        def v_reads(h):
            r = []
            for p in range(9):
                for dt in range(2):
                    d = VF[h] + (p * 2 + dt) * 4
                    r.append("ds_read_b64_tr_b16 %s, %s offset:%d" % (a(d, 2), v(VVA + 2 * h + dt), p * 512))
                    r.append("ds_read_b64_tr_b16 %s, %s offset:%d" % (a(d + 2, 2), v(VVA + 2 * h + dt), p * 512 + 256))
            return r
        for h in range(2):
            for qs in range(2):
                e("ds_read_b128 %s, %s offset:%d" % (v(VQ + (h * 2 + qs) * 4, 4), v(VQA + h), qs * 256))
        for x in k_reads(0)[:11]: e(x)
        e("v_cmp_eq_u32 s[58:59], 3, %s" % v(V_G)); e("v_cmp_eq_u32 s[60:61], 2, %s" % v(V_G))
        e("s_waitcnt lgkmcnt(11)")
        e("v_mov_b32 %s, 0x3f80" % v(t1))
        for h in range(2):
            for qs in range(2):
                q = VQ + (h * 2 + qs) * 4
                z = (2, 3) if h == 0 else (0, 1)
                for i in z: e("v_cndmask_b32 %s, %s, 0, s[60:61]" % (v(q + i), v(q + i)))
                e("v_cndmask_b32 %s, %s, %s, s[58:59]" % (v(q), v(q), v(t1)))
                for i in range(1, 4): e("v_cndmask_b32 %s, %s, 0, s[58:59]" % (v(q + i), v(q + i)))
        e("s_waitcnt lgkmcnt(8)")
        for x in k_reads(0)[11:]: e(x)
        tasks = [(0, 0), (0, 1), (1, 0), (1, 1)]
        def A(ti):
            h, qs = tasks[ti]; S = SB[ti % 2]; r = []
            for b in range(17):
                C = v(VMF, 4) if b == 0 else (v(VML, 4) if b == 16 else "0")
                r.append("%s %s, %s, %s, %s" % (M, v(S + b * 4, 4), a(KF[h] + (qs + b) * 4, 4), v(VQ + (h * 2 + qs) * 4, 4), C))
            return r
        MX = T + 8
        def Bst(ti):
            S = SB[ti % 2]
            vals = [S + i for i in range(68)]
            ins = []
            for c4 in range(4):
                ins.append("v_max3_f32 %s, %s, %s, %s" % (v(MX + c4), v(vals[3 * c4]), v(vals[3 * c4 + 1]), v(vals[3 * c4 + 2])))
            k = 12; ch = 0
            while k < 68:
                ins.append("v_max3_f32 %s, %s, %s, %s" % (v(MX + ch), v(MX + ch), v(vals[k]), v(vals[k + 1]))); k += 2; ch = (ch + 1) % 4
            groups = [ins[i:i + 2] for i in range(0, len(ins), 2)]
            tail = ["v_max3_f32 %s, %s, %s, %s" % (v(MX), v(MX), v(MX + 1), v(MX + 2)), "v_max_f32 %s, %s, %s" % (v(MX), v(MX), v(MX + 3)),
                    "v_mov_b32 %s, %s" % (v(MX + 1), v(MX)), "s_nop 0", "v_permlane16_swap_b32 %s, %s" % (v(MX), v(MX + 1)), "v_max_f32 %s, %s, %s" % (v(MX), v(MX), v(MX + 1)),
                    "v_mov_b32 %s, %s" % (v(MX + 1), v(MX)), "s_nop 0", "v_permlane32_swap_b32 %s, %s" % (v(MX), v(MX + 1)), "v_max_f32 %s, %s, %s" % (v(MX + 4), v(MX), v(MX + 1))]
            return groups, tail
        def Cst(ti):
            h, qs = tasks[ti]; S = SB[ti % 2]
            def adds(b):
                q = S + b * 4
                return ["v_pk_add_f32 %s, %s, %s op_sel_hi:[1,0] neg_lo:[0,1] neg_hi:[0,1]" % (v(q + 2 * hh, 2), v(q + 2 * hh, 2), v(MX + 4, 2)) for hh in range(2)]
            def cvts(b):
                q = S + b * 4; B = qs + b; r = []
                if B % 2 == 0:
                    r.append("v_cvt_pk_bf16_f32 %s, %s, %s" % (v(q), v(q), v(q + 1)))
                    r.append("v_cvt_pk_bf16_f32 %s, %s, %s" % (v(q + 1), v(q + 2), v(q + 3)))
                    if B == 16 and qs == 0: r += ["v_mov_b32 %s, 0" % v(q + 2), "v_mov_b32 %s, 0" % v(q + 3)]
                elif b == 0:
                    r.append("v_cvt_pk_bf16_f32 %s, %s, %s" % (v(q + 3), v(q + 2), v(q + 3)))
                    r.append("v_cvt_pk_bf16_f32 %s, %s, %s" % (v(q + 2), v(q), v(q + 1)))
                    r += ["v_mov_b32 %s, 0" % v(q), "v_mov_b32 %s, 0" % v(q + 1)]
                else:
                    r.append("v_cvt_pk_bf16_f32 %s, %s, %s" % (v(q - 2), v(q), v(q + 1)))
                    r.append("v_cvt_pk_bf16_f32 %s, %s, %s" % (v(q - 1), v(q + 2), v(q + 3)))
                return r
            head = adds(0)
            groups = []
            for b in range(17):
                q = S + b * 4
                groups.append(["v_exp_f32 %s, %s" % (v(q + i), v(q + i)) for i in range(4)] + (adds(b + 1) if b < 16 else []) + cvts(b))
            return head, groups
        def pfrag(ti, p):
            h, qs = tasks[ti]; S = SB[ti % 2]
            if qs == 0: return S + (2 * p) * 4
            return S + (0 if p == 0 else (2 * p - 1)) * 4
        def D(ti):
            h, qs = tasks[ti]; r = []
            for p in range(9):
                for dt in range(2):
                    d = OA + (ti % 2) * 8 + dt * 4
                    r.append("%s %s, %s, %s, %s" % (M, v(d, 4), a(VF[h] + (p * 2 + dt) * 4, 4), v(pfrag(ti, p), 4), v(d, 4) if p else "0"))
            return r
        def E(ti):
            h, qs = tasks[ti]; d = OA + (ti % 2) * 8; L = T + 14; r = []
            r += ["v_mov_b32 %s, %s" % (v(L), v(d + 4)), "v_mov_b32 %s, %s" % (v(L + 1), v(d + 4)),
                  "v_permlane16_swap_b32 %s, %s" % (v(L), v(L + 1)), "v_rcp_f32 %s, %s" % (v(L + 2), v(L + 1))]
            for hh in range(2):
                r.append("v_pk_mul_f32 %s, %s, %s op_sel_hi:[1,0]" % (v(d + 2 * hh, 2), v(d + 2 * hh, 2), v(L + 2, 2)))
                r.append("v_pk_mul_f32 %s, %s, %s op_sel_hi:[1,0]" % (v(d + 4 + 2 * hh, 2), v(d + 4 + 2 * hh, 2), v(L + 2, 2)))
            r += ["v_cvt_pk_bf16_f32 %s, %s, %s" % (v(d), v(d), v(d + 1)), "v_cvt_pk_bf16_f32 %s, %s, %s" % (v(d + 1), v(d + 2), v(d + 3)),
                  "v_cvt_pk_bf16_f32 %s, %s, %s" % (v(d + 4), v(d + 4), v(d + 5)), "v_cvt_pk_bf16_f32 %s, %s, %s" % (v(d + 5), v(d + 6), v(d + 7)),
                  "ds_write_b64 %s, %s offset:%d" % (v(VOW), v(d, 2), qs * 1280 + h * 40),
                  "s_mov_b64 exec, 0xffff",
                  "ds_write_b64 %s, %s offset:%d" % (v(VOW), v(d + 4, 2), qs * 1280 + h * 40 + 32),
                  "s_mov_b64 exec, -1"]
            return r
        def stage(ti, mB, mC, lds, jobs, mid=None):
            groups, tail = Bst(ti)
            mB = list(mB); mC = list(mC); lds = list(lds); jobs = list(jobs); njobs = len(jobs)
            for gi, gr in enumerate(groups):
                if mB: e(mB.pop(0))
                for x in gr: e(x)
            for x in mB: e(x)
            for x in tail: e(x)
            if mid: mid()
            head, cg = Cst(ti)
            for x in head: e(x)
            per = (len(lds) + 16) // 17
            for b, gr in enumerate(cg):
                if mC: e(mC.pop(0))
                jb = None
                if jobs and (b * njobs) // 17 != ((b + 1) * njobs) // 17:
                    jb = jobs.pop(0)
                    for x in jb[0]: e(x)
                for x in gr[:4]: e(x)
                if lds: e("s_waitcnt lgkmcnt(%d)" % (15 - per))
                for _ in range(per):
                    if lds: e(lds.pop(0))
                for x in gr[4:]: e(x)
                if jb: self.vm(jb[1], jb[2])
            for x in mC: e(x)
            for x in lds: e(x)
            for jb in jobs: self.emit_job(jb)
        W0 = ["s_waitcnt lgkmcnt(0)"]
        def chunked(r):
            out = []
            return list(r)
        wo_a = [self.job4(S_B3, 4 * k, 80 + 4 * k, "w3a") for k in range(17)]
        wo_b = [self.job4(S_B3, 68 + 4 * k, 4 * k, "w3b") for k in range(8)]
        w1_a = [self.job4(S_B4, 4 * k, 32 + 4 * k, "w4a") for k in range(12)]
        def touch(sbase, first_blk, n8k, who, nshare):
            r = []
            for k in range((n8k + 3) // 4):
                su = ["s_mul_i32 s58, %s, %d" % (s(who), n8k * 8192), "s_add_u32 s58, s58, %s" % s(sbase), "s_mul_i32 s59, %s, 7168" % s(S_W),
                      "s_add_u32 s58, s58, s59", "s_add_u32 %s, s58, %d" % (s(S_SOFF), first_blk * 1024 + k * 32768)]
                r.append((su, "buffer_load_dword v%d, v198, %s, %s offen" % (192 + (self.ntouch + k) % 6, s(S_WS, 4), s(S_SOFF)), "touch"))
            self.ntouch += (n8k + 3) // 4
            return r
        e("v_lshlrev_b32 v198, 7, %s" % v(V_L))
        e("s_and_b32 s73, %s, 1" % s(S_M3))
        e("s_lshl_b32 s74, s73, 1"); e("s_and_b32 s58, %s, 1" % s(S_J3)); e("s_add_u32 s74, s74, s58")
        e("s_mul_i32 s75, s73, %d" % (36 * 1024)); e("s_add_u32 s75, s75, %s" % s(S_B4))
        e("s_and_b32 s76, %s, 1" % s(S_W)); e("s_lshl_b32 s76, s76, 10"); e("s_add_u32 s76, s76, %d" % (148 * 1024))
        pfj = [(["s_mov_b32 m0, s76", "s_add_u32 %s, s75, 0x%x" % (s(S_SOFF), (48 + 4 * k) * 1024)],
                "buffer_load_dwordx4 %s, %s, %s offen sc1 lds" % (v(VL16), s(S_WS, 4), s(S_SOFF)), "pfj") for k in range(9)] if o.get("pf4", 1) else []
        tch = (touch(S_B4, 0, 8, 73, 2) + touch(S_B3, 68, 1, 74, 4)) if o.get("pf2", 1) else []
        e("s_waitcnt lgkmcnt(0)")
        for x in A(0): e(x)
        if o.get("fine2"): self.stamp()
        def sync2():
            lw = self.newlabel("S2")
            if o.get("fine2"): self.stamp()
            e("s_waitcnt vmcnt(0)")
            e("s_cmp_lg_u32 %s, 0" % s(S_W)); e("s_cbranch_scc1 %s" % lw)
            e("s_mov_b64 s[50:51], -1")
            for k in range(4):
                e("v_cmp_eq_u32 s[46:47], %s, %s" % (s(S_NONCE), v(T + 22 + 2 * k))); e("v_cmp_eq_u32 s[48:49], %s, %s" % (s(S_NONCE + 1), v(T + 23 + 2 * k)))
                e("s_and_b64 s[50:51], s[50:51], s[46:47]"); e("s_and_b64 s[50:51], s[50:51], s[48:49]")
            e("s_cmp_eq_u64 s[50:51], -1"); e("s_cbranch_scc1 %s_ok" % lw)
            self.flag_poll(T + 20, T + 22, nloads=4, stride=64)
            e("buffer_load_dwordx4 %s, %s, %s, 0 offen sc1" % (v(T + 32, 4), v(T + 18), s(S_WS, 4)))
            e("s_waitcnt vmcnt(0)")
            self.label(lw + "_ok")
            e("v_cmp_eq_u32 s[46:47], %s, %s" % (s(S_XCC), v(T + 34)))
            e("v_cmp_eq_u32 s[48:49], %s, %s" % (s(S_NONCE), v(T + 32))); e("s_and_b64 s[46:47], s[46:47], s[48:49]")
            e("s_cmp_eq_u64 s[46:47], -1"); e("s_cselect_b32 s46, 1, 0")
            e("s_cmp_eq_u32 %s, 0" % s(S_TMO)); e("s_cselect_b32 s46, s46, 0")
            e("v_mov_b32 %s, s46" % v(T + 30)); e("v_mov_b32 %s, %d" % (v(T + 31), BB + 6640))
            e("ds_write_b32 %s, %s" % (v(T + 31), v(T + 30)))
            e("s_waitcnt lgkmcnt(0)")
            self.label(lw)
            e("s_barrier")
            if o.get("fastp", 1):
                e("v_mov_b32 %s, %d" % (v(T + 31), BB + 6640))
                e("ds_read_b32 %s, %s" % (v(T + 30), v(T + 31)))
                e("s_waitcnt lgkmcnt(0)")
                e("v_readfirstlane_b32 %s, %s" % (s(S_FAST), v(T + 30)))
            if o.get("fine2"): self.stamp()
        stage(0, A(1), [], chunked(v_reads(0)) + chunked(k_reads(1)), wo_a[:9], mid=sync2)
        e("s_waitcnt lgkmcnt(0)")
        if o.get("fine2"): self.stamp()
        stage(1, D(0)[:17], D(0)[17:] + A(2)[:16], chunked(v_reads(1)), wo_a[9:] + pfj[:3])
        for x in A(2)[16:]: e(x)
        e("s_waitcnt lgkmcnt(0)")
        e("s_barrier")
        if o.get("fine2"): self.stamp()
        for x in E(0): e(x)
        stage(2, D(1)[:17], D(1)[17:] + A(3)[:16], [], wo_b + w1_a[:2] + pfj[3:6])
        for x in A(3)[16:]: e(x)
        for x in E(1): e(x)
        if o.get("fine2"): self.stamp()
        stage(3, D(2)[:17], D(2)[17:], [], w1_a[2:9] + pfj[6:])
        self.p3_jobs = w1_a[9:]
        for x in E(2): e(x)
        for x in D(3): e(x)
        for x in E(3): e(x)
        self.stamp()
        self.c("o: staging -> fragment-major global")
        e("v_mul_u32_u24 %s, 80, %s" % (v(t0), v(V_C))); e("v_add_u32 %s, %s, %s" % (v(t0), s(S_OST), v(t0)))
        e("v_lshl_add_u32 %s, %s, 4, %s" % (v(t1), v(V_G), v(t0)))
        e("v_mul_u32_u24 %s, 1280, %s" % (v(t2), v(V_G))); e("v_add_u32 %s, %s, %s" % (v(t2), v(t2), v(t0)))
        e("v_min_u32 %s, %d, %s" % (v(t2), OB + 4 * 2560 - 80, v(t2)))
        e("s_waitcnt lgkmcnt(0)")
        R = 56
        e("ds_read_b128 %s, %s" % (v(R, 4), v(t1)))
        e("ds_read_b128 %s, %s offset:1280" % (v(R + 4, 4), v(t1)))
        e("ds_read_b128 %s, %s offset:64" % (v(R + 8, 4), v(t2)))
        e("s_mul_i32 s55, %s, 5" % s(S_J3))
        e("s_lshl_b32 s58, %s, 3" % s(S_M3)); e("s_lshl_b32 s59, %s, 1" % s(S_W)); e("s_add_u32 s58, s58, s59"); e("s_mul_i32 s58, s58, 20480")
        e("s_add_u32 s58, s58, 0x%x" % WS_O)
        e("v_add_u32 %s, s55, %s" % (v(t0), v(V_G)))
        e("v_lshrrev_b32 %s, 2, %s" % (v(t1), v(t0))); e("v_lshlrev_b32 %s, 10, %s" % (v(t1), v(t1)))
        e("v_and_b32 %s, 3, %s" % (v(t0), v(t0))); e("v_lshl_add_u32 %s, %s, 8, %s" % (v(t1), v(t0), v(t1)))
        e("v_lshl_add_u32 %s, %s, 4, %s" % (v(t1), v(V_C), v(t1)))
        e("s_add_u32 s59, s55, 4"); e("s_lshr_b32 s60, s59, 2"); e("s_lshl_b32 s60, s60, 10"); e("s_and_b32 s59, s59, 3"); e("s_lshl_b32 s59, s59, 8"); e("s_add_u32 s60, s60, s59")
        e("v_mul_u32_u24 %s, 20480, %s" % (v(t3), v(V_G))); e("v_lshl_add_u32 %s, %s, 4, %s" % (v(t3), v(V_C), v(t3))); e("v_add_u32 %s, s60, %s" % (v(t3), v(t3)))
        e("s_waitcnt lgkmcnt(0)")
        self.vm("buffer_store_dwordx4 %s, %s, %s, s58 offen sc1" % (v(R, 4), v(t1), s(S_WS, 4)), "ost")
        e("s_add_u32 s59, s58, 20480")
        self.vm("buffer_store_dwordx4 %s, %s, %s, s59 offen sc1" % (v(R + 4, 4), v(t1), s(S_WS, 4)), "ost")
        e("s_mov_b64 exec, 0xffffffff")
        self.vm("buffer_store_dwordx4 %s, %s, %s, s58 offen sc1" % (v(R + 8, 4), v(t3), s(S_WS, 4)), "ost")
        e("s_mov_b64 exec, -1")

    def handoff(self, phase, jobs, dma_a=None, dma_b=None, wait_dma=True):
        e = self.e
        l0 = self.newlabel("H0"); l1 = self.newlabel("H1"); l2 = self.newlabel("H2"); l3 = self.newlabel("H3")
        for j in jobs: self.emit_job(j)
        if dma_a:
            e("s_cmp_eq_u32 %s, 0" % s(S_W)); e("s_cbranch_scc1 %s" % l0)
            n0 = len(self.vmq)
            dma_a()
            e("s_waitcnt vmcnt(%d)" % (len(self.vmq) - n0 + len(jobs)))
            e("s_branch %s" % l1)
            self.label(l0)
            e("s_waitcnt vmcnt(%d)" % len(jobs))
            self.label(l1)
        else:
            e("s_waitcnt vmcnt(%d)" % len(jobs))
        e("s_barrier")
        self.stamp()
        e("s_cmp_eq_u32 %s, 0" % s(S_W)); e("s_cbranch_scc1 %s" % l2)
        if dma_b: dma_b()
        e("s_branch %s" % l3)
        self.label(l2)
        self.group_flag_idx()
        self.flag_set(phase, 52, 212, checkwave=False)
        self.poll_group(phase, 212)
        self.label(l3)
        if wait_dma: e("s_waitcnt vmcnt(0)")
        e("s_barrier")
        self.stamp()

    def gemm_small(self, NS, VL16, ACC, pos, bfrag, btag, RING, T, hooks, slots):
        e = self.e
        VA = T + 16
        def rd(st):
            r = []
            for t in range(5):
                off = pos(st * 5 + t) * 1024
                r.append("ds_read_b128 %s, %s offset:%d" % (a(RING + ((st % 3) * 5 + t) * 4, 4), v(VA + off // 65536), off % 65536))
            return r
        for x in rd(0) + rd(1): e(x)
        for st in range(NS):
            if st in hooks: hooks[st]()
            self.vm_wait(btag(st), " lgkmcnt(%d)" % (5 if st + 1 < NS else 0))
            nx = rd(st + 2) if st + 2 < NS else []
            jobs = list(slots(st))
            for t in range(5):
                jb = None
                if jobs and t in (0, 2, 4):
                    jb = jobs.pop(0)
                    for x in jb[0]: e(x)
                e("%s %s, %s, %s, %s" % (M, v(ACC + t * 4, 4), a(RING + ((st % 3) * 5 + t) * 4, 4), a(bfrag(st), 4), v(ACC + t * 4, 4)))
                if t < len(nx): e(nx[t])
                if jb: self.vm(jb[1], jb[2])
            for jb in jobs: self.emit_job(jb)

    def frag_job(self, dst, sreg, idx, tag, VL16=4):
        su = []
        if idx % 4 == 0 and idx > 0: su = ["s_add_u32 %s, %s, 4096" % (s(sreg), s(sreg))]
        return (su, "buffer_load_dwordx4 %s, %s, %s, %s offen offset:%d sc1" % (a(dst, 4), v(VL16), s(S_WS, 4), s(sreg), (idx % 4) * 1024), tag)

    def p3(self):
        e = self.e; o = self.o
        VL16 = 4; T = 200; t0, t1, t2, t3 = T, T + 1, T + 2, T + 3
        XR = 8
        ACC = 32
        HR = 240
        self.c("P2 -> P3 hand-off")
        VA = T + 16
        e("v_mov_b32 %s, %s" % (v(VA), v(VL16))); e("v_add_u32 %s, 0x10000, %s" % (v(VA + 1), v(VL16))); e("v_add_u32 %s, 0x20000, %s" % (v(VA + 2), v(VL16)))
        for i in range(20): e("v_mov_b32 %s, 0" % v(ACC + i))
        e("s_lshl_b32 s54, %s, 4" % s(S_TI)); e("v_add_u32 %s, s54, %s" % (v(t0), v(V_C))); e("v_mul_u32_u24 %s, 1280, %s" % (v(t0), v(t0)))
        e("s_mul_i32 s54, %s, 160" % s(S_NQ))
        e("v_lshl_add_u32 %s, %s, 4, %s" % (v(t1), v(V_G), v(t0))); e("v_add_u32 %s, s54, %s" % (v(20), v(t1)))
        e("v_lshl_add_u32 %s, %s, 3, %s" % (v(t1), v(V_G), v(t0))); e("v_add_u32 %s, s54, %s" % (v(21), v(t1)))
        e("s_waitcnt lgkmcnt(0)")
        e("s_barrier")
        self.handoff(1, self.p3_jobs)
        self.c("P3 main")
        e("s_mul_i32 s54, %s, 20480" % s(S_TI)); e("s_add_u32 s54, s54, 0x%x" % WS_O)
        fj = [self.frag_job(st * 4, 54, st, ("of", st)) for st in range(20)]
        LA = 10
        for st in range(LA): self.emit_job(fj[st])
        xr = [([], "buffer_load_dwordx4 %s, v20, %s, 0 offen" % (v(XR, 4), s(S_X, 4)), "xr"),
              ([], "buffer_load_dwordx4 %s, v20, %s, 0 offen offset:64" % (v(XR + 4, 4), s(S_X, 4)), "xr"),
              ([], "buffer_load_dwordx2 %s, v21, %s, 0 offen offset:128" % (v(XR + 8, 2), s(S_X, 4)), "xr")]
        def slots(st):
            r = []
            if st + LA < 20: r.append(fj[st + LA])
            if 12 <= st < 15: r.append(xr[st - 12])
            return r
        self.gemm_small(20, VL16, ACC, lambda i: 80 + i if i < 68 else i - 68, lambda st: st * 4, lambda st: ("of", st), 80, T, {}, slots)
        self.stamp()
        self.c("P3 epilogue")
        SUM, SQ = T + 4, T + 6
        e("v_mov_b32 %s, 0" % v(SUM)); e("v_mov_b32 %s, 0" % v(SUM + 1)); e("v_mov_b32 %s, 0" % v(SQ)); e("v_mov_b32 %s, 0" % v(SQ + 1))
        e("s_mul_i32 s54, %s, 20480" % s(S_TI)); e("s_add_u32 s54, s54, 0x%x" % WS_H)
        e("s_mul_i32 s55, %s, 10" % s(S_NQ))
        def uaddr(dst, ureg):
            e("v_lshrrev_b32 %s, 2, %s" % (v(t2), v(ureg))); e("v_lshlrev_b32 %s, 10, %s" % (v(t2), v(t2)))
            e("v_and_b32 %s, 3, %s" % (v(t3), v(ureg))); e("v_lshl_add_u32 %s, %s, 8, %s" % (v(t2), v(t3), v(t2)))
            e("v_lshl_add_u32 %s, %s, 4, %s" % (v(dst), v(V_C), v(t2)))
        for p in range(2):
            e("v_add_u32 %s, s55, %s" % (v(t0), v(V_G)))
            if p: e("v_add_u32 %s, 4, %s" % (v(t0), v(t0)))
            uaddr(22 + p, t0)
        e("v_lshrrev_b32 %s, 1, %s" % (v(t0), v(V_G))); e("v_add_u32 %s, s55, %s" % (v(t0), v(t0))); e("v_add_u32 %s, 8, %s" % (v(t0), v(t0)))
        uaddr(24, t0)
        e("v_and_b32 %s, 1, %s" % (v(t0), v(V_G))); e("v_lshl_add_u32 %s, %s, 3, %s" % (v(24), v(t0), v(24)))
        self.vm_wait("xr")
        for t in range(5):
            A_ = ACC + t * 4
            xs = (XR + (t >> 1) * 4 + (t & 1) * 2) if t < 4 else XR + 8
            for hh in range(2):
                e("v_lshlrev_b32 %s, 16, %s" % (v(t0), v(xs + hh))); e("v_and_b32 %s, 0xffff0000, %s" % (v(t1), v(xs + hh)))
                e("v_pk_add_f32 %s, %s, %s" % (v(A_ + 2 * hh, 2), v(A_ + 2 * hh, 2), v(t0, 2)))
                hd = (HR + (t >> 1) * 4 + (t & 1) * 2 + hh) if t < 4 else HR + 8 + hh
                e("v_cvt_pk_bf16_f32 %s, %s, %s" % (v(hd), v(A_ + 2 * hh), v(A_ + 2 * hh + 1)))
            if t == 1: self.vm("buffer_store_dwordx4 %s, v22, %s, s54 offen sc1" % (v(HR, 4), s(S_WS, 4)), "hst")
            if t == 3: self.vm("buffer_store_dwordx4 %s, v23, %s, s54 offen sc1" % (v(HR + 4, 4), s(S_WS, 4)), "hst")
            if t == 4: self.vm("buffer_store_dwordx2 %s, v24, %s, s54 offen sc1" % (v(HR + 8, 2), s(S_WS, 4)), "hst")
        for t in range(5):
            A_ = ACC + t * 4
            for hh in range(2):
                e("v_pk_add_f32 %s, %s, %s" % (v(SUM, 2), v(SUM, 2), v(A_ + 2 * hh, 2)))
                e("v_pk_fma_f32 %s, %s, %s, %s" % (v(SQ, 2), v(A_ + 2 * hh, 2), v(A_ + 2 * hh, 2), v(SQ, 2)))
        e("v_add_f32 %s, %s, %s" % (v(SUM), v(SUM), v(SUM + 1))); e("v_add_f32 %s, %s, %s" % (v(SUM + 1), v(SQ), v(SQ + 1)))
        self.reduce4(SUM, t0); self.reduce4(SUM + 1, t0)
        e("s_lshl_b32 s54, %s, 4" % s(S_TI)); e("v_add_u32 %s, s54, %s" % (v(t0), v(V_C))); e("v_lshlrev_b32 %s, 6, %s" % (v(t0), v(t0)))
        e("s_lshl_b32 s54, %s, 3" % s(S_NQ)); e("s_add_u32 s54, s54, 0x%x" % WS_HS)
        e("s_mov_b64 exec, 0xffff")
        self.vm("buffer_store_dwordx2 %s, %s, %s, s54 offen sc1" % (v(SUM, 2), v(t0), s(S_WS, 4)), "hst")
        e("s_mov_b64 exec, -1")

    def p4(self):
        e = self.e; o = self.o
        VL16 = 4; T = 200; t0, t1, t2, t3 = T, T + 1, T + 2, T + 3
        ACC = 32
        CSA = 80
        CSV = 88
        VONE = 112
        VST = 116
        CS_OFF = 158 * 1024
        RING = 160
        pos = lambda i: 32 + i if i < 48 else 80 + (i - 48)
        self.c("P3 -> P4 hand-off")
        for i in range(4): e("v_mov_b32 %s, 0x3f803f80" % v(VONE + i))
        for i in range(8): e("v_mov_b32 %s, 0" % v(CSA + i))
        for i in range(48): e("v_mov_b32 %s, 0" % v(ACC + i))
        e("s_barrier")
        self.handoff(2, [], lambda: self.dma3(S_B4, 48, 80, 8, "w4b"), lambda: self.dma3(S_B4, 72, 104, 16, "w4b"), wait_dma=False)
        self.c("P4 main")
        e("s_lshl_b32 s54, %s, 3" % s(S_M3)); e("s_lshl_b32 s55, %s, 1" % s(S_W)); e("s_add_u32 s54, s54, s55")
        e("s_mov_b32 s88, s54")
        e("s_mul_i32 s55, s54, 20480"); e("s_add_u32 s55, s55, 0x%x" % WS_H); e("s_add_u32 s56, s55, 20480")
        fj = [[self.frag_job((st * 2 + tt) * 4, 55 + tt, st, ("hf", st)) for tt in range(2)] for st in range(20)]
        LA = 5
        for st in range(LA):
            for j in fj[st]: self.emit_job(j)
        e("s_lshl_b32 s57, s54, 4"); e("v_add_u32 %s, s57, %s" % (v(t0), v(V_C))); e("v_lshlrev_b32 %s, 6, %s" % (v(t0), v(t0)))
        e("v_lshl_add_u32 %s, %s, 4, %s" % (v(t0), v(V_G), v(t0))); e("v_add_u32 %s, 0x%x, %s" % (v(25), WS_HS, v(t0)))
        e("s_add_u32 s58, %s, 4" % s(S_W)); e("s_cmp_ge_u32 s58, 6"); e("s_cselect_b32 s57, 6, 0"); e("s_sub_u32 s58, s58, s57")
        e("v_add_u32 %s, %s, %s" % (v(t0), s(S_W1K), v(VL16)))
        e("s_lshl_b32 s57, s58, 10"); e("v_add_u32 %s, s57, %s" % (v(t1), v(VL16)))
        e("v_add_u32 %s, 0x10000, %s" % (v(t2), v(t0))); e("v_add_u32 %s, 0x10000, %s" % (v(t3), v(t1)))
        e("v_add_u32 %s, 0x20000, %s" % (v(t0 + 4), v(t0))); e("v_add_u32 %s, 0x20000, %s" % (v(t0 + 5), v(t1)))
        def csrd(st):
            off = pos(st * 6) * 1024
            return ["ds_read_b128 %s, %s offset:%d" % (a(RING + ((st % 4) * 2 + q) * 4, 4), v(t0 + 2 * (off // 65536) + q), off % 65536) for q in range(2)]
        CSR = 208
        def csrd2(st):
            off = pos(st * 6) * 1024
            return ["ds_read_b128 %s, %s offset:%d" % (a(CSR + ((st % 4) * 2 + q) * 4, 4), v(142 + 2 * (off // 65536) + q), off % 65536) for q in range(2)]
        def cs_block(s0, s1, jobs=()):
            jobs = list(jobs)
            for st in range(s0, min(s0 + 3, s1)):
                for x in csrd2(st): e(x)
            for st in range(s0, s1):
                nx = csrd2(st + 3) if st + 3 < s1 else []
                for x in nx: e(x)
                e("s_waitcnt lgkmcnt(%d)" % (2 * min(3, s1 - 1 - st)))
                for q in range(2):
                    e("%s %s, %s, %s, %s" % (M, v(CSA + q * 4, 4), a(CSR + ((st % 4) * 2 + q) * 4, 4), v(VONE, 4), v(CSA + q * 4, 4)))
                if jobs: self.emit_job(jobs.pop(0))
        for k in range(6): e("v_mov_b32 %s, %s" % (v(142 + k), v(t0 + k)))
        cs_block(0, 8, [self.job4(S_B5, 4 * k, 4 * k, "w5a") for k in range(8)])
        e("v_lshlrev_b32 %s, 4, %s" % (v(t2), v(V_G)))
        e("s_lshl_b32 s57, %s, 6" % s(S_W)); e("s_add_u32 s57, s57, %d" % CS_OFF); e("v_add_u32 %s, s57, %s" % (v(t0), v(t2)))
        e("s_lshl_b32 s57, s58, 6"); e("s_add_u32 s57, s57, %d" % CS_OFF); e("v_add_u32 %s, s57, %s" % (v(t1), v(t2)))
        e("v_add_u32 %s, %d, %s" % (v(26), CS_OFF, v(t2)))
        VA = T + 16
        e("v_mov_b32 %s, %s" % (v(VA), v(VL16))); e("v_add_u32 %s, 0x10000, %s" % (v(VA + 1), v(VL16))); e("v_add_u32 %s, 0x20000, %s" % (v(VA + 2), v(VL16)))
        def rd(st):
            r = []
            for t in range(6):
                off = pos(st * 6 + t) * 1024
                r.append("ds_read_b128 %s, %s offset:%d" % (a(RING + ((st % 2) * 6 + t) * 4, 4), v(VA + off // 65536), off % 65536))
            return r
        e("v_mov_b32 %s, %s" % (v(140), v(t0))); e("v_mov_b32 %s, %s" % (v(141), v(t1)))
        for x in rd(0): e(x)
        w5b = [self.job4(S_B5, 32 + 4 * k, 32 + 4 * k, "w5b") for k in range(12)]
        hs = [([], "buffer_load_dwordx4 %s, v25, %s, 0 offen offset:%d sc1" % (v(VST + tt * 4, 4), s(S_WS, 4), tt * 1024), "hs") for tt in range(2)]
        for st in range(20):
            if st == 7:
                self.vm_wait("w4b")
                e("s_barrier")
            if st == 8:
                e("s_waitcnt lgkmcnt(0)")
                cs_block(8, 20)
                e("v_cmp_eq_u32 vcc, 0, %s" % v(V_C))
                e("s_and_saveexec_b64 s[58:59], vcc")
                e("ds_write_b128 v140, %s" % v(CSA, 4))
                e("ds_write_b128 v141, %s" % v(CSA + 4, 4))
                e("s_mov_b64 exec, s[58:59]")
            if st == 10:
                e("s_barrier")
                for t in range(6): e("ds_read_b128 %s, %s offset:%d" % (v(CSV + t * 4, 4), v(26), t * 64))
            self.vm_wait(("hf", st), " lgkmcnt(0)")
            nx = rd(st + 1) if st + 1 < 20 else []
            jobs = list(fj[st + LA]) if st + LA < 20 else []
            if st == 15: jobs += hs
            if st in (2, 4, 6) and o.get("pf3", 0):
                k = (st - 2) // 2
                if k < 2:
                    jobs.append((["s_mul_i32 s58, s74, 40960", "s_add_u32 s58, s58, %s" % s(S_B5), "s_mul_i32 s59, %s, 7168" % s(S_W), "s_add_u32 s58, s58, s59",
                                  "s_add_u32 %s, s58, %d" % (s(S_SOFF), 80 * 1024 + k * 32768)],
                                 "buffer_load_dword v%d, v198, %s, %s offen" % (192 + k, s(S_WS, 4), s(S_SOFF)), "touch"))
            if st >= 10:
                jobs += w5b[:2] if st >= 15 or st in (11, 13) else w5b[:1]
                w5b = w5b[2:] if (st >= 15 or st in (11, 13)) else w5b[1:]
            k = 0; n = 0
            for t in range(6):
                for tt in range(2):
                    d = ACC + (t * 2 + tt) * 4
                    jb = None
                    if jobs and n % 3 == 0:
                        jb = jobs.pop(0)
                        for x in jb[0]: e(x)
                    e("%s %s, %s, %s, %s" % (M, v(d, 4), a(RING + ((st % 2) * 6 + t) * 4, 4), a((st * 2 + tt) * 4, 4), v(d, 4)))
                    if tt == 0 and k < len(nx): e(nx[k]); k += 1
                    if jb: self.vm(jb[1], jb[2])
                    n += 1
            for jb in jobs: self.emit_job(jb)
        assert not w5b
        self.stamp()
        e("s_barrier")
        self.c("P4 epilogue (remaining resident part of W2 streams in underneath)")
        w5c = [self.job4(S_B5, 80 + 4 * k, 80 + 4 * k, "w5c") for k in range(20)]
        self.p5_jobs = w5c[12:]; w5c = w5c[:12]
        self.vm_wait("hs")
        NM = [T + 4, T + 6]
        for tt in range(2):
            q = VST + tt * 4
            e("v_add_f32 %s, %s, %s" % (v(q), v(q), v(q + 2))); e("v_add_f32 %s, %s, %s" % (v(q + 1), v(q + 1), v(q + 3)))
            self.reduce4(q, t0); self.reduce4(q + 1, t0)
            e("v_mul_f32 %s, 0x%x, %s" % (v(NM[tt]), f2u(-1.0 / 640), v(q)))
            e("v_mul_f32 %s, 0x%x, %s" % (v(q + 1), f2u(1.0 / 640), v(q + 1)))
            e("v_fma_f32 %s, -%s, %s, %s" % (v(q + 1), v(NM[tt]), v(NM[tt]), v(q + 1)))
            e("v_max_f32 %s, 0, %s" % (v(q + 1), v(q + 1))); e("v_add_f32 %s, 0x%x, %s" % (v(q + 1), f2u(1e-5), v(q + 1)))
            e("v_rsq_f32 %s, %s" % (v(NM[tt] + 1), v(q + 1)))
        e("s_mul_i32 s54, s88, 49152"); e("s_mul_i32 s55, %s, 3072" % s(S_J3)); e("s_add_u32 s54, s54, s55"); e("s_add_u32 s54, s54, 0x%x" % WS_H1)
        e("s_add_u32 s55, s54, 49152")
        e("s_mov_b32 s56, 0x%x" % f2u(-math.log2(math.e))); e("s_mov_b32 s57, s56")
        n = 0
        for tt in range(2):
            for p in range(3):
                O4 = 124 + (n % 4) * 4
                zs = []
                for hf in range(2):
                    t = 2 * p + hf; A_ = ACC + (t * 2 + tt) * 4
                    for hh in range(2): zs.append((A_ + 2 * hh, CSV + t * 4 + 2 * hh, O4 + hf * 2 + hh))
                E_ = [T + 8, T + 10, T + 12, T + 14]
                for k, (z, c_, od) in enumerate(zs): e("v_pk_fma_f32 %s, %s, %s, %s op_sel_hi:[1,0,1]" % (v(z, 2), v(c_, 2), v(NM[tt], 2), v(z, 2)))
                for k, (z, c_, od) in enumerate(zs): e("v_pk_mul_f32 %s, %s, %s op_sel:[0,1] op_sel_hi:[1,1]" % (v(z, 2), v(z, 2), v(NM[tt], 2)))
                for k, (z, c_, od) in enumerate(zs): e("v_pk_mul_f32 %s, %s, s[56:57]" % (v(E_[k], 2), v(z, 2)))
                for k in range(4): e("v_exp_f32 %s, %s" % (v(E_[k]), v(E_[k]))); e("v_exp_f32 %s, %s" % (v(E_[k] + 1), v(E_[k] + 1)))
                for k in range(4): e("v_pk_add_f32 %s, %s, 1.0 op_sel_hi:[1,0]" % (v(E_[k], 2), v(E_[k], 2)))
                for k in range(4): e("v_rcp_f32 %s, %s" % (v(E_[k]), v(E_[k]))); e("v_rcp_f32 %s, %s" % (v(E_[k] + 1), v(E_[k] + 1)))
                for k, (z, c_, od) in enumerate(zs): e("v_pk_mul_f32 %s, %s, %s" % (v(z, 2), v(z, 2), v(E_[k], 2)))
                for k, (z, c_, od) in enumerate(zs): e("v_cvt_pk_bf16_f32 %s, %s, %s" % (v(od), v(z), v(z + 1)))
                for _ in range(2):
                    if w5c: self.emit_job(w5c.pop(0))
                self.vm("buffer_store_dwordx4 %s, %s, %s, %s offen offset:%d sc1" % (v(O4, 4), v(VL16), s(S_WS, 4), s(54 + tt), p * 1024), "h1st")
                n += 1
        assert not w5c

    def p5(self):
        e = self.e; o = self.o
        VL16 = 4; T = 200; t0, t1, t2, t3 = T, T + 1, T + 2, T + 3
        ACC = 32; HR = 240
        self.c("P4 -> P5 hand-off")
        for i in range(20): e("v_mov_b32 %s, 0" % v(ACC + i))
        self.handoff(3, self.p5_jobs)
        self.c("P5 main")
        e("s_mul_i32 s54, %s, 49152" % s(S_TI)); e("s_add_u32 s54, s54, 0x%x" % WS_H1)
        fj = [self.frag_job(st * 4, 54, st, ("f1", st)) for st in range(48)]
        LA = 12
        for st in range(LA): self.emit_job(fj[st])
        bA = [self.job4(S_B5, 160 + 4 * k, 4 * k, "b5a") for k in range(10)]
        bB = [self.job4(S_B5, 200 + 4 * k, 40 + 4 * k, "b5b") for k in range(10)]
        def slots(st):
            r = []
            if st + LA < 48: r.append(fj[st + LA])
            if 9 <= st < 19: r.append(bA[st - 9])
            if 19 <= st < 29: r.append(bB[st - 19])
            return r
        def bar(): e("s_barrier")
        def landed(tag):
            def fn():
                self.vm_wait(tag); e("s_barrier")
            return fn
        hooks = {9: bar, 19: bar, 30: landed("b5a"), 38: landed("b5b")}
        self.gemm_small(48, VL16, ACC, lambda i: i % 160, lambda st: st * 4, lambda st: ("f1", st), 192, T, hooks, slots)
        self.stamp()
        self.c("P5 epilogue")
        for t in range(5):
            A_ = ACC + t * 4
            for hh in range(2):
                hd = (HR + (t >> 1) * 4 + (t & 1) * 2 + hh) if t < 4 else HR + 8 + hh
                e("v_lshlrev_b32 %s, 16, %s" % (v(t0), v(hd))); e("v_and_b32 %s, 0xffff0000, %s" % (v(t1), v(hd)))
                e("v_pk_add_f32 %s, %s, %s" % (v(A_ + 2 * hh, 2), v(A_ + 2 * hh, 2), v(t0, 2)))
                od = (64 + (t >> 1) * 4 + (t & 1) * 2 + hh) if t < 4 else 72 + hh
                e("v_cvt_pk_bf16_f32 %s, %s, %s" % (v(od), v(A_ + 2 * hh), v(A_ + 2 * hh + 1)))
            if t == 1: e("buffer_store_dwordx4 v[64:67], v20, %s, 0 offen" % s(S_OUT, 4))
            if t == 3: e("buffer_store_dwordx4 v[68:71], v20, %s, 0 offen offset:64" % s(S_OUT, 4))
        e("buffer_store_dwordx2 v[72:73], v21, %s, 0 offen offset:128" % s(S_OUT, 4))
        self.stamp()

    def finish(self):
        self.label("L_end")
        self.e("s_endpgm")

def build(opts):
    g = Gen(opts)
    g.prologue()
    stop = opts.get("stop", 5)
    g.p1()
    if stop >= 2: g.p2()
    if stop >= 3: g.p3()
    if stop >= 4: g.p4()
    if stop >= 5: g.p5()
    g.e("s_waitcnt vmcnt(0)")
    g.finish()
    body = g.finalize(2 if opts.get('nocheck') else True)
    hdr = open("cdna_kernels/%s.s.ref" % NAME).read().split("\n")
    head = [l for l in hdr if l.startswith(";") and ("Kernarg" in l or "offset" in l)]
    txt = "\n".join(head) + "\n; @launch grid=(256,1,1) block=(256,1,1) lds=163840\n"
    txt += '.amdgcn_target "amdgcn-amd-amdhsa--gfx950"\n.text\n.globl %s_kernel\n.p2align 8\n.type %s_kernel,@function\n%s_kernel:\n' % (NAME, NAME, NAME)
    txt += body + "\n"
    txt = txt.replace("CODE_Q", "16384")
    txt += """.section .rodata,"a"
.p2align 6
.amdhsa_kernel %s_kernel
  .amdhsa_next_free_vgpr 512
  .amdhsa_next_free_sgpr 100
  .amdhsa_accum_offset 256
  .amdhsa_group_segment_fixed_size 0
  .amdhsa_kernarg_size 72
  .amdhsa_user_sgpr_count 2
  .amdhsa_user_sgpr_kernarg_segment_ptr 1
  .amdhsa_system_sgpr_workgroup_id_x 1
  .amdhsa_float_denorm_mode_32 3
.end_amdhsa_kernel
""" % NAME
    return txt, g

if __name__ == "__main__":
    opts = {}
    out = sys.argv[1]
    for x in sys.argv[2:]:
        if "=" in x:
            k, val = x.split("="); opts[k] = int(val)
        else: opts[x] = 1
    txt, g = build(opts)
    open(out, "w").write(txt)
    print("lines", len(txt.split("\n")), "bytes", len(txt), "nops", g.nops)
```

```python
import sys, math, struct
from asmlib import Asm, v, a, s

NAME = 'sequential_preLN__sliding_block__dense_activation_silu__prompt'
M = "v_mfma_f32_16x16x32_bf16"

WS_FLAGS = 0x0
WS_STAT = 0x20000
WS_HS = 0x40000
WS_QKV = 0x100000
WS_O = 0x900000
WS_H = 0xC00000
WS_H1 = 0xF00000
WS_PW3 = 0x1500000
WS_PW4 = 0x1600000
WS_PW5 = 0x1800000
WS_ST = 0x1A00000
WS_SIZE = 0x1B00000
BIGOFF = 0x7F000000

def f2u(x):
    return struct.unpack("<I", struct.pack("<f", x))[0]

S_X, S_WQ, S_WO, S_W1, S_W2, S_OUT, S_WS, S_DBG = 4, 8, 12, 16, 20, 24, 28, 32
S_W = 36
S_M1, S_N1, S_M3, S_J3 = 37, 38, 39, 40
S_NONCE = 42
S_SOFF = 62
S_TMO = 63
S_STC = 80
S_STT = 82
S_ODD = 84
S_TI, S_NQ = 86, 87
S_B3, S_B4, S_B5 = 90, 91, 92
S_W1K, S_W3 = 93, 94
S_OST = 95
S_XCC, S_FAST = 98, 99

V_L, V_C, V_G = 1, 2, 3

class Gen(Asm):
    def __init__(self, opts):
        super().__init__()
        self.o = opts
        self.vmq = []
        self.nlab = 0
        self.nstamp = 0
        self.ntouch = 0
    def vm(self, text, tag=None):
        if tag in {0: (), 1: ("ost",), 2: ("ost", "hst"), 3: ("ost", "hst", "h1st")}[self.o.get("fastd", 0)] and self.o.get("fastp", 1):
            self.dual(text)
            self.vmq.append(tag); return
        self.e(text); self.vmq.append(tag)
    def dual(self, text):
        l1 = self.newlabel("DF"); l2 = self.newlabel("DJ")
        self.e("s_cmp_lg_u32 %s, 0" % s(S_FAST)); self.e("s_cbranch_scc1 %s" % l1)
        self.e(text); self.e("s_branch %s" % l2)
        self.label(l1)
        self.e(text.replace(" sc1", ""))
        self.label(l2)
    def vm_n(self, tag):
        idx = max(i for i, t in enumerate(self.vmq) if t == tag)
        n = len(self.vmq) - 1 - idx
        assert n <= 63, (tag, n)
        return n
    def vm_wait(self, tag, extra=""):
        n = self.vm_n(tag)
        if self.o.get("nojobs"):
            idx = max(i for i, t in enumerate(self.vmq) if t == tag)
            n = sum(1 for t in self.vmq[idx + 1:] if not (isinstance(t, str) and t.startswith(("w3", "w4", "w5", "b5", "pfj"))))
        self.e("s_waitcnt vmcnt(%d)%s" % (n, extra))
    def newlabel(self, p="L"):
        self.nlab += 1
        return "%s_%d" % (p, self.nlab)
    def stamp(self, idx=None, pre=None):
        if not self.o.get("stamps"): return
        i = self.nstamp if idx is None else idx
        if idx is None: self.nstamp += 1
        assert i < 32
        e = self.e
        if pre is not None:
            e("s_mov_b64 %s, %s" % (s(S_STT, 2), s(pre, 2)))
        else:
            e("%s %s" % ("s_memtime" if self.o.get("stamps") == 2 else "s_memrealtime", s(S_STT, 2)))
        e("s_waitcnt lgkmcnt(0)")
        e("v_mov_b32 v254, %s" % s(S_STT)); e("v_mov_b32 v255, %s" % s(S_STT + 1))
        e("s_lshl_b32 %s, s2, 2" % s(S_STC)); e("s_add_u32 %s, %s, %s" % (s(S_STC), s(S_STC), s(S_W)))
        e("s_lshl_b32 %s, %s, 8" % (s(S_STC), s(S_STC)))
        e("s_add_u32 %s, %s, 0x%x" % (s(S_STC), s(S_STC), WS_ST + i * 8))
        e("v_mov_b32 v253, %s" % s(S_STC))
        e("s_mov_b64 exec, 1")
        self.vm("buffer_store_dwordx2 v[254:255], v253, %s, 0 offen" % s(S_WS, 4), "stamp")
        e("s_mov_b64 exec, -1")

    def reduce4(self, x, tmp, op="v_add_f32"):
        e = self.e
        e("v_mov_b32 %s, %s" % (v(tmp), v(x)))
        e("v_permlane16_swap_b32 %s, %s" % (v(x), v(tmp)))
        e("%s %s, %s, %s" % (op, v(x), v(x), v(tmp)))
        e("v_mov_b32 %s, %s" % (v(tmp), v(x)))
        e("v_permlane32_swap_b32 %s, %s" % (v(x), v(tmp)))
        e("%s %s, %s, %s" % (op, v(x), v(x), v(tmp)))

    def nonce_issue(self, vr):
        self.e("v_mov_b32 %s, 0" % v(vr + 2))
        self.vm("buffer_load_dwordx2 %s, %s, %s, 0 offen sc1" % (v(vr, 2), v(vr + 2), s(S_DBG, 4)), "nonce")
    def nonce_get(self, vr):
        e = self.e
        self.vm_wait("nonce")
        l0 = self.newlabel("NL"); l1 = self.newlabel("ND")
        e("v_readfirstlane_b32 %s, %s" % (s(S_NONCE), v(vr)))
        e("v_readfirstlane_b32 %s, %s" % (s(S_NONCE + 1), v(vr + 1)))
        e("s_cmp_lg_u32 %s, 0" % s(S_NONCE))
        e("s_cbranch_scc1 %s" % l1)
        e("s_mov_b32 s44, 0")
        self.label(l0)
        e("buffer_load_dwordx2 %s, %s, %s, 0 offen sc1" % (v(vr, 2), v(vr + 2), s(S_DBG, 4)))
        e("s_waitcnt vmcnt(0)")
        e("v_readfirstlane_b32 %s, %s" % (s(S_NONCE), v(vr)))
        e("v_readfirstlane_b32 %s, %s" % (s(S_NONCE + 1), v(vr + 1)))
        e("s_add_u32 s44, s44, 1")
        e("s_cmp_gt_u32 s44, 20000")
        e("s_cbranch_scc1 %s" % l1)
        e("s_cmp_eq_u32 %s, 0" % s(S_NONCE))
        e("s_cbranch_scc1 %s" % l0)
        self.label(l1)
    def flag_set(self, phase, sidx, vt, checkwave=True):
        e = self.e
        l = self.newlabel("FS")
        if checkwave: e("s_cmp_lg_u32 %s, 0" % s(S_W)); e("s_cbranch_scc1 %s" % l)
        e("s_lshl_b32 s44, %s, 6" % s(sidx)); e("s_add_u32 s44, s44, 0x%x" % (WS_FLAGS + phase * 16384))
        e("v_mov_b32 %s, %s" % (v(vt), s(S_NONCE))); e("v_mov_b32 %s, %s" % (v(vt + 1), s(S_NONCE + 1)))
        if phase == 0:
            e("v_mov_b32 %s, %s" % (v(vt + 2), s(S_XCC))); e("v_mov_b32 %s, 0" % v(vt + 3)); e("v_mov_b32 %s, s44" % v(vt + 4))
            e("s_mov_b64 exec, 1")
            e("buffer_store_dwordx4 %s, %s, %s, 0 offen sc1" % (v(vt, 4), v(vt + 4), s(S_WS, 4)))
            e("s_mov_b64 exec, -1")
        else:
            e("v_mov_b32 %s, s44" % v(vt + 2))
            e("s_mov_b64 exec, 1")
            txt = "buffer_store_dwordx2 %s, %s, %s, 0 offen sc1" % (v(vt, 2), v(vt + 2), s(S_WS, 4))
            if self.o.get("fastp", 1): self.dual(txt)
            else: e(txt)
            e("s_mov_b64 exec, -1")
        self.label(l)
    def flag_poll(self, vaddr, vt, nloads=1, stride=0):
        e = self.e
        l0 = self.newlabel("PL"); l1 = self.newlabel("PD")
        e("s_mov_b32 s44, 0")
        self.label(l0)
        for k in range(nloads):
            e("buffer_load_dwordx2 %s, %s, %s, 0 offen offset:%d sc1" % (v(vt + 2 * k, 2), v(vaddr), s(S_WS, 4), k * stride))
        e("s_waitcnt vmcnt(0)")
        for k in range(nloads):
            e("v_cmp_eq_u32 %s, %s, %s" % (s(46 + 0, 2), s(S_NONCE), v(vt + 2 * k)))
            e("v_cmp_eq_u32 %s, %s, %s" % (s(48 + 0, 2), s(S_NONCE + 1), v(vt + 2 * k + 1)))
            e("s_and_b64 s[46:47], s[46:47], s[48:49]")
            if k == 0: e("s_mov_b64 s[50:51], s[46:47]")
            else: e("s_and_b64 s[50:51], s[50:51], s[46:47]")
        e("s_cmp_eq_u64 s[50:51], -1")
        e("s_cbranch_scc1 %s" % l1)
        e("s_add_u32 s44, s44, 1")
        e("s_cmp_gt_u32 s44, 20000")
        e("s_cbranch_scc0 %s" % l0)
        e("s_mov_b32 %s, 1" % s(S_TMO))
        self.label(l1)

    def srd(self, d, src, size):
        e = self.e
        e("s_mov_b32 %s, %s" % (s(d), s(src))); e("s_and_b32 %s, %s, 0xffff" % (s(d + 1), s(src + 1)))
        e("s_mov_b32 %s, 0x%x" % (s(d + 2), size)); e("s_mov_b32 %s, 0x20000" % s(d + 3))
    def prologue(self):
        e = self.e
        if self.o.get("stamps"): e("s_memrealtime s[96:97]")
        e("s_cmp_ge_u32 s2, 256")
        e("s_cbranch_scc1 L_end")
        e("s_load_dwordx16 s[64:79], s[0:1], 0")
        e("s_load_dwordx2 s[80:81], s[0:1], 64")
        e("v_and_b32 %s, 63, v0" % v(V_L))
        e("v_lshrrev_b32 v4, 6, v0")
        e("v_and_b32 %s, 15, %s" % (v(V_C), v(V_L)))
        e("v_lshrrev_b32 %s, 4, %s" % (v(V_G), v(V_L)))
        e("v_readfirstlane_b32 %s, v4" % s(S_W))
        e("s_and_b32 s3, s2, 7")
        e("s_lshr_b32 s41, s2, 3")
        e("s_lshr_b32 %s, s3, 1" % s(S_M1)); e("s_lshl_b32 %s, %s, 2" % (s(S_M1), s(S_M1)))
        e("s_lshr_b32 s62, s41, 3"); e("s_add_u32 %s, %s, s62" % (s(S_M1), s(S_M1)))
        e("s_and_b32 %s, s3, 1" % s(S_N1)); e("s_lshl_b32 %s, %s, 3" % (s(S_N1), s(S_N1)))
        e("s_and_b32 s62, s41, 7"); e("s_add_u32 %s, %s, s62" % (s(S_N1), s(S_N1)))
        e("s_lshl_b32 %s, s3, 1" % s(S_M3)); e("s_lshr_b32 s62, s41, 4"); e("s_add_u32 %s, %s, s62" % (s(S_M3), s(S_M3)))
        e("s_and_b32 %s, s41, 15" % s(S_J3))
        e("s_mov_b32 %s, 0" % s(S_TMO))
        e("s_getreg_b32 %s, hwreg(HW_REG_XCC_ID, 0, 4)" % s(S_XCC))
        e("s_mov_b32 %s, 0" % s(S_FAST))
        e("v_and_b32 v4, 1, %s" % v(V_G))
        e("v_cmp_eq_u32 %s, 1, v4" % s(S_ODD, 2))
    def prologue2(self):
        e = self.e
        self.srd(S_WO, 68, 640 * 640 * 2)
        self.srd(S_W1, 72, 640 * 1536 * 2)
        self.srd(S_W2, 74, 1536 * 640 * 2)
        self.srd(S_OUT, 76, 2048 * 640 * 2)

    def x_dma_setup(self, VX, t0, t1):
        e = self.e
        e("v_lshrrev_b32 %s, 3, %s" % (v(t0), v(V_L)))
        e("v_lshrrev_b32 %s, 1, %s" % (v(t1), v(t0)))
        e("v_xor_b32 %s, %s, %s" % (v(t1), v(t1), v(V_L))); e("v_and_b32 %s, 7, %s" % (v(t1), v(t1)))
        e("s_lshl_b32 s44, %s, 7" % s(S_M1)); e("s_lshl_b32 s45, %s, 5" % s(S_W)); e("s_add_u32 s44, s44, s45")
        e("v_add_u32 %s, s44, %s" % (v(t0), v(t0)))
        e("v_mul_u32_u24 %s, 1280, %s" % (v(t0), v(t0)))
        e("v_lshl_add_u32 %s, %s, 4, %s" % (v(VX), v(t1), v(t0)))
        e("v_xor_b32 %s, 4, %s" % (v(t1), v(t1)))
        e("v_lshl_add_u32 %s, %s, 4, %s" % (v(VX + 1), v(t1), v(t0)))
        e("v_add_u32 %s, %d, %s" % (v(VX + 1), 8 * 1280, v(VX + 1)))
    def x_frag_addr(self, VA, t0, base_const):
        e = self.e
        e("v_lshrrev_b32 %s, 1, %s" % (v(t0), v(V_C)))
        e("v_xor_b32 %s, %s, %s" % (v(t0), v(t0), v(V_G)))
        e("v_lshlrev_b32 %s, 4, %s" % (v(t0), v(t0)))
        e("v_lshl_add_u32 %s, %s, 7, %s" % (v(VA), v(V_C), v(t0)))
        e("v_xor_b32 %s, 64, %s" % (v(VA + 1), v(VA)))

    def p1_helper(self):
        e = self.e
        self.c("helper workgroup: LayerNorm statistics of x for token block m1")
        save = list(self.vmq); self.vmq = []
        VX, VA, T = 12, 14, 208
        self.x_dma_setup(VX, T, T + 1)
        self.x_frag_addr(VA, T, None)
        e("s_lshl_b32 s47, %s, 15" % s(S_W))
        e("v_add_u32 %s, s47, %s" % (v(VA), v(VA))); e("v_add_u32 %s, s47, %s" % (v(VA + 1), v(VA + 1)))
        def issue(sg):
            for i in range(4):
                e("s_add_u32 m0, s47, 0x%x" % ((sg % 8) * 4096 + i * 1024))
                e("s_mov_b32 %s, %d" % (s(S_SOFF), sg * 128 + (i >> 1) * 16 * 1280))
                self.vm("buffer_load_dwordx4 %s, %s, %s offen lds" % (v(VX + (i & 1)), s(S_X, 4), s(S_SOFF)), ("hx", sg))
        for sg in range(8): issue(sg)
        self.nonce_issue(16)
        for i in range(4): e("v_mov_b32 %s, 0x3f803f80" % v(20 + i))
        for i in range(16): e("v_mov_b32 %s, 0" % v(32 + i))
        for st in range(20):
            sg = st // 2
            if st % 2 == 0: self.vm_wait(("hx", sg))
            b = (st % 2) * 8
            for tt in range(2):
                e("ds_read_b128 %s, %s offset:%d" % (a(b + tt * 4, 4), v(VA + (st & 1)), (sg % 8) * 4096 + tt * 2048))
            e("s_waitcnt lgkmcnt(0)")
            if st % 2 == 1 and sg < 2: issue(sg + 8)
            for tt in range(2):
                e("%s %s, %s, %s, %s" % (M, v(32 + tt * 4, 4), a(b + tt * 4, 4), a(b + tt * 4, 4), v(32 + tt * 4, 4)))
                e("%s %s, %s, %s, %s" % (M, v(40 + tt * 4, 4), v(20, 4), a(b + tt * 4, 4), v(40 + tt * 4, 4)))
        self.nonce_get(16)
        e("v_and_b32 %s, 3, %s" % (v(T), v(V_C)))
        e("v_lshrrev_b32 %s, 2, %s" % (v(T + 1), v(V_C)))
        e("v_cmp_eq_u32 s[46:47], %s, %s" % (v(T + 1), v(V_G)))
        for tt in range(2):
            d = 32 + tt * 4
            for i in range(1, 4):
                e("v_cmp_eq_u32 vcc, %d, %s" % (i, v(T)))
                e("v_cndmask_b32 %s, %s, %s, vcc" % (v(d), v(d), v(d + i)))
            e("v_cndmask_b32 %s, 0, %s, s[46:47]" % (v(d), v(d)))
            self.reduce4(d, T + 2)
            sm = 40 + tt * 4
            e("v_mul_f32 %s, 0x%x, %s" % (v(sm), f2u(1.0 / 640), v(sm)))
            e("v_mul_f32 %s, 0x%x, %s" % (v(d), f2u(1.0 / 640), v(d)))
            e("v_fma_f32 %s, -%s, %s, %s" % (v(d), v(sm), v(sm), v(d)))
            e("v_max_f32 %s, 0, %s" % (v(d), v(d)))
            e("v_add_f32 %s, 0x%x, %s" % (v(d), f2u(1e-5), v(d)))
            e("v_rsq_f32 %s, %s" % (v(d), v(d)))
            o4 = 48 + tt * 4
            e("v_mov_b32 %s, %s" % (v(o4), v(sm))); e("v_mov_b32 %s, %s" % (v(o4 + 1), v(d)))
            e("v_mov_b32 %s, %s" % (v(o4 + 2), s(S_NONCE))); e("v_mov_b32 %s, %s" % (v(o4 + 3), s(S_NONCE + 1)))
        e("s_lshl_b32 s44, %s, 7" % s(S_M1)); e("s_lshl_b32 s45, %s, 5" % s(S_W)); e("s_add_u32 s44, s44, s45")
        e("v_add_u32 %s, s44, %s" % (v(T), v(V_C)))
        e("v_lshlrev_b32 %s, 4, %s" % (v(T), v(T)))
        e("v_add_u32 %s, 0x%x, %s" % (v(T), WS_STAT, v(T)))
        e("s_mov_b64 exec, 0xffff")
        for tt in range(2):
            e("buffer_store_dwordx4 %s, %s, %s, 0 offen offset:%d sc1" % (v(48 + tt * 4, 4), v(T), s(S_WS, 4), tt * 256))
        e("s_mov_b64 exec, -1")
        e("s_waitcnt vmcnt(0)")
        self.vmq = save

    def p1(self):
        e = self.e; o = self.o
        VT = 4
        VXA = 8
        VX = 10
        VWO = 12
        VPK = 13
        VONE = 20
        VCS = 24
        ACC = 32
        VST = 96
        VN = 112
        VPA = 124
        PKF = 116
        TMP = 208
        t0, t1, t2, t3 = TMP, TMP + 1, TMP + 2, TMP + 3
        acc = lambda i, tt: ACC + (i * 4 + tt) * 4
        PK_OFF = 131072
        CS_OFF = 131072 + 24576
        lab_h = self.newlabel("HELP"); lab_j = self.newlabel("P1J")
        self.c("P1: address setup (no pointers needed yet)")
        self.x_dma_setup(VX, t0, t1)
        e("s_lshr_b32 s44, %s, 1" % s(S_W)); e("s_lshl_b32 s44, s44, 3")
        e("v_and_b32 %s, 1, %s" % (v(t0), v(V_G))); e("v_and_b32 %s, 2, %s" % (v(t1), v(V_G)))
        e("v_lshl_or_b32 %s, %s, 1, %s" % (v(t0), v(t1), v(t0))); e("v_or_b32 %s, s44, %s" % (v(t0), v(t0)))
        e("v_xor_b32 %s, %s, %s" % (v(t0), v(t0), v(V_C)))
        e("s_lshl_b32 s45, %s, 2" % s(S_W)); e("v_add_u32 %s, s45, %s" % (v(t1), v(V_G)))
        e("v_mul_u32_u24 %s, 3840, %s" % (v(t1), v(t1)))
        e("v_lshl_add_u32 %s, %s, 4, %s" % (v(t1), v(t0), v(t1)))
        e("s_lshl_b32 s44, %s, 8" % s(S_N1)); e("v_add_u32 %s, s44, %s" % (v(VWO), v(t1)))
        e("s_lshl_b32 s47, %s, 10" % s(S_W))
        e("s_lshl_b32 s48, %s, 12" % s(S_W))
        self.c("W tile / x fragment read addresses")
        e("v_lshrrev_b32 %s, 2, %s" % (v(t0), v(V_C)))
        e("v_and_b32 %s, 3, %s" % (v(t1), v(V_L)))
        e("v_and_b32 %s, 1, %s" % (v(t2), v(t0))); e("v_and_b32 %s, 2, %s" % (v(t3), v(t0)))
        e("v_lshl_or_b32 %s, %s, 1, %s" % (v(t2), v(t3), v(t2)))
        e("v_and_b32 %s, 1, %s" % (v(t3), v(V_G))); e("v_lshl_or_b32 %s, %s, 3, %s" % (v(t2), v(t3), v(t2)))
        e("v_lshl_add_u32 %s, %s, 3, %s" % (v(t0), v(V_G), v(t0))); e("v_lshlrev_b32 %s, 8, %s" % (v(t0), v(t0)))
        e("s_lshr_b32 s50, %s, 1" % s(S_W)); e("s_and_b32 s45, %s, 1" % s(S_W)); e("s_lshl_b32 s45, s45, 1")
        for i in range(4):
            if i % 2 == 0:
                e("s_xor_b32 s44, s50, %d" % (i >> 1)); e("s_add_u32 s44, s44, s45"); e("s_lshl_b32 s44, s44, 2")
                e("v_add_u32 %s, s44, %s" % (v(t3), v(t1))); e("v_xor_b32 %s, %s, %s" % (v(t3), v(t3), v(t2)))
                e("v_lshl_add_u32 %s, %s, 4, %s" % (v(t3 + 1), v(t3), v(t0)))
            e("v_and_b32 %s, 1, %s" % (v(t3), v(t1)))
            if i & 1: e("v_xor_b32 %s, 1, %s" % (v(t3), v(t3)))
            e("v_lshl_add_u32 %s, %s, 3, %s" % (v(VT + i), v(t3), v(t3 + 1)))
        self.x_frag_addr(VXA, t0, None)
        e("s_lshl_b32 s44, s50, 13"); e("s_add_u32 s44, s44, 16384")
        e("v_add_u32 %s, s44, %s" % (v(VXA), v(VXA))); e("v_add_u32 %s, s44, %s" % (v(VXA + 1), v(VXA + 1)))
        for i in range(4): e("v_mov_b32 %s, 0x3f803f80" % v(VONE + i))
        e("s_waitcnt lgkmcnt(0)")
        self.srd(S_X, 64, 2048 * 640 * 2)
        self.srd(S_WQ, 66, 640 * 1920 * 2)
        self.srd(S_WS, 80, WS_SIZE)
        self.srd(S_DBG, 78, 256)
        l = self.newlabel("NP")
        e("s_lshl_b32 s44, s2, 2"); e("s_or_b32 s44, s44, %s" % s(S_W))
        e("s_cmp_lg_u32 s44, 0"); e("s_cbranch_scc1 %s" % l)
        e("s_memrealtime s[44:45]")
        e("s_waitcnt lgkmcnt(0)")
        e("s_or_b32 s44, s44, 1")
        e("v_mov_b32 v204, s44"); e("v_mov_b32 v205, s45"); e("v_mov_b32 v206, 0")
        e("s_mov_b64 exec, 1")
        e("buffer_store_dwordx2 v[204:205], v206, %s, 0 offen sc1" % s(S_DBG, 4))
        e("s_mov_b64 exec, -1")
        self.label(l)
        self.stamp(pre=96)
        self.stamp()
        e("s_cmp_eq_u32 %s, 15" % s(S_N1)); e("s_cbranch_scc1 %s" % lab_h)
        ROT = o.get("rot", 1)
        if ROT:
            e("s_and_b32 s44, %s, 3" % s(S_M1)); e("s_mul_i32 s44, s44, 5"); e("s_and_b32 s45, %s, 7" % s(S_N1)); e("s_mul_i32 s45, s45, 5"); e("s_add_u32 s44, s44, s45")
            e("s_lshr_b32 s44, s44, 1"); e("s_cmp_ge_u32 s44, 20"); e("s_cselect_b32 s45, 20, 0"); e("s_sub_u32 s44, s44, s45")
            e("s_cmp_ge_u32 s44, 10"); e("s_cselect_b32 s45, 10, 0"); e("s_sub_u32 s44, s44, s45")
            e("s_mul_i32 s86, s44, %d" % (64 * 3840)); e("s_lshl_b32 s87, s44, 7")
        def stage_adv():
            return ["s_add_u32 s86, s86, %d" % (64 * 3840), "s_add_u32 s87, s87, 128", "s_cmp_ge_u32 s87, 1280", "s_cselect_b32 s86, 0, s86", "s_cselect_b32 s87, 0, s87"]
        def dma_ops(st):
            ops = []
            sl = ((st // 2) % 4) * 32768
            for h in range(2):
                if o.get("xnoW") and st >= 2: continue
                if ROT:
                    pre = stage_adv() if (st % 2 == 0 and h == 0 and st > 0) else []
                    ops.append((pre + ["s_add_u32 m0, s47, 0x%x" % (sl + (st & 1) * 8192 + h * 4096), "s_add_u32 %s, s86, 0x%x" % (s(S_SOFF), (32 * (st & 1) + 16 * h) * 3840)],
                                "buffer_load_dwordx4 %s, %s, %s offen lds" % (v(VWO), s(S_WQ, 4), s(S_SOFF))))
                    continue
                ops.append((["s_add_u32 m0, s47, 0x%x" % (sl + (st & 1) * 8192 + h * 4096), "s_mov_b32 %s, 0x%x" % (s(S_SOFF), (32 * st + 16 * h) * 3840)],
                            "buffer_load_dwordx4 %s, %s, %s offen lds" % (v(VWO), s(S_WQ, 4), s(S_SOFF))))
            for i in range(2):
                if o.get("xnoX") and st >= 2: continue
                ii = (st & 1) * 2 + i
                ops.append((["s_add_u32 m0, s48, 0x%x" % (sl + 16384 + ii * 1024),
                             ("s_add_u32 %s, s87, %d" % (s(S_SOFF), (ii >> 1) * 16 * 1280)) if ROT else ("s_mov_b32 %s, %d" % (s(S_SOFF), (st // 2) * 128 + (ii >> 1) * 16 * 1280))],
                            "buffer_load_dwordx4 %s, %s, %s offen lds" % (v(VX + (ii & 1)), s(S_X, 4), s(S_SOFF))))
            return ops
        def issue_now(st):
            for su, ld in dma_ops(st):
                for x in su: e(x)
                self.vm(ld, ("st", st))
        issue_now(0)
        if o.get("tlb", 0):
            e("v_lshlrev_b32 %s, 19, %s" % (v(t0), v(V_L))); e("v_add_u32 %s, 0x7ff80, %s" % (v(t0), v(t0)))
            self.vm("buffer_load_dword v186, %s, %s, 0 offen" % (v(t0), s(S_WS, 4)), "touch")
        if o.get("pf1", 0):
            e("s_and_b32 s44, %s, 3" % s(S_M1)); e("s_mul_i32 s44, s44, %d" % (160 * 3840)); e("s_lshl_b32 s45, %s, 8" % s(S_N1)); e("s_add_u32 s44, s44, s45")
            e("s_lshl_b32 s45, %s, 6" % s(S_W)); e("v_add_u32 %s, s45, %s" % (v(t0), v(V_L)))
            e("v_lshrrev_b32 %s, 1, %s" % (v(t1), v(t0))); e("v_mul_u32_u24 %s, 3840, %s" % (v(t1), v(t1)))
            e("v_and_b32 %s, 1, %s" % (v(t2), v(t0))); e("v_lshl_add_u32 %s, %s, 7, %s" % (v(t1), v(t2), v(t1)))
            self.vm("buffer_load_dword v190, %s, %s, s44 offen" % (v(t1), s(S_WQ, 4)), "touch")
            lt = self.newlabel("TX"); lj = self.newlabel("TJ")
            e("s_cmp_lg_u32 %s, 0" % s(S_W)); e("s_cbranch_scc1 %s" % lt)
            e("v_add_u32 %s, %d, %s" % (v(t1), 128 * 3840, v(t1)))
            e("buffer_load_dword v191, %s, %s, s44 offen" % (v(t1), s(S_WQ, 4)))
            e("s_branch %s" % lj)
            self.label(lt)
            e("v_subrev_u32 %s, 64, %s" % (v(t0), v(t0))); e("v_min_u32 %s, 159, %s" % (v(t0), v(t0)))
            e("v_mul_u32_u24 %s, 6554, %s" % (v(t1), v(t0))); e("v_lshrrev_b32 %s, 16, %s" % (v(t1), v(t1)))
            e("v_mul_u32_u24 %s, 10, %s" % (v(t2), v(t1))); e("v_sub_u32 %s, %s, %s" % (v(t2), v(t0), v(t2)))
            e("s_and_b32 s44, %s, 7" % s(S_N1)); e("s_lshl_b32 s44, s44, 4"); e("s_lshl_b32 s45, %s, 7" % s(S_M1)); e("s_add_u32 s44, s44, s45")
            e("v_add_u32 %s, s44, %s" % (v(t1), v(t1))); e("v_mul_u32_u24 %s, 1280, %s" % (v(t1), v(t1)))
            e("v_lshl_add_u32 %s, %s, 7, %s" % (v(t1), v(t2), v(t1)))
            e("buffer_load_dword v187, %s, %s, 0 offen" % (v(t1), s(S_X, 4)))
            self.label(lj)
            self.vmq.append("touch")
        for st in range(1, 3): issue_now(st)
        if o.get("cpf", 0):
            e("s_getpc_b64 s[44:45]")
            self.label("L_pc")
            e("s_mov_b32 s50, L_end-L_pc")
            e("v_lshlrev_b32 %s, 7, %s" % (v(t0), v(V_L)))
            e("s_lshl_b32 s46, %s, 14" % s(S_W)); e("v_add_u32 %s, s46, %s" % (v(t0), v(t0)))
            for k in range(2):
                e("v_min_u32 %s, s50, %s" % (v(t1), v(t0)))
                self.vm("global_load_dword v%d, %s, s[44:45]" % (188 + k, v(t1)), "touch")
                if k == 0: e("v_add_u32 %s, 8192, %s" % (v(t0), v(t0)))
        self.stamp()
        self.prologue2()
        INIT = o.get("init", 4)
        for st in range(3, INIT): issue_now(st)
        self.c("pack set-up")
        PS = []
        pe = PS.append
        pe("s_mul_i32 s49, %s, 15" % s(S_M1)); pe("s_add_u32 s49, s49, %s" % s(S_N1))
        pe("s_cmp_lt_u32 s49, 80")
        pe("s_cselect_b32 s64, %s, %s" % (s(S_WO), s(S_W1))); pe("s_cselect_b32 s65, %s, %s" % (s(S_WO + 1), s(S_W1 + 1)))
        pe("s_cselect_b32 s66, %s, %s" % (s(S_WO + 2), s(S_W1 + 2))); pe("s_mov_b32 s67, 0x20000")
        pe("s_mov_b32 s72, 1280"); pe("s_cselect_b32 s72, s72, 3072")
        pe("s_cselect_b32 s73, 19, 23")
        pe("s_cselect_b32 s74, 2, 3")
        pe("s_cselect_b32 s75, 0, 80")
        pe("s_mov_b32 s76, 320"); pe("s_cselect_b32 s76, s76, 384")
        pe("s_cselect_b32 s77, 5, 6")
        pe("s_mov_b32 s78, 20")
        pe("s_mov_b32 s79, 0x%x" % WS_PW3); pe("s_cselect_b32 s79, s79, 0x%x" % WS_PW4)
        pe("s_sub_u32 s50, s49, s75"); pe("s_lshr_b32 s51, s50, s74")
        pe("s_lshl_b32 s52, 1, s74"); pe("s_sub_u32 s52, s52, 1"); pe("s_and_b32 s52, s50, s52")
        for i3 in range(3):
            pe("s_lshl_b32 s54, %s, 6" % s(S_W)); pe("s_add_u32 s54, s54, %d" % (256 * i3))
            pe("v_add_u32 %s, s54, %s" % (v(t0), v(V_L)))
            pe("v_mul_u32_u24 %s, 2731, %s" % (v(136 + i3), v(t0))); pe("v_lshrrev_b32 %s, 16, %s" % (v(136 + i3), v(136 + i3)))
            pe("v_mul_u32_u24 %s, 24, %s" % (v(t2), v(136 + i3))); pe("v_sub_u32 %s, %s, %s" % (v(139 + i3), v(t0), v(t2)))
        pe("v_lshrrev_b32 %s, 2, %s" % (v(t1), v(V_C))); pe("v_lshl_add_u32 %s, %s, 3, %s" % (v(t1), v(V_G), v(t1))); pe("v_mul_u32_u24 %s, 384, %s" % (v(t1), v(t1)))
        pe("v_and_b32 %s, 3, %s" % (v(t0), v(V_L)))
        pe("v_lshl_add_u32 v142, %s, 4, %s" % (v(t0), v(t1))); pe("v_lshl_add_u32 v143, %s, 3, %s" % (v(t0), v(t1)))
        pe("v_lshlrev_b32 v144, 4, %s" % v(V_L))
        pe("s_lshr_b32 s60, %s, 1" % s(S_W))
        pe("s_and_b32 s61, %s, 1" % s(S_W)); pe("s_mul_i32 s61, s61, 3")
        def pack_setup(blk, valid_s):
            pe("s_mul_i32 s53, s51, s72"); pe("s_lshl_b32 s53, s53, 5"); pe("s_mul_i32 s54, s52, s76"); pe("s_add_u32 s53, s53, s54")
            for i3 in range(3):
                pe("v_min_u32 %s, s73, %s" % (v(t2), v(139 + i3)))
                pe("v_mul_lo_u32 %s, %s, s72" % (v(t1), v(136 + i3)))
                pe("v_lshl_add_u32 %s, %s, 4, %s" % (v(t1), v(t2), v(t1)))
                pe("v_add_u32 %s, s53, %s" % (v(VPK + 3 * blk + i3), v(t1)))
            pe("s_lshl_b32 s57, s52, 1"); pe("s_add_u32 s57, s57, s60"); pe("s_mul_i32 s57, s57, s78"); pe("s_add_u32 s57, s57, s51")
            pe("s_mul_i32 s57, s57, s77"); pe("s_lshl_b32 s57, s57, 10"); pe("s_add_u32 s57, s57, s79")
            if valid_s is not None:
                pe("s_cmp_lt_u32 s49, %d" % valid_s); pe("s_cselect_b32 s57, s57, 0x%x" % BIGOFF)
            pe("s_mul_i32 s58, s60, s77"); pe("s_lshl_b32 s58, s58, 5"); pe("s_add_u32 s58, s58, %d" % (PK_OFF + blk * 12288))
            for i3 in range(3):
                pe("s_add_u32 s56, s61, %d" % i3)
                pe("s_lshr_b32 s54, s56, 1"); pe("s_lshl_b32 s54, s54, 6"); pe("s_and_b32 s55, s56, 1"); pe("s_lshl_b32 s55, s55, 3")
                pe("s_add_u32 s54, s54, s55"); pe("s_add_u32 s54, s54, s58")
                pe("s_lshl_b32 s55, s77, 3"); pe("s_add_u32 s55, s55, s56"); pe("s_cmp_eq_u32 s55, 44")
                pe("s_cselect_b64 s[68:69], -1, 0")
                pe("v_cndmask_b32 %s, v142, v143, s[68:69]" % v(t0))
                pe("v_add_u32 %s, s54, %s" % (v(VPA + 3 * blk + i3), v(t0)))
                pe("s_lshl_b32 s54, s56, 10"); pe("s_add_u32 s54, s54, s57"); pe("s_cmp_lt_u32 s56, s77"); pe("s_cselect_b32 s54, s54, 0x%x" % BIGOFF)
                pe("v_add_u32 %s, s54, v144" % v(VPA + 6 + 3 * blk + i3))
        pack_setup(0, None)
        for x in ("s_mov_b32 s72, 1280", "s_mov_b32 s73, 19", "s_mov_b32 s76, 320", "s_mov_b32 s77, 5", "s_mov_b32 s78, 48", "s_mov_b32 s79, 0x%x" % WS_PW5,
                  "s_lshr_b32 s51, s49, 2", "s_and_b32 s52, s49, 3"): pe(x)
        pack_setup(1, 192)
        self.stamp()
        self.c("P1 main loop")
        NS = 20
        def reads(st):
            b = (st % 2) * 32; sl = ((st // 2) % 2) * 32768
            pre = []
            if st % 8 == 4:
                pre = ["v_add_u32 %s, 0x10000, %s" % (v(r), v(r)) for r in (VT, VT + 1, VT + 2, VT + 3, VXA, VXA + 1)]
            elif st % 8 == 0 and st > 0:
                pre = ["v_subrev_u32 %s, 0x10000, %s" % (v(r), v(r)) for r in (VT, VT + 1, VT + 2, VT + 3, VXA, VXA + 1)]
            r = []
            for i in range(4):
                r.append("ds_read_b64_tr_b16 %s, %s offset:%d" % (a(b + i * 4, 2), v(VT + i), sl + (st & 1) * 8192))
                r.append("ds_read_b64_tr_b16 %s, %s offset:%d" % (a(b + i * 4 + 2, 2), v(VT + i), sl + (st & 1) * 8192 + 1024))
            for tt in range(4):
                r.append("ds_read_b128 %s, %s offset:%d" % (a(b + 16 + tt * 4, 4), v(VXA + (st & 1)), sl + tt * 2048))
            return pre, r
        self.vm_wait(("st", 1))
        e("s_barrier")
        pre, r = reads(0)
        for x in pre + r: e(x)
        pending_dma = [(su, ld, ("st", s2)) for s2 in range(INIT, 8) for su, ld in dma_ops(s2)]
        groups = []; cur = []
        for x in PS:
            cur.append(x)
            if len(cur) >= 6 and not x.startswith(("s_cmp", "s_cselect", "s_mov")): groups.append(cur); cur = []
        if cur: groups.append(cur)
        if o.get("xnopk"): groups = []
        for st in range(NS):
            b = (st % 2) * 32
            e("s_waitcnt lgkmcnt(0)")
            nxt = st + 1
            if nxt < NS and nxt % 2 == 0:
                if ("st", nxt + 1) in self.vmq: self.vm_wait(("st", nxt + 1))
                e("s_barrier")
                if o.get("fine"): self.stamp()
                for s2 in (nxt + 6, nxt + 7):
                    if s2 < NS: pending_dma += [(su, ld, ("st", s2)) for su, ld in dma_ops(s2)]
            if st == 7 and not o.get("xnopk"):
                pk = []
                for blk in range(2):
                    for i3 in range(3):
                        pk.append((["s_add_u32 m0, s47, 0x%x" % (PK_OFF + blk * 12288 + i3 * 4096), "s_nop 0"],
                                   "buffer_load_dwordx4 %s, %s, 0 offen lds" % (v(VPK + 3 * blk + i3), s(64 if blk == 0 else S_W2, 4)), "pk"))
                pending_dma = pk + pending_dma
            if st == 7 and not o.get('xnocs'): assert len(groups) <= 5, len(groups)
            if st == 7 and o.get('xnocs'):
                for gr in groups:
                    for x in gr: e(x)
                groups = []
            pre, r = reads(nxt) if nxt < NS else ([], [])
            pk_rd = st - 13 if 13 <= st < 19 and not o.get("xnopk") else None
            pk_st = st - 14 if 14 <= st < 20 and not o.get("xnopk") else None
            if pk_rd is not None:
                f = PKF + (st % 2) * 4
                r = r + ["ds_read_b64_tr_b16 %s, %s" % (v(f, 2), v(VPA + pk_rd)),
                         "ds_read_b64_tr_b16 %s, %s offset:%d" % (v(f + 2, 2), v(VPA + pk_rd), 4 * 384)]
            mf = []
            for i in range(4):
                for tt in range(4):
                    mf.append("%s %s, %s, %s, %s" % (M, v(acc(i, tt), 4), a(b + i * 4, 4), a(b + 16 + tt * 4, 4), v(acc(i, tt), 4) if st else "0"))
                if i < 2 and not o.get("xnocs"): mf.append("%s %s, %s, %s, %s" % (M, v(VCS + i * 4, 4), a(b + i * 4, 4), v(VONE, 4), v(VCS + i * 4, 4) if st else "0"))
            for x in pre: e(x)
            dpos = (1, 5, 10, 14) if st >= 4 else (0, 2, 4, 7, 9, 11, 13, 15)
            for n, m in enumerate(mf):
                if st >= 1 and n in (3, 6, 8, 12, 15, 17) and groups and not (n in dpos):
                    for x in groups.pop(0): e(x)
                dm = None
                if n in dpos and pending_dma:
                    dm = pending_dma.pop(0)
                    for x in dm[0]: e(x)
                e(m)
                if n < len(r): e(r[n])
                if dm: self.vm(dm[1], dm[2])
                if n == 8 and pk_st is not None:
                    f = PKF + ((st - 1) % 2) * 4
                    self.vm("buffer_store_dwordx4 %s, %s, %s, 0 offen sc1" % (v(f, 4), v(VPA + 6 + pk_st), s(S_WS, 4)), "pkst")
                if n == len(mf) - 2 and st == 15: self.nonce_issue(VN)
                if n == len(mf) - 2 and st == 17:
                    e("s_lshl_b32 s44, %s, 7" % s(S_M1)); e("s_lshr_b32 s45, %s, 1" % s(S_W)); e("s_lshl_b32 s45, s45, 6"); e("s_add_u32 s44, s44, s45")
                    e("v_add_u32 %s, s44, %s" % (v(t0), v(V_C))); e("v_lshlrev_b32 %s, 4, %s" % (v(t0), v(t0)))
                    e("v_add_u32 %s, 0x%x, %s" % (v(19), WS_STAT, v(t0)))
                    for tt in range(4):
                        self.vm("buffer_load_dwordx4 %s, %s, %s, 0 offen offset:%d sc1" % (v(VST + tt * 4, 4), v(19), s(S_WS, 4), tt * 256), "stat")
            assert st < NS - 1 or not pending_dma
        self.stamp()
        self.c("P1 epilogue")
        e("s_lshr_b32 s44, %s, 1" % s(S_W)); e("s_and_b32 s45, %s, 1" % s(S_W)); e("s_lshl_b32 s45, s45, 1")
        e("s_add_u32 s46, s44, s45")
        e("s_xor_b32 s44, s44, 1"); e("s_add_u32 s50, s44, s45")
        e("s_lshl_b32 s51, s46, 7"); e("s_add_u32 s51, s51, 0x%x" % CS_OFF)
        e("v_lshlrev_b32 %s, 4, %s" % (v(t0), v(V_G)))
        e("v_add_u32 %s, s51, %s" % (v(t1), v(t0)))
        e("v_cmp_eq_u32 vcc, 0, %s" % v(V_C))
        e("s_and_saveexec_b64 s[52:53], vcc")
        e("ds_write_b128 %s, %s" % (v(t1), v(VCS, 4)))
        e("ds_write_b128 %s, %s offset:64" % (v(t1), v(VCS + 4, 4)))
        e("s_mov_b64 exec, s[52:53]")
        e("s_mov_b32 s61, s46")
        self.nonce_get(VN)
        self.vm_wait("stat")
        l0 = self.newlabel("SR"); l1 = self.newlabel("SD")
        e("s_mov_b32 s44, 0")
        self.label(l0)
        e("s_mov_b64 s[52:53], -1")
        for tt in range(4):
            e("v_cmp_eq_u32 s[54:55], %s, %s" % (s(S_NONCE), v(VST + tt * 4 + 2)))
            e("v_cmp_eq_u32 s[56:57], %s, %s" % (s(S_NONCE + 1), v(VST + tt * 4 + 3)))
            e("s_and_b64 s[52:53], s[52:53], s[54:55]"); e("s_and_b64 s[52:53], s[52:53], s[56:57]")
        e("s_cmp_eq_u64 s[52:53], -1"); e("s_cbranch_scc1 %s" % l1)
        e("s_add_u32 s44, s44, 1"); e("s_cmp_gt_u32 s44, 20000"); e("s_cbranch_scc1 %s" % l1)
        for tt in range(4):
            e("buffer_load_dwordx4 %s, %s, %s, 0 offen offset:%d sc1" % (v(VST + tt * 4, 4), v(19), s(S_WS, 4), tt * 256))
        e("s_waitcnt vmcnt(0)")
        e("s_branch %s" % l0)
        self.label(l1)
        e("s_waitcnt lgkmcnt(0)")
        e("s_barrier")
        CSV = 146
        e("s_lshl_b32 s52, s50, 7"); e("s_add_u32 s52, s52, 0x%x" % CS_OFF)
        e("v_add_u32 %s, s52, %s" % (v(t1), v(t0)))
        e("ds_read_b128 %s, %s" % (v(CSV + 8, 4), v(t1)))
        e("ds_read_b128 %s, %s offset:64" % (v(CSV + 12, 4), v(t1)))
        for i in range(8): e("v_mov_b32 %s, %s" % (v(CSV + i), v(VCS + i)))
        qs = math.log2(math.e) / math.sqrt(20.0)
        e("s_cmp_lt_u32 %s, 5" % s(S_N1)); e("s_mov_b32 s53, 0x3f800000"); e("s_cselect_b32 s53, 0x%x, s53" % f2u(qs))
        for tt in range(4):
            e("v_mul_f32 %s, s53, %s" % (v(VST + tt * 4 + 1), v(VST + tt * 4 + 1)))
            e("v_xor_b32 %s, 0x80000000, %s" % (v(VST + tt * 4), v(VST + tt * 4)))
        e("v_lshlrev_b32 %s, 11, %s" % (v(t2), v(V_G))); e("v_add_u32 %s, %s, %s" % (v(t2), v(t2), v(V_C))); e("v_lshlrev_b32 %s, 4, %s" % (v(t2), v(t2)))
        e("s_lshl_b32 s54, %s, 7" % s(S_M1)); e("s_lshr_b32 s55, %s, 1" % s(S_W)); e("s_lshl_b32 s55, s55, 6"); e("s_add_u32 s54, s54, s55")
        e("s_lshl_b32 s55, %s, 4" % s(S_N1))
        for q, sp in ((0, 61), (1, 50)):
            e("s_lshl_b32 s56, %s, 2" % s(sp)); e("s_add_u32 s56, s56, s55"); e("s_lshl_b32 s56, s56, 11"); e("s_add_u32 s56, s56, s54")
            e("s_lshl_b32 s56, s56, 4"); e("s_add_u32 %s, s56, 0x%x" % (s(58 + q), WS_QKV))
        e("s_waitcnt lgkmcnt(0)")
        OUTR = 188
        n = 0
        for q in range(2):
            for tt in range(4):
                nm = VST + tt * 4
                P = []
                for hf in range(2):
                    i = 2 * q + hf; A_ = acc(i, tt)
                    for h in range(2):
                        e("v_pk_fma_f32 %s, %s, %s, %s op_sel_hi:[1,0,1]" % (v(A_ + 2 * h, 2), v(CSV + i * 4 + 2 * h, 2), v(nm, 2), v(A_ + 2 * h, 2)))
                    for h in range(2):
                        e("v_pk_mul_f32 %s, %s, %s op_sel:[0,1] op_sel_hi:[1,1]" % (v(A_ + 2 * h, 2), v(A_ + 2 * h, 2), v(nm, 2)))
                    e("v_cvt_pk_bf16_f32 %s, %s, %s" % (v(A_), v(A_), v(A_ + 1)))
                    e("v_cvt_pk_bf16_f32 %s, %s, %s" % (v(A_ + 1), v(A_ + 2), v(A_ + 3)))
                    P.append(A_)
                O4 = OUTR + (n % 4) * 4
                e("v_cndmask_b32 %s, %s, %s, %s" % (v(O4), v(P[0]), v(P[1]), s(S_ODD, 2)))
                e("v_cndmask_b32 %s, %s, %s, %s" % (v(O4 + 1), v(P[0] + 1), v(P[1] + 1), s(S_ODD, 2)))
                e("v_cndmask_b32 %s, %s, %s, %s" % (v(O4 + 2), v(P[1]), v(P[0]), s(S_ODD, 2)))
                e("v_cndmask_b32 %s, %s, %s, %s" % (v(O4 + 3), v(P[1] + 1), v(P[0] + 1), s(S_ODD, 2)))
                self.vm("buffer_store_dwordx4 %s, %s, %s, %s offen offset:%d sc1" % (v(O4, 4), v(t2), s(S_WS, 4), s(58 + q), tt * 256), "qkvst")
                n += 1
        e("s_branch %s" % lab_j)
        self.label(lab_h)
        self.prologue2()
        self.p1_helper()
        self.label(lab_j)
        self.stamp()
        e("s_barrier")
        e("s_lshl_b32 s89, %s, 4" % s(S_M1)); e("s_add_u32 s89, s89, %s" % s(S_N1))
        self.vmq = []

    def wait_all(self, phase, vt, barrier=True, allwaves=False):
        e = self.e
        l = self.newlabel("WA")
        if not allwaves:
            e("s_cmp_lg_u32 %s, 0" % s(S_W)); e("s_cbranch_scc1 %s" % l)
        e("v_lshlrev_b32 %s, 8, %s" % (v(vt), v(V_L)))
        if phase: e("v_add_u32 %s, 0x%x, %s" % (v(vt), WS_FLAGS + phase * 16384, v(vt)))
        self.flag_poll(vt, vt + 2, nloads=4, stride=64)
        self.label(l)
        if barrier: e("s_barrier")
    def poll_group(self, phase, vt):
        e = self.e
        e("s_lshl_b32 s52, %s, 10" % s(S_M3)); e("s_add_u32 s52, s52, 0x%x" % (WS_FLAGS + phase * 16384))
        e("v_lshlrev_b32 %s, 6, %s" % (v(vt), v(V_C)))
        e("v_add_u32 %s, s52, %s" % (v(vt), v(vt)))
        self.flag_poll(vt, vt + 2)
    def job4(self, sbase, blk, pos, tag, vl16=4):
        return (["s_add_u32 m0, %s, 0x%x" % (s(S_W1K), pos * 1024), "s_add_u32 %s, %s, 0x%x" % (s(S_SOFF), s(sbase), blk * 1024)],
                "buffer_load_dwordx4 %s, %s, %s offen sc1 lds" % (v(vl16), s(S_WS, 4), s(S_SOFF)), tag)
    def seg4(self, sbase, blk0, pos0, n, tag, vl16=4):
        jobs = []
        for k in range(n):
            su = []
            if k == 0:
                su += ["s_mul_i32 s100, %s, %d" % (s(S_W), n * 1024), "s_add_u32 s101, s100, %s" % s(sbase), "s_sub_u32 s101, s101, %s" % s(S_W1K),
                       "s_add_u32 s101, s101, 0x%x" % (blk0 * 1024), "s_add_u32 s100, s100, 0x%x" % (pos0 * 1024)]
            if k % 4 == 0:
                su += ["s_add_u32 m0, s100, 0x%x" % (k * 1024), "s_add_u32 %s, s101, 0x%x" % (s(S_SOFF), k * 1024)]
            jobs.append((su, "buffer_load_dwordx4 %s, %s, %s offen offset:%d sc1 lds" % (v(vl16), s(S_WS, 4), s(S_SOFF), (k % 4) * 1024), tag))
        return jobs
    def emit_job(self, j):
        if self.o.get("nojobs") and " lds" in j[1]:
            self.vmq.append(j[2]); self.phantom = True; return
        for x in j[0]: self.e(x)
        self.vm(j[1], j[2])
    def dma3(self, sbase, blk0, pos0, njobs, tag, vl16=4):
        e = self.e
        e("s_sub_u32 s49, %s, 1024" % s(sbase))
        for k in range(njobs):
            if self.o.get("nojobs"): self.vmq.append(tag); continue
            e("s_add_u32 m0, %s, 0x%x" % (s(S_W3), (pos0 + 3 * k) * 1024))
            e("s_add_u32 %s, s49, 0x%x" % (s(S_SOFF), (blk0 + 3 * k) * 1024))
            self.vm("buffer_load_dwordx4 %s, %s, %s offen sc1 lds" % (v(vl16), s(S_WS, 4), s(S_SOFF)), tag)
    def group_flag_idx(self):
        self.e("s_lshl_b32 s52, %s, 4" % s(S_M3)); self.e("s_add_u32 s52, s52, %s" % s(S_J3))

    def p2(self):
        e = self.e; o = self.o
        KB, VB, BB, QB, OB = 0, 30720, 62080, 69632, 150 * 1024
        T = 200
        t0, t1, t2, t3 = T, T + 1, T + 2, T + 3
        VL16 = 4
        VKA = 5
        VVA = 8
        VMF, VML = 12, 16
        VQ = 20
        OA = 36
        SB = [56, 124]
        NEG = f2u(-1e30)
        self.c("P2 set-up")
        e("v_lshlrev_b32 %s, 4, %s" % (v(VL16), v(V_L)))
        e("s_lshl_b32 %s, %s, 10" % (s(S_W1K), s(S_W))); e("s_sub_u32 %s, %s, 1024" % (s(S_W3), s(S_W1K)))
        e("s_lshr_b32 %s, %s, 1" % (s(S_NQ), s(S_J3)))
        for sb, sk, sz, base in ((S_B3, S_NQ, 102400, WS_PW3), (S_B4, S_J3, 122880, WS_PW4), (S_B5, S_NQ, 245760, WS_PW5)):
            e("s_mul_i32 %s, %s, %d" % (s(sb), s(sk), sz)); e("s_add_u32 %s, %s, 0x%x" % (s(sb), s(sb), base)); e("s_add_u32 %s, %s, %s" % (s(sb), s(sb), s(S_W1K)))
        e("s_lshl_b32 %s, %s, 3" % (s(S_TI), s(S_M3))); e("s_and_b32 s52, %s, 1" % s(S_J3)); e("s_lshl_b32 s52, s52, 2")
        e("s_add_u32 %s, %s, s52" % (s(S_TI), s(S_TI))); e("s_add_u32 %s, %s, %s" % (s(S_TI), s(S_TI), s(S_W)))
        e("s_lshl_b32 s52, %s, 7" % s(S_M3)); e("s_sub_i32 s52, 256, s52")
        e("v_mov_b32 %s, 0xf149" % v(t0 + 4))
        e("v_mov_b32 %s, 0" % v(t0 + 9)); e("v_mov_b32 %s, 0x3f80" % v(t0 + 10)); e("v_mov_b32 %s, 0" % v(t0 + 11))
        e("v_cmp_gt_i32 vcc, s52, v0")
        e("v_cndmask_b32 %s, 0, %s, vcc" % (v(t0 + 8), v(t0 + 4)))
        e("v_lshlrev_b32 %s, 4, v0" % v(t1)); e("v_add_u32 %s, %d, %s" % (v(t1), BB, v(t1)))
        e("ds_write_b128 %s, %s" % (v(t1), v(t0 + 8, 4)))
        e("v_add_u32 %s, 256, v0" % v(t2))
        e("v_cmp_gt_i32 vcc, s52, %s" % v(t2))
        e("v_cndmask_b32 %s, 0, %s, vcc" % (v(t0 + 12), v(t0 + 4)))
        e("v_mov_b32 %s, 0" % v(t0 + 13)); e("v_mov_b32 %s, 0x3f80" % v(t0 + 14)); e("v_mov_b32 %s, 0" % v(t0 + 15))
        e("v_cmp_gt_u32 vcc, 160, v0")
        e("s_and_saveexec_b64 s[54:55], vcc")
        e("ds_write_b128 %s, %s offset:4096" % (v(t1), v(t0 + 12, 4)))
        e("s_mov_b64 exec, s[54:55]")
        e("s_mul_i32 s55, %s, 5" % s(S_J3))
        e("s_lshl_b32 s56, %s, 7" % s(S_M3)); e("s_sub_i32 s56, s56, 256")
        e("s_cmp_ge_u32 %s, 2" % s(S_W))
        e("s_cselect_b32 s57, -2, 4")
        e("s_cselect_b32 s70, 26624, 0")
        e("s_cselect_b32 s71, 128, 0")
        e("s_add_i32 s57, s57, %s" % s(S_W))
        for k, (reg, add) in enumerate(((S_W, 0), (57, 0), (S_W, 2))):
            e("s_add_i32 s58, %s, %d" % (s(reg), add)); e("s_lshl_b32 s58, s58, 6"); e("s_add_i32 s58, s58, s56"); e("s_cmp_lt_i32 s58, 0")
            e("s_cselect_b32 %s, 0x%x, 0" % (s(64 + k), BIGOFF))
        e("s_add_u32 s65, s65, s70")
        e("s_lshl_b32 s56, s56, 4"); e("s_add_u32 s56, s56, %s" % s(S_W1K))
        e("s_add_u32 s58, s55, 80"); e("s_lshl_b32 s58, s58, 15"); e("s_add_u32 s58, s58, 0x%x" % WS_QKV); e("s_add_u32 s68, s58, s56")
        e("s_add_u32 s69, s68, 0x%x" % (80 << 15))
        e("s_lshr_b32 s58, %s, 1" % s(S_W)); e("s_add_u32 s58, s58, s55"); e("s_lshl_b32 s58, s58, 15"); e("s_lshl_b32 s59, %s, 11" % s(S_M3)); e("s_add_u32 s58, s58, s59")
        e("s_and_b32 s59, %s, 1" % s(S_W)); e("s_lshl_b32 s59, s59, 10"); e("s_add_u32 s58, s58, s59"); e("s_add_u32 s72, s58, 0x%x" % WS_QKV)
        e("s_mul_i32 %s, %s, 2560" % (s(S_OST), s(S_W))); e("s_add_u32 %s, %s, %d" % (s(S_OST), s(S_OST), OB))
        e("v_mul_u32_u24 %s, 80, %s" % (v(t0), v(V_C))); e("v_add_u32 %s, %s, %s" % (v(t0), s(S_OST), v(t0)))
        e("v_lshl_add_u32 v236, %s, 4, %s" % (v(V_G), v(t0)))
        e("v_mul_u32_u24 %s, 1280, %s" % (v(t2), v(V_G))); e("v_add_u32 %s, %s, %s" % (v(t2), v(t2), v(t0)))
        e("v_min_u32 v237, %d, %s" % (OB + 4 * 2560 - 80, v(t2)))
        e("s_lshl_b32 s58, %s, 3" % s(S_M3)); e("s_lshl_b32 s59, %s, 1" % s(S_W)); e("s_add_u32 s58, s58, s59"); e("s_mul_i32 s58, s58, 20480")
        e("s_add_u32 s78, s58, 0x%x" % WS_O); e("s_add_u32 s79, s78, 20480")
        e("v_add_u32 %s, s55, %s" % (v(t0), v(V_G)))
        e("v_lshrrev_b32 %s, 2, %s" % (v(t1), v(t0))); e("v_lshlrev_b32 %s, 10, %s" % (v(t1), v(t1)))
        e("v_and_b32 %s, 3, %s" % (v(t0), v(t0))); e("v_lshl_add_u32 %s, %s, 8, %s" % (v(t1), v(t0), v(t1)))
        e("v_lshl_add_u32 v238, %s, 4, %s" % (v(V_C), v(t1)))
        e("s_add_u32 s59, s55, 4"); e("s_lshr_b32 s60, s59, 2"); e("s_lshl_b32 s60, s60, 10"); e("s_and_b32 s59, s59, 3"); e("s_lshl_b32 s59, s59, 8"); e("s_add_u32 s60, s60, s59")
        e("v_mul_u32_u24 %s, 20480, %s" % (v(t3), v(V_G))); e("v_lshl_add_u32 %s, %s, 4, %s" % (v(t3), v(V_C), v(t3))); e("v_add_u32 v239, s60, %s" % v(t3))
        e("v_lshrrev_b32 %s, 3, %s" % (v(t0), v(V_L))); e("v_and_b32 %s, 3, %s" % (v(t0), v(t0))); e("v_min_u32 %s, 2, %s" % (v(t0), v(t0)))
        e("v_lshrrev_b32 %s, 1, %s" % (v(t1), v(V_L))); e("v_and_b32 %s, 3, %s" % (v(t1), v(t1))); e("v_min_u32 %s, 2, %s" % (v(t1), v(t1)))
        e("v_and_b32 %s, 1, %s" % (v(t2), v(V_L))); e("v_lshlrev_b32 %s, 2, %s" % (v(t2), v(t2)))
        e("v_mul_u32_u24 %s, 80, %s" % (v(t0), v(t0))); e("v_add3_u32 %s, %s, %s, s55" % (v(t0), v(t0), v(t2))); e("v_lshrrev_b32 %s, 4, %s" % (v(t0), v(t0)))
        e("s_sub_i32 s58, %s, 2" % s(S_M3)); e("v_add_u32 %s, s58, %s" % (v(t1), v(t1))); e("v_max_i32 %s, 0, %s" % (v(t1), v(t1)))
        e("v_lshl_add_u32 %s, %s, 4, %s" % (v(t0), v(t1), v(t0))); e("v_lshlrev_b32 %s, 6, %s" % (v(T + 19), v(t0)))
        self.c("fragment addresses and masks")
        e("s_lshl_b32 s57, %s, 5" % s(S_W)); e("v_add_u32 %s, s57, %s" % (v(t0), v(V_C))); e("v_lshlrev_b32 %s, 4, %s" % (v(t0), v(t0)))
        e("v_cmp_eq_u32 s[58:59], 3, %s" % v(V_G)); e("v_cmp_eq_u32 s[60:61], 2, %s" % v(V_G))
        e("v_mul_u32_u24 %s, 6144, %s" % (v(t1), v(V_G)))
        e("v_mov_b32 %s, %d" % (v(t2), BB))
        e("v_cndmask_b32 %s, %s, %s, s[58:59]" % (v(VKA), v(t1), v(t2)))
        e("v_add_u32 %s, %d, %s" % (v(t3), 3 * 6144, v(t1)))
        e("v_mov_b32 %s, %d" % (v(t0 + 4), 2 * 6144))
        e("v_cndmask_b32 %s, %s, %s, s[60:61]" % (v(t3), v(t3), v(t0 + 4)))
        e("v_cndmask_b32 %s, %s, %s, s[58:59]" % (v(VKA + 1), v(t3), v(t2)))
        e("v_add_u32 %s, %s, %s" % (v(VKA), v(VKA), v(t0))); e("v_add_u32 %s, %s, %s" % (v(VKA + 1), v(VKA + 1), v(t0)))
        VQA = 52
        e("v_lshlrev_b32 %s, 11, %s" % (v(t1), v(V_G)))
        e("v_cndmask_b32 %s, %s, 0, s[58:59]" % (v(VQA), v(t1)))
        e("v_add_u32 %s, %d, %s" % (v(t3), 3 * 2048, v(t1))); e("v_mov_b32 %s, %d" % (v(t0 + 4), 2 * 2048))
        e("v_cndmask_b32 %s, %s, %s, s[60:61]" % (v(t3), v(t3), v(t0 + 4)))
        e("v_cndmask_b32 %s, %s, 0, s[58:59]" % (v(VQA + 1), v(t3)))
        e("v_add_u32 %s, %d, %s" % (v(t3), QB, v(t0)))
        for h in range(2): e("v_add_u32 %s, %s, %s" % (v(VQA + h), v(VQA + h), v(t3)))
        e("v_lshrrev_b32 %s, 2, %s" % (v(t0), v(V_C))); e("v_lshl_add_u32 %s, %s, 2, %s" % (v(t0), v(V_G), v(t0)))
        e("v_add_u32 %s, s57, %s" % (v(t0), v(t0))); e("v_lshlrev_b32 %s, 4, %s" % (v(t0), v(t0)))
        e("v_and_b32 %s, 3, %s" % (v(t1), v(V_L)))
        for h in range(2):
            e("v_add_u32 %s, %d, %s" % (v(t2), 5 * h, v(t1)))
            e("v_lshrrev_b32 %s, 1, %s" % (v(t3), v(t2))); e("v_mul_u32_u24 %s, 6272, %s" % (v(t3), v(t3)))
            e("v_and_b32 %s, 1, %s" % (v(t2), v(t2))); e("v_lshl_add_u32 %s, %s, 3, %s" % (v(t3), v(t2), v(t3)))
            e("v_add_u32 %s, %s, %s" % (v(VVA + 2 * h), v(t3), v(t0)))
            e("v_add_u32 %s, %d, %s" % (v(VVA + 2 * h), VB, v(VVA + 2 * h)))
            X = 5 * h + 4
            e("v_and_b32 %s, 1, %s" % (v(t2), v(t1))); e("v_cmp_eq_u32 vcc, 1, %s" % v(t2))
            e("v_mov_b32 %s, %d" % (v(t3), VB + (X >> 1) * 6272 + (X & 1) * 8)); e("v_mov_b32 %s, %d" % (v(t0 + 4), BB + 8))
            e("v_cndmask_b32 %s, %s, %s, vcc" % (v(t3), v(t3), v(t0 + 4)))
            e("v_add_u32 %s, %s, %s" % (v(VVA + 2 * h + 1), v(t3), v(t0)))
        e("v_lshlrev_b32 %s, 2, %s" % (v(t0), v(V_G))); e("v_mov_b32 %s, 0x%x" % (v(t1), NEG))
        for i in range(4):
            e("v_add_u32 %s, %d, %s" % (v(t2), i, v(t0)))
            e("v_cmp_gt_u32 vcc, %s, %s" % (v(t2), v(V_C)))
            e("v_cndmask_b32 %s, %s, 0, vcc" % (v(VMF + i), v(t1)))
            e("v_cndmask_b32 %s, 0, %s, vcc" % (v(VML + i), v(t1)))
        VOW = 54
        e("v_mul_u32_u24 %s, 80, %s" % (v(VOW), v(V_C))); e("v_lshl_add_u32 %s, %s, 3, %s" % (v(VOW), v(V_G), v(VOW))); e("v_add_u32 %s, %s, %s" % (v(VOW), s(S_OST), v(VOW)))
        e("s_waitcnt vmcnt(0) lgkmcnt(0)")
        e("s_barrier")
        self.flag_set(0, 89, T + 20)
        self.stamp()
        lw = self.newlabel("WD")
        e("s_cmp_lg_u32 %s, 0" % s(S_W)); e("s_cbranch_scc1 %s" % lw)
        self.flag_poll(T + 19, T + 22)
        self.label(lw)
        e("s_barrier")
        self.stamp()
        self.vmq = []
        def kvjob(base_s, ldsb, pitch, u, pat, tag):
            g = u * 32768 + (0, 4096, 32768 + 2048)[pat]
            l = ldsb + u * pitch + (0, 4096, pitch + 2048)[pat]
            e("s_add_u32 m0, %s, %d" % (s(S_W1K), l))
            if pat == 1 and pitch != 6144: e("s_add_u32 m0, m0, s71")
            e("s_add_u32 %s, %s, %s" % (s(S_SOFF), s(base_s), s(64 + pat)))
            if g: e("s_add_u32 %s, %s, %d" % (s(S_SOFF), s(S_SOFF), g))
            self.vm("buffer_load_dwordx4 %s, %s, %s offen sc1 lds" % (v(VL16), s(S_WS, 4), s(S_SOFF)), tag)
        def halfjob(base_s, ldsb, pitch, u, tag):
            e("s_cmp_ge_u32 %s, 2" % s(S_W))
            e("s_cselect_b32 s58, %d, %d" % (156 * 1024 - 2048, 0) if False else "s_mov_b32 s58, %d" % (ldsb + u * pitch + 4096))
            e("s_cselect_b32 s58, %d, s58" % (76 * 1024))
            e("s_add_u32 m0, %s, s58" % s(S_W1K))
            e("s_cselect_b32 s58, 0x%x, s65" % BIGOFF if False else "s_cmp_ge_u32 %s, 2" % s(S_W))
            e("s_cselect_b32 s58, 0x%x, s65" % BIGOFF)
            e("s_add_u32 %s, %s, s58" % (s(S_SOFF), s(base_s))); e("s_add_u32 %s, %s, %d" % (s(S_SOFF), s(S_SOFF), u * 32768 + 4096))
            self.vm("buffer_load_dwordx4 %s, %s, %s offen sc1 lds" % (v(VL16), s(S_WS, 4), s(S_SOFF)), tag)
        def qjob(u0, tag):
            e("s_add_u32 m0, %s, %d" % (s(S_W1K), QB + u0 * 2048))
            if u0 == 4:
                e("s_cmp_ge_u32 %s, 2" % s(S_W)); e("s_cselect_b32 s58, 0x%x, 0" % BIGOFF); e("s_add_u32 %s, s72, s58" % s(S_SOFF))
                e("s_add_u32 %s, %s, %d" % (s(S_SOFF), s(S_SOFF), u0 * 32768))
            else:
                e("s_add_u32 %s, s72, %d" % (s(S_SOFF), u0 * 32768))
            self.vm("buffer_load_dwordx4 %s, %s, %s offen sc1 lds" % (v(VL16), s(S_WS, 4), s(S_SOFF)), tag)
        for u in (0, 2):
            for pat in range(3): kvjob(68, KB, 6144, u, pat, "kq")
            qjob(u, "kq")
        qjob(4, "kq")
        for u in (0, 2):
            for pat in range(3): kvjob(69, VB, 6272, u, pat, "rest")
        for base_s, ldsb, pitch in ((68, KB, 6144), (69, VB, 6272)):
            kvjob(base_s, ldsb, pitch, 4, 0, "rest"); halfjob(base_s, ldsb, pitch, 4, "rest")
        lw = self.newlabel("FP")
        e("v_lshlrev_b32 %s, 8, %s" % (v(T + 20), v(V_L)))
        e("s_lshr_b32 s58, %s, 1" % s(S_M3)); e("s_lshr_b32 s59, s58, 1"); e("s_lshl_b32 s59, s59, 6"); e("s_and_b32 s58, s58, 1"); e("s_lshl_b32 s58, s58, 3"); e("s_add_u32 s59, s59, s58")
        e("s_and_b32 s58, %s, 1" % s(S_M3)); e("s_lshl_b32 s58, s58, 5"); e("s_add_u32 s59, s59, s58")
        e("v_lshrrev_b32 %s, 3, %s" % (v(T + 18), v(V_C))); e("v_lshlrev_b32 %s, 4, %s" % (v(T + 18), v(T + 18)))
        e("v_and_b32 %s, 7, %s" % (v(T + 30), v(V_C))); e("v_add3_u32 %s, %s, %s, s59" % (v(T + 18), v(T + 18), v(T + 30)))
        e("v_lshlrev_b32 %s, 6, %s" % (v(T + 18), v(T + 18)))
        e("s_cmp_lg_u32 %s, 0" % s(S_W)); e("s_cbranch_scc1 %s" % lw)
        for k in range(4):
            e("buffer_load_dwordx2 %s, %s, %s, 0 offen offset:%d sc1" % (v(T + 22 + 2 * k, 2), v(T + 20), s(S_WS, 4), k * 64))
        e("buffer_load_dwordx4 %s, %s, %s, 0 offen sc1" % (v(T + 32, 4), v(T + 18), s(S_WS, 4)))
        e("s_waitcnt vmcnt(15)")
        e("s_branch %s_j" % lw)
        self.label(lw)
        self.vm_wait("kq")
        self.label(lw + "_j")
        e("s_waitcnt lgkmcnt(0)")
        e("s_barrier")
        self.stamp()
        self.c("fragment loads")
        KF = [0, 72]; VF = [144, 0]
        def k_reads(h): return ["ds_read_b128 %s, %s offset:%d" % (a(KF[h] + B * 4, 4), v(VKA + h), B * 256) for B in range(18)]
        def v_reads(h):
            r = []
            for p in range(9):
                for dt in range(2):
                    d = VF[h] + (p * 2 + dt) * 4
                    r.append("ds_read_b64_tr_b16 %s, %s offset:%d" % (a(d, 2), v(VVA + 2 * h + dt), p * 512))
                    r.append("ds_read_b64_tr_b16 %s, %s offset:%d" % (a(d + 2, 2), v(VVA + 2 * h + dt), p * 512 + 256))
            return r
        for h in range(2):
            for qs in range(2):
                e("ds_read_b128 %s, %s offset:%d" % (v(VQ + (h * 2 + qs) * 4, 4), v(VQA + h), qs * 256))
        for x in k_reads(0)[:11]: e(x)
        e("v_cmp_eq_u32 s[58:59], 3, %s" % v(V_G)); e("v_cmp_eq_u32 s[60:61], 2, %s" % v(V_G))
        e("s_waitcnt lgkmcnt(11)")
        e("v_mov_b32 %s, 0x3f80" % v(t1))
        for h in range(2):
            for qs in range(2):
                q = VQ + (h * 2 + qs) * 4
                z = (2, 3) if h == 0 else (0, 1)
                for i in z: e("v_cndmask_b32 %s, %s, 0, s[60:61]" % (v(q + i), v(q + i)))
                e("v_cndmask_b32 %s, %s, %s, s[58:59]" % (v(q), v(q), v(t1)))
                for i in range(1, 4): e("v_cndmask_b32 %s, %s, 0, s[58:59]" % (v(q + i), v(q + i)))
        e("s_waitcnt lgkmcnt(8)")
        for x in k_reads(0)[11:]: e(x)
        tasks = [(0, 0), (0, 1), (1, 0), (1, 1)]
        def A(ti):
            h, qs = tasks[ti]; S = SB[ti % 2]; r = []
            for b in range(17):
                C = v(VMF, 4) if b == 0 else (v(VML, 4) if b == 16 else "0")
                r.append("%s %s, %s, %s, %s" % (M, v(S + b * 4, 4), a(KF[h] + (qs + b) * 4, 4), v(VQ + (h * 2 + qs) * 4, 4), C))
            return r
        MX = T + 8
        def Bst(ti):
            S = SB[ti % 2]
            vals = [S + i for i in range(68)]
            ins = []
            for c4 in range(4):
                ins.append("v_max3_f32 %s, %s, %s, %s" % (v(MX + c4), v(vals[3 * c4]), v(vals[3 * c4 + 1]), v(vals[3 * c4 + 2])))
            k = 12; ch = 0
            while k < 68:
                ins.append("v_max3_f32 %s, %s, %s, %s" % (v(MX + ch), v(MX + ch), v(vals[k]), v(vals[k + 1]))); k += 2; ch = (ch + 1) % 4
            groups = [ins[i:i + 2] for i in range(0, len(ins), 2)]
            tail = ["v_max3_f32 %s, %s, %s, %s" % (v(MX), v(MX), v(MX + 1), v(MX + 2)), "v_max_f32 %s, %s, %s" % (v(MX), v(MX), v(MX + 3)),
                    "v_mov_b32 %s, %s" % (v(MX + 1), v(MX)), "s_nop 0", "v_permlane16_swap_b32 %s, %s" % (v(MX), v(MX + 1)), "v_max_f32 %s, %s, %s" % (v(MX), v(MX), v(MX + 1)),
                    "v_mov_b32 %s, %s" % (v(MX + 1), v(MX)), "s_nop 0", "v_permlane32_swap_b32 %s, %s" % (v(MX), v(MX + 1)), "v_max_f32 %s, %s, %s" % (v(MX + 4), v(MX), v(MX + 1))]
            return groups, tail
        def Cst(ti):
            h, qs = tasks[ti]; S = SB[ti % 2]
            def adds(b):
                q = S + b * 4
                return ["v_pk_add_f32 %s, %s, %s op_sel_hi:[1,0] neg_lo:[0,1] neg_hi:[0,1]" % (v(q + 2 * hh, 2), v(q + 2 * hh, 2), v(MX + 4, 2)) for hh in range(2)]
            def cvts(b):
                q = S + b * 4; B = qs + b; r = []
                if B % 2 == 0:
                    r.append("v_cvt_pk_bf16_f32 %s, %s, %s" % (v(q), v(q), v(q + 1)))
                    r.append("v_cvt_pk_bf16_f32 %s, %s, %s" % (v(q + 1), v(q + 2), v(q + 3)))
                    if B == 16 and qs == 0: r += ["v_mov_b32 %s, 0" % v(q + 2), "v_mov_b32 %s, 0" % v(q + 3)]
                elif b == 0:
                    r.append("v_cvt_pk_bf16_f32 %s, %s, %s" % (v(q + 3), v(q + 2), v(q + 3)))
                    r.append("v_cvt_pk_bf16_f32 %s, %s, %s" % (v(q + 2), v(q), v(q + 1)))
                    r += ["v_mov_b32 %s, 0" % v(q), "v_mov_b32 %s, 0" % v(q + 1)]
                else:
                    r.append("v_cvt_pk_bf16_f32 %s, %s, %s" % (v(q - 2), v(q), v(q + 1)))
                    r.append("v_cvt_pk_bf16_f32 %s, %s, %s" % (v(q - 1), v(q + 2), v(q + 3)))
                return r
            head = adds(0)
            groups = []
            for b in range(17):
                q = S + b * 4
                groups.append(["v_exp_f32 %s, %s" % (v(q + i), v(q + i)) for i in range(4)] + (adds(b + 1) if b < 16 else []) + cvts(b))
            return head, groups
        def pfrag(ti, p):
            h, qs = tasks[ti]; S = SB[ti % 2]
            if qs == 0: return S + (2 * p) * 4
            return S + (0 if p == 0 else (2 * p - 1)) * 4
        def D(ti):
            h, qs = tasks[ti]; r = []
            for p in range(9):
                for dt in range(2):
                    d = OA + (ti % 2) * 8 + dt * 4
                    r.append("%s %s, %s, %s, %s" % (M, v(d, 4), a(VF[h] + (p * 2 + dt) * 4, 4), v(pfrag(ti, p), 4), v(d, 4) if p else "0"))
            return r
        def E(ti):
            h, qs = tasks[ti]; d = OA + (ti % 2) * 8; L = T + 14; r = []
            r += ["v_mov_b32 %s, %s" % (v(L), v(d + 4)), "v_mov_b32 %s, %s" % (v(L + 1), v(d + 4)),
                  "v_permlane16_swap_b32 %s, %s" % (v(L), v(L + 1)), "v_rcp_f32 %s, %s" % (v(L + 2), v(L + 1))]
            for hh in range(2):
                r.append("v_pk_mul_f32 %s, %s, %s op_sel_hi:[1,0]" % (v(d + 2 * hh, 2), v(d + 2 * hh, 2), v(L + 2, 2)))
                r.append("v_pk_mul_f32 %s, %s, %s op_sel_hi:[1,0]" % (v(d + 4 + 2 * hh, 2), v(d + 4 + 2 * hh, 2), v(L + 2, 2)))
            r += ["v_cvt_pk_bf16_f32 %s, %s, %s" % (v(d), v(d), v(d + 1)), "v_cvt_pk_bf16_f32 %s, %s, %s" % (v(d + 1), v(d + 2), v(d + 3)),
                  "v_cvt_pk_bf16_f32 %s, %s, %s" % (v(d + 4), v(d + 4), v(d + 5)), "v_cvt_pk_bf16_f32 %s, %s, %s" % (v(d + 5), v(d + 6), v(d + 7)),
                  "ds_write_b64 %s, %s offset:%d" % (v(VOW), v(d, 2), qs * 1280 + h * 40),
                  "s_mov_b64 exec, 0xffff",
                  "ds_write_b64 %s, %s offset:%d" % (v(VOW), v(d + 4, 2), qs * 1280 + h * 40 + 32),
                  "s_mov_b64 exec, -1"]
            return r
        def stage(ti, mB, mC, lds, jobs, mid=None):
            groups, tail = Bst(ti)
            mB = list(mB); mC = list(mC); lds = list(lds); jobs = list(jobs); njobs = len(jobs)
            for gi, gr in enumerate(groups):
                if mB: e(mB.pop(0))
                for x in gr: e(x)
            for x in mB: e(x)
            for x in tail: e(x)
            if mid: mid()
            head, cg = Cst(ti)
            for x in head: e(x)
            per = (len(lds) + 16) // 17
            for b, gr in enumerate(cg):
                if mC: e(mC.pop(0))
                jb = None
                if jobs and (b * njobs) // 17 != ((b + 1) * njobs) // 17:
                    jb = jobs.pop(0)
                    for x in jb[0]: e(x)
                for x in gr[:4]: e(x)
                if lds: e("s_waitcnt lgkmcnt(%d)" % (15 - per))
                for _ in range(per):
                    if lds: e(lds.pop(0))
                for x in gr[4:]: e(x)
                if jb and not (o.get("nojobs") and " lds" in jb[1]): self.vm(jb[1], jb[2])
                elif jb: self.vmq.append(jb[2])
            for x in mC: e(x)
            for x in lds: e(x)
            for jb in jobs: self.emit_job(jb)
        W0 = ["s_waitcnt lgkmcnt(0)"]
        def chunked(r):
            out = []
            return list(r)
        wo_a = self.seg4(S_B3, 0, 80, 17, "w3a")
        wo_b = self.seg4(S_B3, 68, 0, 8, "w3b")
        w1_a = self.seg4(S_B4, 0, 32, 12, "w4a")
        def touch(sbase, first_blk, n8k, who, nshare):
            r = []
            for k in range((n8k + 3) // 4):
                su = ["s_mul_i32 s58, %s, %d" % (s(who), n8k * 8192), "s_add_u32 s58, s58, %s" % s(sbase), "s_mul_i32 s59, %s, 7168" % s(S_W),
                      "s_add_u32 s58, s58, s59", "s_add_u32 %s, s58, %d" % (s(S_SOFF), first_blk * 1024 + k * 32768)]
                r.append((su, "buffer_load_dword v%d, v198, %s, %s offen" % (192 + (self.ntouch + k) % 6, s(S_WS, 4), s(S_SOFF)), "touch"))
            self.ntouch += (n8k + 3) // 4
            return r
        e("v_lshlrev_b32 v198, 7, %s" % v(V_L))
        e("s_and_b32 s73, %s, 1" % s(S_M3))
        e("s_lshl_b32 s74, s73, 1"); e("s_and_b32 s58, %s, 1" % s(S_J3)); e("s_add_u32 s74, s74, s58")
        e("s_mul_i32 s75, s73, %d" % (36 * 1024)); e("s_add_u32 s75, s75, %s" % s(S_B4))
        e("s_and_b32 s76, %s, 1" % s(S_W)); e("s_lshl_b32 s76, s76, 10"); e("s_add_u32 s76, s76, %d" % (148 * 1024))
        pfj = [(["s_mov_b32 m0, s76", "s_add_u32 %s, s75, 0x%x" % (s(S_SOFF), (48 + 4 * k) * 1024)],
                "buffer_load_dwordx4 %s, %s, %s offen sc1 lds" % (v(VL16), s(S_WS, 4), s(S_SOFF)), "pfj") for k in range(9)] if o.get("pf4", 1) else []
        tch = (touch(S_B4, 0, 8, 73, 2) + touch(S_B3, 68, 1, 74, 4)) if o.get("pf2", 0) else []
        e("s_waitcnt lgkmcnt(0)")
        for x in A(0): e(x)
        if o.get("fine2"): self.stamp()
        def sync2():
            lw = self.newlabel("S2")
            if o.get("fine2"): self.stamp()
            e("s_waitcnt vmcnt(0)")
            e("s_cmp_lg_u32 %s, 0" % s(S_W)); e("s_cbranch_scc1 %s" % lw)
            e("s_mov_b64 s[50:51], -1")
            for k in range(4):
                e("v_cmp_eq_u32 s[46:47], %s, %s" % (s(S_NONCE), v(T + 22 + 2 * k))); e("v_cmp_eq_u32 s[48:49], %s, %s" % (s(S_NONCE + 1), v(T + 23 + 2 * k)))
                e("s_and_b64 s[50:51], s[50:51], s[46:47]"); e("s_and_b64 s[50:51], s[50:51], s[48:49]")
            e("s_cmp_eq_u64 s[50:51], -1"); e("s_cbranch_scc1 %s_ok" % lw)
            self.flag_poll(T + 20, T + 22, nloads=4, stride=64)
            e("buffer_load_dwordx4 %s, %s, %s, 0 offen sc1" % (v(T + 32, 4), v(T + 18), s(S_WS, 4)))
            e("s_waitcnt vmcnt(0)")
            self.label(lw + "_ok")
            e("v_cmp_eq_u32 s[46:47], %s, %s" % (s(S_XCC), v(T + 34)))
            e("v_cmp_eq_u32 s[48:49], %s, %s" % (s(S_NONCE), v(T + 32))); e("s_and_b64 s[46:47], s[46:47], s[48:49]")
            e("s_cmp_eq_u64 s[46:47], -1"); e("s_cselect_b32 s46, 1, 0")
            e("s_cmp_eq_u32 %s, 0" % s(S_TMO)); e("s_cselect_b32 s46, s46, 0")
            e("v_mov_b32 %s, s46" % v(T + 30)); e("v_mov_b32 %s, %d" % (v(T + 31), BB + 6640))
            e("ds_write_b32 %s, %s" % (v(T + 31), v(T + 30)))
            e("s_waitcnt lgkmcnt(0)")
            self.label(lw)
            e("s_barrier")
            if o.get("fastp", 1):
                e("v_mov_b32 %s, %d" % (v(T + 31), BB + 6640))
                e("ds_read_b32 %s, %s" % (v(T + 30), v(T + 31)))
                e("s_waitcnt lgkmcnt(0)")
                e("v_readfirstlane_b32 %s, %s" % (s(S_FAST), v(T + 30)))
            if o.get("fine2"): self.stamp()
        stage(0, A(1), [], chunked(v_reads(0)) + chunked(k_reads(1)), wo_a[:9], mid=sync2)
        e("s_waitcnt lgkmcnt(0)")
        if o.get("fine2"): self.stamp()
        stage(1, D(0)[:17], D(0)[17:] + A(2)[:16], chunked(v_reads(1)), wo_a[9:] + pfj[:3])
        for x in A(2)[16:]: e(x)
        e("s_waitcnt lgkmcnt(0)")
        e("s_barrier")
        if o.get("fine2"): self.stamp()
        for x in E(0): e(x)
        pt = []
        if o.get("pt", 0):
            e("v_lshrrev_b32 v196, 3, %s" % v(V_L)); e("v_min_u32 v196, 5, v196")
            e("v_cmp_le_u32 vcc, 3, v196"); e("v_mov_b32 v197, %d" % (45 * 1024)); e("v_cndmask_b32 v197, 0, v197, vcc")
            e("v_lshl_add_u32 v197, v196, 10, v197"); e("v_and_b32 v196, 7, %s" % v(V_L)); e("v_lshl_add_u32 v197, v196, 7, v197")
            e("s_lshl_b32 s77, %s, 3" % s(S_M3)); e("s_lshl_b32 s58, %s, 1" % s(S_W)); e("s_add_u32 s77, s77, s58"); e("s_mul_i32 s77, s77, 49152")
            e("s_mul_i32 s58, %s, 3072" % s(S_J3)); e("s_add_u32 s77, s77, s58"); e("s_add_u32 s77, s77, 0x%x" % WS_H1)
            pt = [([], "buffer_load_dword v195, v197, %s, s77 offen" % s(S_WS, 4), "touch")]
        stage(2, D(1)[:17], D(1)[17:] + A(3)[:16], [], wo_b + pfj[3:7] + pt)
        for x in A(3)[16:]: e(x)
        for x in E(1): e(x)
        if o.get("fine2"): self.stamp()
        stage(3, D(2)[:17], D(2)[17:], [], pfj[7:] + w1_a[:8])
        self.p3_jobs = w1_a[8:]
        for x in E(2): e(x)
        for x in D(3): e(x)
        for x in E(3): e(x)
        self.stamp()
        self.c("o: staging -> fragment-major global")
        e("s_waitcnt lgkmcnt(0)")
        R = 56
        e("ds_read_b128 %s, v236" % v(R, 4))
        e("ds_read_b128 %s, v236 offset:1280" % v(R + 4, 4))
        e("ds_read_b128 %s, v237 offset:64" % v(R + 8, 4))
        e("s_waitcnt lgkmcnt(0)")
        self.vm("buffer_store_dwordx4 %s, v238, %s, s78 offen sc1" % (v(R, 4), s(S_WS, 4)), "ost")
        self.vm("buffer_store_dwordx4 %s, v238, %s, s79 offen sc1" % (v(R + 4, 4), s(S_WS, 4)), "ost")
        e("s_mov_b64 exec, 0xffffffff")
        self.vm("buffer_store_dwordx4 %s, v239, %s, s78 offen sc1" % (v(R + 8, 4), s(S_WS, 4)), "ost")
        e("s_mov_b64 exec, -1")

    def handoff(self, phase, jobs, dma_a=None, dma_b=None, wait_dma=True):
        e = self.e
        l0 = self.newlabel("H0"); l1 = self.newlabel("H1"); l2 = self.newlabel("H2"); l3 = self.newlabel("H3")
        for j in jobs: self.emit_job(j)
        if dma_a:
            e("s_cmp_eq_u32 %s, 0" % s(S_W)); e("s_cbranch_scc1 %s" % l0)
            n0 = len(self.vmq)
            dma_a()
            e("s_waitcnt vmcnt(%d)" % (0 if self.o.get("nojobs") else len(self.vmq) - n0 + len(jobs)))
            e("s_branch %s" % l1)
            self.label(l0)
            e("s_waitcnt vmcnt(%d)" % (0 if self.o.get("nojobs") else len(jobs)))
            self.label(l1)
        else:
            e("s_waitcnt vmcnt(%d)" % (0 if self.o.get("nojobs") else len(jobs)))
        e("s_barrier")
        self.stamp()
        e("s_cmp_eq_u32 %s, 0" % s(S_W)); e("s_cbranch_scc1 %s" % l2)
        if dma_b: dma_b()
        e("s_branch %s" % l3)
        self.label(l2)
        self.group_flag_idx()
        self.flag_set(phase, 52, 212, checkwave=False)
        self.poll_group(phase, 212)
        self.label(l3)
        if wait_dma: e("s_waitcnt vmcnt(0)")
        e("s_barrier")
        self.stamp()

    def gemm_small(self, NS, VL16, ACC, pos, bfrag, btag, RING, T, hooks, slots):
        e = self.e
        VA = T + 16
        def rd(st):
            r = []
            for t in range(5):
                off = pos(st * 5 + t) * 1024
                r.append("ds_read_b128 %s, %s offset:%d" % (a(RING + ((st % 3) * 5 + t) * 4, 4), v(VA + off // 65536), off % 65536))
            return r
        for x in rd(0) + rd(1): e(x)
        for st in range(NS):
            if st in hooks: hooks[st]()
            self.vm_wait(btag(st), " lgkmcnt(%d)" % (5 if st + 1 < NS else 0))
            nx = rd(st + 2) if st + 2 < NS else []
            jobs = list(slots(st))
            for t in range(5):
                jb = None
                if jobs and t in (0, 2, 4):
                    jb = jobs.pop(0)
                    for x in jb[0]: e(x)
                e("%s %s, %s, %s, %s" % (M, v(ACC + t * 4, 4), a(RING + ((st % 3) * 5 + t) * 4, 4), a(bfrag(st), 4), v(ACC + t * 4, 4)))
                if t < len(nx): e(nx[t])
                if jb and not (self.o.get("nojobs") and " lds" in jb[1]): self.vm(jb[1], jb[2])
                elif jb: self.vmq.append(jb[2])
            for jb in jobs: self.emit_job(jb)

    def frag_job(self, dst, sreg, idx, tag, VL16=4):
        su = []
        if idx % 4 == 0 and idx > 0: su = ["s_add_u32 %s, %s, 4096" % (s(sreg), s(sreg))]
        return (su, "buffer_load_dwordx4 %s, %s, %s, %s offen offset:%d sc1" % (a(dst, 4), v(VL16), s(S_WS, 4), s(sreg), (idx % 4) * 1024), tag)

    def p3(self):
        e = self.e; o = self.o
        VL16 = 4; T = 200; t0, t1, t2, t3 = T, T + 1, T + 2, T + 3
        XR = 8
        ACC = 32
        HR = 240
        self.c("P2 -> P3 hand-off")
        VA = T + 16
        e("v_mov_b32 %s, %s" % (v(VA), v(VL16))); e("v_add_u32 %s, 0x10000, %s" % (v(VA + 1), v(VL16))); e("v_add_u32 %s, 0x20000, %s" % (v(VA + 2), v(VL16)))
        for i in range(20): e("v_mov_b32 %s, 0" % v(ACC + i))
        e("s_lshl_b32 s54, %s, 4" % s(S_TI)); e("v_add_u32 %s, s54, %s" % (v(t0), v(V_C))); e("v_mul_u32_u24 %s, 1280, %s" % (v(t0), v(t0)))
        e("s_mul_i32 s54, %s, 160" % s(S_NQ))
        e("v_lshl_add_u32 %s, %s, 4, %s" % (v(t1), v(V_G), v(t0))); e("v_add_u32 %s, s54, %s" % (v(20), v(t1)))
        e("v_lshl_add_u32 %s, %s, 3, %s" % (v(t1), v(V_G), v(t0))); e("v_add_u32 %s, s54, %s" % (v(21), v(t1)))
        e("s_mul_i32 s66, %s, 20480" % s(S_TI)); e("s_add_u32 s66, s66, 0x%x" % WS_H)
        e("s_mul_i32 s55, %s, 10" % s(S_NQ))
        def uaddr(dst, ureg):
            e("v_lshrrev_b32 %s, 2, %s" % (v(t2), v(ureg))); e("v_lshlrev_b32 %s, 10, %s" % (v(t2), v(t2)))
            e("v_and_b32 %s, 3, %s" % (v(t3), v(ureg))); e("v_lshl_add_u32 %s, %s, 8, %s" % (v(t2), v(t3), v(t2)))
            e("v_lshl_add_u32 %s, %s, 4, %s" % (v(dst), v(V_C), v(t2)))
        for p in range(2):
            e("v_add_u32 %s, s55, %s" % (v(t0), v(V_G)))
            if p: e("v_add_u32 %s, 4, %s" % (v(t0), v(t0)))
            uaddr(22 + p, t0)
        e("v_lshrrev_b32 %s, 1, %s" % (v(t0), v(V_G))); e("v_add_u32 %s, s55, %s" % (v(t0), v(t0))); e("v_add_u32 %s, 8, %s" % (v(t0), v(t0)))
        uaddr(24, t0)
        e("v_and_b32 %s, 1, %s" % (v(t0), v(V_G))); e("v_lshl_add_u32 %s, %s, 3, %s" % (v(24), v(t0), v(24)))
        e("s_lshl_b32 s54, %s, 4" % s(S_TI)); e("v_add_u32 %s, s54, %s" % (v(t0), v(V_C))); e("v_lshlrev_b32 %s, 6, %s" % (v(18), v(t0)))
        e("s_lshl_b32 s67, %s, 3" % s(S_NQ)); e("s_add_u32 s67, s67, 0x%x" % WS_HS)
        e("s_waitcnt lgkmcnt(0)")
        e("s_barrier")
        self.handoff(1, self.p3_jobs)
        self.c("P3 main")
        e("s_mul_i32 s54, %s, 20480" % s(S_TI)); e("s_add_u32 s54, s54, 0x%x" % WS_O)
        fj = [self.frag_job(st * 4, 54, st, ("of", st)) for st in range(20)]
        LA = o.get('la3', 10)
        for st in range(LA): self.emit_job(fj[st])
        xr = [([], "buffer_load_dwordx4 %s, v20, %s, 0 offen" % (v(XR, 4), s(S_X, 4)), "xr"),
              ([], "buffer_load_dwordx4 %s, v20, %s, 0 offen offset:64" % (v(XR + 4, 4), s(S_X, 4)), "xr"),
              ([], "buffer_load_dwordx2 %s, v21, %s, 0 offen offset:128" % (v(XR + 8, 2), s(S_X, 4)), "xr")]
        def slots(st):
            r = []
            if st + LA < 20: r.append(fj[st + LA])
            if 12 <= st < 15: r.append(xr[st - 12])
            return r
        self.gemm_small(20, VL16, ACC, lambda i: 80 + i if i < 68 else i - 68, lambda st: st * 4, lambda st: ("of", st), 80, T, {}, slots)
        self.stamp()
        self.c("P3 epilogue")
        SUM, SQ = T + 4, T + 6
        e("v_mov_b32 %s, 0" % v(SUM)); e("v_mov_b32 %s, 0" % v(SUM + 1)); e("v_mov_b32 %s, 0" % v(SQ)); e("v_mov_b32 %s, 0" % v(SQ + 1))
        self.vm_wait("xr")
        for t in range(5):
            A_ = ACC + t * 4
            xs = (XR + (t >> 1) * 4 + (t & 1) * 2) if t < 4 else XR + 8
            for hh in range(2):
                e("v_lshlrev_b32 %s, 16, %s" % (v(t0), v(xs + hh))); e("v_and_b32 %s, 0xffff0000, %s" % (v(t1), v(xs + hh)))
                e("v_pk_add_f32 %s, %s, %s" % (v(A_ + 2 * hh, 2), v(A_ + 2 * hh, 2), v(t0, 2)))
                hd = (HR + (t >> 1) * 4 + (t & 1) * 2 + hh) if t < 4 else HR + 8 + hh
                e("v_cvt_pk_bf16_f32 %s, %s, %s" % (v(hd), v(A_ + 2 * hh), v(A_ + 2 * hh + 1)))
            if t == 1: self.vm("buffer_store_dwordx4 %s, v22, %s, s66 offen sc1" % (v(HR, 4), s(S_WS, 4)), "hst")
            if t == 3: self.vm("buffer_store_dwordx4 %s, v23, %s, s66 offen sc1" % (v(HR + 4, 4), s(S_WS, 4)), "hst")
            if t == 4: self.vm("buffer_store_dwordx2 %s, v24, %s, s66 offen sc1" % (v(HR + 8, 2), s(S_WS, 4)), "hst")
        for t in range(5):
            A_ = ACC + t * 4
            for hh in range(2):
                e("v_pk_add_f32 %s, %s, %s" % (v(SUM, 2), v(SUM, 2), v(A_ + 2 * hh, 2)))
                e("v_pk_fma_f32 %s, %s, %s, %s" % (v(SQ, 2), v(A_ + 2 * hh, 2), v(A_ + 2 * hh, 2), v(SQ, 2)))
        e("v_add_f32 %s, %s, %s" % (v(SUM), v(SUM), v(SUM + 1))); e("v_add_f32 %s, %s, %s" % (v(SUM + 1), v(SQ), v(SQ + 1)))
        self.reduce4(SUM, t0); self.reduce4(SUM + 1, t0)
        e("s_mov_b64 exec, 0xffff")
        self.vm("buffer_store_dwordx2 %s, v18, %s, s67 offen sc1" % (v(SUM, 2), s(S_WS, 4)), "hst")
        e("s_mov_b64 exec, -1")

    def p4(self):
        e = self.e; o = self.o
        VL16 = 4; T = 200; t0, t1, t2, t3 = T, T + 1, T + 2, T + 3
        ACC = 32
        CSA = 80
        CSV = 88
        VONE = 112
        VST = 116
        CS_OFF = 158 * 1024
        RING = 160
        pos = lambda i: 32 + i if i < 48 else 80 + (i - 48)
        self.c("P3 -> P4 hand-off")
        for i in range(4): e("v_mov_b32 %s, 0x3f803f80" % v(VONE + i))
        for i in range(8): e("v_mov_b32 %s, 0" % v(CSA + i))
        for i in range(48): e("v_mov_b32 %s, 0" % v(ACC + i))
        e("s_barrier")
        self.handoff(2, [], lambda: self.dma3(S_B4, 48, 80, 8, "w4b"), lambda: self.dma3(S_B4, 72, 104, 16, "w4b"), wait_dma=False)
        self.c("P4 main")
        e("s_lshl_b32 s54, %s, 3" % s(S_M3)); e("s_lshl_b32 s55, %s, 1" % s(S_W)); e("s_add_u32 s54, s54, s55")
        e("s_mov_b32 s88, s54")
        e("s_mul_i32 s55, s54, 20480"); e("s_add_u32 s55, s55, 0x%x" % WS_H); e("s_add_u32 s56, s55, 20480")
        fj = [[self.frag_job((st * 2 + tt) * 4, 55 + tt, st, ("hf", st)) for tt in range(2)] for st in range(20)]
        LA = o.get('la4', 4)
        for st in range(LA):
            for j in fj[st]: self.emit_job(j)
        e("s_lshl_b32 s57, s54, 4"); e("v_add_u32 %s, s57, %s" % (v(t0), v(V_C))); e("v_lshlrev_b32 %s, 6, %s" % (v(t0), v(t0)))
        e("v_lshl_add_u32 %s, %s, 4, %s" % (v(t0), v(V_G), v(t0))); e("v_add_u32 %s, 0x%x, %s" % (v(25), WS_HS, v(t0)))
        e("s_add_u32 s58, %s, 4" % s(S_W)); e("s_cmp_ge_u32 s58, 6"); e("s_cselect_b32 s57, 6, 0"); e("s_sub_u32 s58, s58, s57")
        e("v_add_u32 %s, %s, %s" % (v(t0), s(S_W1K), v(VL16)))
        e("s_lshl_b32 s57, s58, 10"); e("v_add_u32 %s, s57, %s" % (v(t1), v(VL16)))
        e("v_add_u32 %s, 0x10000, %s" % (v(t2), v(t0))); e("v_add_u32 %s, 0x10000, %s" % (v(t3), v(t1)))
        e("v_add_u32 %s, 0x20000, %s" % (v(t0 + 4), v(t0))); e("v_add_u32 %s, 0x20000, %s" % (v(t0 + 5), v(t1)))
        def csrd(st):
            off = pos(st * 6) * 1024
            return ["ds_read_b128 %s, %s offset:%d" % (a(RING + ((st % 4) * 2 + q) * 4, 4), v(t0 + 2 * (off // 65536) + q), off % 65536) for q in range(2)]
        CSR = 208
        def csrd2(st):
            off = pos(st * 6) * 1024
            return ["ds_read_b128 %s, %s offset:%d" % (a(CSR + ((st % 4) * 2 + q) * 4, 4), v(142 + 2 * (off // 65536) + q), off % 65536) for q in range(2)]
        def cs_block(s0, s1, jobs=()):
            jobs = list(jobs)
            for st in range(s0, min(s0 + 3, s1)):
                for x in csrd2(st): e(x)
            for st in range(s0, s1):
                nx = csrd2(st + 3) if st + 3 < s1 else []
                for x in nx: e(x)
                e("s_waitcnt lgkmcnt(%d)" % (2 * min(3, s1 - 1 - st)))
                for q in range(2):
                    e("%s %s, %s, %s, %s" % (M, v(CSA + q * 4, 4), a(CSR + ((st % 4) * 2 + q) * 4, 4), v(VONE, 4), v(CSA + q * 4, 4)))
                if jobs: self.emit_job(jobs.pop(0))
        for k in range(6): e("v_mov_b32 %s, %s" % (v(142 + k), v(t0 + k)))
        cs_block(0, 8, self.seg4(S_B5, 0, 0, 8, "w5a"))
        e("v_lshlrev_b32 %s, 4, %s" % (v(t2), v(V_G)))
        e("s_lshl_b32 s57, %s, 6" % s(S_W)); e("s_add_u32 s57, s57, %d" % CS_OFF); e("v_add_u32 %s, s57, %s" % (v(t0), v(t2)))
        e("s_lshl_b32 s57, s58, 6"); e("s_add_u32 s57, s57, %d" % CS_OFF); e("v_add_u32 %s, s57, %s" % (v(t1), v(t2)))
        e("v_add_u32 %s, %d, %s" % (v(26), CS_OFF, v(t2)))
        VA = T + 16
        e("v_mov_b32 %s, %s" % (v(VA), v(VL16))); e("v_add_u32 %s, 0x10000, %s" % (v(VA + 1), v(VL16))); e("v_add_u32 %s, 0x20000, %s" % (v(VA + 2), v(VL16)))
        def rd(st):
            r = []
            for t in range(6):
                off = pos(st * 6 + t) * 1024
                r.append("ds_read_b128 %s, %s offset:%d" % (a(RING + ((st % 2) * 6 + t) * 4, 4), v(VA + off // 65536), off % 65536))
            return r
        e("v_mov_b32 %s, %s" % (v(140), v(t0))); e("v_mov_b32 %s, %s" % (v(141), v(t1)))
        for x in rd(0): e(x)
        w5b = self.seg4(S_B5, 32, 32, 12, "w5b")
        hs = [([], "buffer_load_dwordx4 %s, v25, %s, 0 offen offset:%d sc1" % (v(VST + tt * 4, 4), s(S_WS, 4), tt * 1024), "hs") for tt in range(2)]
        for st in range(20):
            if st == 7:
                self.vm_wait("w4b")
                e("s_barrier")
            if st == 8:
                e("s_waitcnt lgkmcnt(0)")
                cs_block(8, 20)
                e("v_cmp_eq_u32 vcc, 0, %s" % v(V_C))
                e("s_and_saveexec_b64 s[58:59], vcc")
                e("ds_write_b128 v140, %s" % v(CSA, 4))
                e("ds_write_b128 v141, %s" % v(CSA + 4, 4))
                e("s_mov_b64 exec, s[58:59]")
            if st == 10:
                e("s_barrier")
                for t in range(6): e("ds_read_b128 %s, %s offset:%d" % (v(CSV + t * 4, 4), v(26), t * 64))
            self.vm_wait(("hf", st), " lgkmcnt(0)")
            nx = rd(st + 1) if st + 1 < 20 else []
            jobs = list(fj[st + LA]) if st + LA < 20 else []
            if st == 11: jobs += hs
            if st in (2, 4, 6) and o.get("pf3", 0):
                k = (st - 2) // 2
                if k < 2:
                    jobs.append((["s_mul_i32 s58, s74, 40960", "s_add_u32 s58, s58, %s" % s(S_B5), "s_mul_i32 s59, %s, 7168" % s(S_W), "s_add_u32 s58, s58, s59",
                                  "s_add_u32 %s, s58, %d" % (s(S_SOFF), 80 * 1024 + k * 32768)],
                                 "buffer_load_dword v%d, v198, %s, %s offen" % (192 + k, s(S_WS, 4), s(S_SOFF)), "touch"))
            if st >= 10:
                jobs += w5b[:2] if st >= 15 or st in (11, 13) else w5b[:1]
                w5b = w5b[2:] if (st >= 15 or st in (11, 13)) else w5b[1:]
            side = []
            if st in (16, 17):
                tt_ = st - 16; q = VST + tt_ * 4; NMx = [T + 4, T + 6]; tq = T + 8
                if st == 16: self.vm_wait("hs")
                rec = Asm(); sv = self.e; self.e = rec.e
                rec.e("v_add_f32 %s, %s, %s" % (v(q), v(q), v(q + 2))); rec.e("v_add_f32 %s, %s, %s" % (v(q + 1), v(q + 1), v(q + 3)))
                self.e = rec.e
                Gen.reduce4(self, q, tq); Gen.reduce4(self, q + 1, tq + 1)
                self.e = sv
                rec.e("v_mul_f32 %s, 0x%x, %s" % (v(NMx[tt_]), f2u(-1.0 / 640), v(q)))
                rec.e("v_mul_f32 %s, 0x%x, %s" % (v(q + 1), f2u(1.0 / 640), v(q + 1)))
                rec.e("v_fma_f32 %s, -%s, %s, %s" % (v(q + 1), v(NMx[tt_]), v(NMx[tt_]), v(q + 1)))
                rec.e("v_max_f32 %s, 0, %s" % (v(q + 1), v(q + 1))); rec.e("v_add_f32 %s, 0x%x, %s" % (v(q + 1), f2u(1e-5), v(q + 1)))
                rec.e("v_rsq_f32 %s, %s" % (v(NMx[tt_] + 1), v(q + 1)))
                side = list(rec.L)
            if st == 18:
                side = ["s_mul_i32 s64, s88, 49152", "s_mul_i32 s65, %s, 3072" % s(S_J3), "s_add_u32 s64, s64, s65", "s_add_u32 s64, s64, 0x%x" % WS_H1,
                        "s_add_u32 s65, s64, 49152", "s_mov_b32 s56, 0x%x" % f2u(-math.log2(math.e)), "s_mov_b32 s57, s56"]
            k = 0; n = 0
            for t in range(6):
                for tt in range(2):
                    d = ACC + (t * 2 + tt) * 4
                    for _ in range(2):
                        if side and n >= 1: e(side.pop(0))
                    jb = None
                    if jobs and n % 3 == 0:
                        jb = jobs.pop(0)
                        for x in jb[0]: e(x)
                    e("%s %s, %s, %s, %s" % (M, v(d, 4), a(RING + ((st % 2) * 6 + t) * 4, 4), a((st * 2 + tt) * 4, 4), v(d, 4)))
                    if tt == 0 and k < len(nx): e(nx[k]); k += 1
                    if jb and not (o.get("nojobs") and " lds" in jb[1]): self.vm(jb[1], jb[2])
                    elif jb: self.vmq.append(jb[2])
                    n += 1
            for x in side: e(x)
            for jb in jobs: self.emit_job(jb)
        assert not w5b
        self.stamp()
        e("s_barrier")
        self.c("P4 epilogue (remaining resident part of W2 streams in underneath)")
        w5c = self.seg4(S_B5, 80, 80, 20, "w5c")
        self.p5_jobs = w5c[12:]; w5c = w5c[:12]
        NM = [T + 4, T + 6]
        n = 0
        for tt in range(2):
            for p in range(3):
                O4 = 124 + (n % 4) * 4
                zs = []
                for hf in range(2):
                    t = 2 * p + hf; A_ = ACC + (t * 2 + tt) * 4
                    for hh in range(2): zs.append((A_ + 2 * hh, CSV + t * 4 + 2 * hh, O4 + hf * 2 + hh))
                E_ = [T + 8, T + 10, T + 12, T + 14]
                for k, (z, c_, od) in enumerate(zs): e("v_pk_fma_f32 %s, %s, %s, %s op_sel_hi:[1,0,1]" % (v(z, 2), v(c_, 2), v(NM[tt], 2), v(z, 2)))
                for k, (z, c_, od) in enumerate(zs): e("v_pk_mul_f32 %s, %s, %s op_sel:[0,1] op_sel_hi:[1,1]" % (v(z, 2), v(z, 2), v(NM[tt], 2)))
                for k, (z, c_, od) in enumerate(zs): e("v_pk_mul_f32 %s, %s, s[56:57]" % (v(E_[k], 2), v(z, 2)))
                for k in range(4): e("v_exp_f32 %s, %s" % (v(E_[k]), v(E_[k]))); e("v_exp_f32 %s, %s" % (v(E_[k] + 1), v(E_[k] + 1)))
                for k in range(4): e("v_pk_add_f32 %s, %s, 1.0 op_sel_hi:[1,0]" % (v(E_[k], 2), v(E_[k], 2)))
                for k in range(4): e("v_rcp_f32 %s, %s" % (v(E_[k]), v(E_[k]))); e("v_rcp_f32 %s, %s" % (v(E_[k] + 1), v(E_[k] + 1)))
                for k, (z, c_, od) in enumerate(zs): e("v_pk_mul_f32 %s, %s, %s" % (v(z, 2), v(z, 2), v(E_[k], 2)))
                for k, (z, c_, od) in enumerate(zs): e("v_cvt_pk_bf16_f32 %s, %s, %s" % (v(od), v(z), v(z + 1)))
                for _ in range(2):
                    if w5c: self.emit_job(w5c.pop(0))
                self.vm("buffer_store_dwordx4 %s, %s, %s, %s offen offset:%d sc1" % (v(O4, 4), v(VL16), s(S_WS, 4), s(64 + tt), p * 1024), "h1st")
                n += 1
        assert not w5c

    def p5(self):
        e = self.e; o = self.o
        VL16 = 4; T = 200; t0, t1, t2, t3 = T, T + 1, T + 2, T + 3
        ACC = 32; HR = 240
        self.c("P4 -> P5 hand-off")
        for i in range(20): e("v_mov_b32 %s, 0" % v(ACC + i))
        self.handoff(3, self.p5_jobs)
        self.c("P5 main")
        e("s_mul_i32 s54, %s, 49152" % s(S_TI)); e("s_add_u32 s54, s54, 0x%x" % WS_H1)
        fj = [self.frag_job(st * 4, 54, st, ("f1", st)) for st in range(48)]
        LA = o.get('la5', 9)
        for st in range(LA): self.emit_job(fj[st])
        bA = self.seg4(S_B5, 160, 0, 10, "b5a")
        bB = self.seg4(S_B5, 200, 40, 10, "b5b")
        def slots(st):
            r = []
            if st + LA < 48: r.append(fj[st + LA])
            if 9 <= st < 19: r.append(bA[st - 9])
            if 19 <= st < 29: r.append(bB[st - 19])
            return r
        def bar(): e("s_barrier")
        def landed(tag):
            def fn():
                self.vm_wait(tag); e("s_barrier")
            return fn
        hooks = {9: bar, 19: bar, 30: landed("b5a"), 38: landed("b5b")}
        self.gemm_small(48, VL16, ACC, lambda i: i % 160, lambda st: st * 4, lambda st: ("f1", st), 192, T, hooks, slots)
        self.stamp()
        self.c("P5 epilogue")
        for t in range(5):
            A_ = ACC + t * 4
            for hh in range(2):
                hd = (HR + (t >> 1) * 4 + (t & 1) * 2 + hh) if t < 4 else HR + 8 + hh
                e("v_lshlrev_b32 %s, 16, %s" % (v(t0), v(hd))); e("v_and_b32 %s, 0xffff0000, %s" % (v(t1), v(hd)))
                e("v_pk_add_f32 %s, %s, %s" % (v(A_ + 2 * hh, 2), v(A_ + 2 * hh, 2), v(t0, 2)))
                od = (64 + (t >> 1) * 4 + (t & 1) * 2 + hh) if t < 4 else 72 + hh
                e("v_cvt_pk_bf16_f32 %s, %s, %s" % (v(od), v(A_ + 2 * hh), v(A_ + 2 * hh + 1)))
            if t == 1: e("buffer_store_dwordx4 v[64:67], v20, %s, 0 offen" % s(S_OUT, 4))
            if t == 3: e("buffer_store_dwordx4 v[68:71], v20, %s, 0 offen offset:64" % s(S_OUT, 4))
        e("buffer_store_dwordx2 v[72:73], v21, %s, 0 offen offset:128" % s(S_OUT, 4))
        self.stamp()

    def finish(self):
        self.label("L_end")
        self.e("s_endpgm")

def build(opts):
    g = Gen(opts)
    g.prologue()
    stop = opts.get("stop", 5)
    g.p1()
    if stop >= 2: g.p2()
    if stop >= 3: g.p3()
    if stop >= 4: g.p4()
    if stop >= 5: g.p5()
    g.e("s_waitcnt vmcnt(0)")
    g.finish()
    body = g.finalize(2 if opts.get('nocheck') else True)
    hdr = open("cdna_kernels/%s.s.ref" % NAME).read().split("\n")
    head = [l for l in hdr if l.startswith(";") and ("Kernarg" in l or "offset" in l)]
    txt = "\n".join(head) + "\n; @launch grid=(256,1,1) block=(256,1,1) lds=163840\n"
    txt += '.amdgcn_target "amdgcn-amd-amdhsa--gfx950"\n.text\n.globl %s_kernel\n.p2align 8\n.type %s_kernel,@function\n%s_kernel:\n' % (NAME, NAME, NAME)
    txt += body + "\n"
    txt = txt.replace("CODE_Q", "16384")
    txt += """.section .rodata,"a"
.p2align 6
.amdhsa_kernel %s_kernel
  .amdhsa_next_free_vgpr 512
  .amdhsa_next_free_sgpr 102
  .amdhsa_accum_offset 256
  .amdhsa_group_segment_fixed_size 0
  .amdhsa_kernarg_size 72
  .amdhsa_user_sgpr_count 2
  .amdhsa_user_sgpr_kernarg_segment_ptr 1
  .amdhsa_system_sgpr_workgroup_id_x 1
  .amdhsa_float_denorm_mode_32 3
.end_amdhsa_kernel
""" % NAME
    return txt, g

if __name__ == "__main__":
    opts = {}
    out = sys.argv[1]
    for x in sys.argv[2:]:
        if "=" in x:
            k, val = x.split("="); opts[k] = int(val)
        else: opts[x] = 1
    txt, g = build(opts)
    open(out, "w").write(txt)
    print("lines", len(txt.split("\n")), "bytes", len(txt), "nops", g.nops)
```
